```python
import torch

def _softmax(x, axis=-1):
    return torch.softmax(x, dim=axis)
def _gelu(x):
    return torch.nn.functional.gelu(x, approximate="tanh")
def _silu(x):
    return torch.nn.functional.silu(x)
def _sigmoid(x):
    return torch.sigmoid(x)
def _layernorm(x, axis=-1, eps=1e-5):
    m = x.mean(dim=axis, keepdim=True)
    v = x.var(dim=axis, keepdim=True, unbiased=False)
    return (x - m) / torch.sqrt(v + eps)
def _scatter_add(tgt, idx, src, axis=0):
    return tgt.clone().index_add_(axis, idx, src)
def _segment_sum(src, seg, n):
    out = torch.zeros((n,) + src.shape[1:], dtype=src.dtype)
    return out.index_add_(0, seg, src)
def _pad(x, pw):
    flat = tuple(v for pair in reversed(pw) for v in pair)
    return torch.nn.functional.pad(x, flat)

kernel_name = 'concat_heads__mha_block_cached__gqa_block_cached__near_ridge'

def setup_inputs():

    _w = (lambda a: (lambda t: t.to(torch.bfloat16) if t.is_floating_point() else t)(torch.as_tensor(a)))
    def _A_setup():
        B, Sq, D = 8, 240, 1024
        H, Sk, Dh = 32, 1024, 128
        return {
            "x": _w((lambda *s: torch.randn(*s, dtype=torch.bfloat16) * 0.8)(B, Sq, D)),
            "k_cache": _w((lambda *s: torch.randn(*s, dtype=torch.bfloat16) * 0.8)(B, H, Sk, Dh)),
            "v_cache": _w((lambda *s: torch.randn(*s, dtype=torch.bfloat16) * 0.05)(B, H, Sk, Dh)),
            "wq": _w((lambda *s: torch.randn(*s, dtype=torch.bfloat16) * 0.8)(D, H * Dh) * (D ** -0.5)),
            "wo": _w((lambda *s: torch.randn(*s, dtype=torch.bfloat16) * 0.05)(H * Dh, D) * ((H * Dh) ** -0.5)),
        }
    _A_in = _A_setup()

    def _B_setup():
        B, Sq, D = 8, 240, 1024
        Hq, Hkv, Sk, Dh = 32, 32, 1024, 128
        assert Hq % Hkv == 0, (Hq, Hkv)
        return {
            "x": _w((lambda *s: torch.randn(*s, dtype=torch.bfloat16) * 0.8)(B, Sq, D)),
            "k_cache": _w((lambda *s: torch.randn(*s, dtype=torch.bfloat16) * 0.8)(B, Hkv, Sk, Dh)),
            "v_cache": _w((lambda *s: torch.randn(*s, dtype=torch.bfloat16) * 0.05)(B, Hkv, Sk, Dh)),
            "wq": _w((lambda *s: torch.randn(*s, dtype=torch.bfloat16) * 0.8)(D, Hq * Dh) * (D ** -0.5)),
            "wo": _w((lambda *s: torch.randn(*s, dtype=torch.bfloat16) * 0.05)(Hq * Dh, D) * ((Hq * Dh) ** -0.5)),
        }
    _B_in = _B_setup()

    return {
        "A_x": _A_in["x"],
        "A_k_cache": _A_in["k_cache"],
        "A_v_cache": _A_in["v_cache"],
        "A_wq": _A_in["wq"],
        "A_wo": _A_in["wo"],
        "B_x": _B_in["x"],
        "B_k_cache": _B_in["k_cache"],
        "B_v_cache": _B_in["v_cache"],
        "B_wq": _B_in["wq"],
        "B_wo": _B_in["wo"],
    }

def reference(A_x, A_k_cache, A_v_cache, A_wq, A_wo, B_x, B_k_cache, B_v_cache, B_wq, B_wo):
    def _A_ref(x, k_cache, v_cache, wq, wo):
        B, Sq, D = x.shape
        H, Dh = 32, 128
        q = (lambda x, *d: x.permute(*d))((x @ wq).reshape(B, Sq, H, Dh), 0, 2, 1, 3)
        scores = torch.einsum("bhqd,bhkd->bhqk", q, k_cache) * (Dh ** -0.5)
        p = _softmax(scores, axis=-1)
        o = torch.einsum("bhqk,bhkd->bhqd", p, v_cache)
        return (lambda x, *d: x.permute(*d))(o, 0, 2, 1, 3).reshape(B, Sq, H * Dh) @ wo

    def _B_ref(x, k_cache, v_cache, wq, wo):
        B, Sq, D = x.shape
        Hq, Dh = 32, 128
        Hkv = k_cache.shape[1]
        rep = Hq // Hkv
        q = (lambda x, *d: x.permute(*d))((x @ wq).reshape(B, Sq, Hq, Dh), 0, 2, 1, 3)
        k = (lambda x, n, axis: torch.repeat_interleave(x, n, dim=axis))(k_cache, rep, axis=1)
        v = (lambda x, n, axis: torch.repeat_interleave(x, n, dim=axis))(v_cache, rep, axis=1)
        scores = torch.einsum("bhqd,bhkd->bhqk", q, k) * (Dh ** -0.5)
        p = _softmax(scores, axis=-1)
        o = torch.einsum("bhqk,bhkd->bhqd", p, v)
        return (lambda x, *d: x.permute(*d))(o, 0, 2, 1, 3).reshape(B, Sq, Hq * Dh) @ wo

    a = _A_ref(A_x, A_k_cache, A_v_cache, A_wq, A_wo)
    b = _B_ref(B_x, B_k_cache, B_v_cache, B_wq, B_wo)
    return torch.concatenate([a, b], axis=-1)
```

```python
import re

RTOK = re.compile(r'-?\|?\b([vas])\[(\d+):(\d+)\]|\b([vas])(\d+)\b|\b(m0|vcc|exec|scc)\b')
TRANS = ('v_exp_f32', 'v_log_f32', 'v_rcp_f32', 'v_rsq_f32', 'v_sqrt_f32', 'v_sin_f32', 'v_cos_f32', 'v_rcp_iflag_f32')


def regs(op):
    out = []
    for m in RTOK.finditer(op):
        if m.group(1):
            out += [(m.group(1), i) for i in range(int(m.group(2)), int(m.group(3)) + 1)]
        elif m.group(4):
            out.append((m.group(4), int(m.group(5))))
        else:
            nm = m.group(6)
            if nm == 'vcc':
                out += [('vcc', 0)]
            else:
                out.append((nm, 0))
    return out


class I:
    __slots__ = ('txt', 'mn', 'kind', 'rd', 'wr', 'srcc', 'tag', 'need', 'ops', 'nst', 'meta')

    def __init__(self, txt, tag=None, need=None, meta=None):
        self.txt = txt
        self.tag = tag
        self.need = need
        self.meta = meta
        self.srcc = []
        self.nst = 1
        t = txt.split(';')[0].strip()
        parts = t.split(None, 1)
        mn = parts[0] if parts else ''
        self.mn = mn
        rest = parts[1] if len(parts) > 1 else ''
        ops = [o.strip() for o in rest.split(',')] if rest else []
        self.ops = ops
        rd, wr = [], []
        if mn.endswith(':') or mn.startswith('.') or mn == '':
            self.kind = 'label'
            self.nst = 0
        elif mn == 'PSEUDO':
            self.kind = 'pseudo'
            self.nst = 0
        elif mn.startswith('v_mfma'):
            self.kind = 'mfma'
            wr = regs(ops[0])
            rd = regs(ops[1]) + regs(ops[2])
            self.srcc = regs(ops[3])
        elif mn.startswith('ds_read') or mn.startswith('ds_bpermute') or mn.startswith('ds_swizzle'):
            self.kind = 'ds'
            wr = regs(ops[0])
            rd = sum((regs(o) for o in ops[1:]), [])
        elif mn.startswith('ds_write'):
            self.kind = 'ds'
            rd = sum((regs(o) for o in ops), [])
        elif mn.startswith('buffer_load'):
            if re.search(r'\blds\b', rest):
                self.kind = 'dma'
                rd = sum((regs(o) for o in ops), []) + [('m0', 0)]
            else:
                self.kind = 'vmem'
                wr = regs(ops[0])
                rd = sum((regs(o) for o in ops[1:]), [])
        elif mn.startswith('buffer_store') or mn.startswith('buffer_atomic') or mn.startswith('buffer_wbl2') or mn.startswith('buffer_inv'):
            self.kind = 'vmem'
            rd = sum((regs(o) for o in ops), [])
            if mn.startswith('buffer_atomic') and 'sc0' in rest:
                wr = regs(ops[0])
        elif mn.startswith('s_load') or mn.startswith('s_memtime') or mn.startswith('s_memrealtime'):
            self.kind = 'smem'
            wr = regs(ops[0])
            rd = sum((regs(o) for o in ops[1:]), [])
        elif mn.startswith('v_'):
            self.kind = 'trans' if mn.replace('_e32', '').replace('_e64', '') in TRANS else 'valu'
            if mn.startswith('v_cmp'):
                wr = regs(ops[0])
                rd = sum((regs(o) for o in ops[1:]), [])
            elif mn.startswith('v_permlane') and 'swap' in mn:
                wr = regs(ops[0]) + regs(ops[1])
                rd = list(wr)
            elif mn.startswith('v_add_co') or mn.startswith('v_addc_co') or mn.startswith('v_sub_co'):
                wr = regs(ops[0]) + regs(ops[1])
                rd = sum((regs(o) for o in ops[2:]), [])
            elif mn.startswith('v_fmac') or mn.startswith('v_pk_fmac'):
                wr = regs(ops[0])
                rd = sum((regs(o) for o in ops), [])
            else:
                wr = regs(ops[0])
                rd = sum((regs(o) for o in ops[1:]), [])
                if mn.startswith('v_cndmask') and len(ops) == 3:
                    rd.append(('vcc', 0))
        elif mn.startswith('s_'):
            if mn == 's_nop':
                self.kind = 'nop'
                self.nst = int(ops[0], 0) + 1
            elif mn == 's_waitcnt':
                self.kind = 'wait'
            elif mn == 's_barrier':
                self.kind = 'bar'
            elif mn.startswith('s_cmp') or mn.startswith('s_bitcmp'):
                self.kind = 'salu'
                rd = sum((regs(o) for o in ops), [])
                wr = [('scc', 0)]
            elif mn.startswith('s_cbranch') or mn in ('s_branch', 's_endpgm', 's_setprio', 's_sleep', 's_sethalt'):
                self.kind = 'salu'
                if 'scc' in mn:
                    rd = [('scc', 0)]
                if 'vcc' in mn:
                    rd = [('vcc', 0)]
                if 'exec' in mn:
                    rd = [('exec', 0)]
            else:
                self.kind = 'salu'
                wr = regs(ops[0])
                rd = sum((regs(o) for o in ops[1:]), [])
                if mn.startswith('s_cselect') or mn.startswith('s_addc') or mn.startswith('s_subb'):
                    rd.append(('scc', 0))
                if 'saveexec' in mn:
                    wr = wr + [('exec', 0)]
        else:
            raise ValueError('unknown instr ' + txt)
        self.rd = set(rd)
        self.wr = set(wr)
        self.srcc = set(self.srcc)


def wait_txt(vm=None, lg=None):
    p = []
    if vm is not None:
        p.append(f'vmcnt({vm})')
    if lg is not None:
        p.append(f'lgkmcnt({lg})')
    return 's_waitcnt ' + ' '.join(p)


class Stream:
    def __init__(self):
        self.it = []

    def a(self, txt, tag=None, need=None, meta=None):
        if isinstance(txt, I):
            self.it.append(txt)
            return txt
        i = I(txt, tag, need, meta)
        self.it.append(i)
        return i

    def ext(self, lst):
        for x in lst:
            self.a(x)

    def vmwait(self, pred, note=''):
        i = I('PSEUDO vmwait', meta=('vmwait', pred, note))
        self.it.append(i)
        return i

    def lgwait0(self):
        i = I('PSEUDO lgwait', meta=('lgwait0',))
        self.it.append(i)
        return i

    def mark(self, name, idx):
        i = I('PSEUDO mark', meta=('mark', name, idx))
        self.it.append(i)


def P_vmwait(pred):
    return I('PSEUDO vmwait', meta=('vmwait', pred, ''))


def P_lgwait0():
    return I('PSEUDO lgwait', meta=('lgwait0',))


def P_lgkeep(n):
    return I('PSEUDO lgkeep', meta=('lgkeep', n))


def P_lgwait(pred):
    return I('PSEUDO lgwait', meta=('lgwaitp', pred))


def resolve(items, vmq=None, lgq=None, hoist=True, verbose=False):
    vmq = list(vmq or [])
    lgq = list(lgq or [])
    out = []
    last_mfma_pos = None
    lg_issued_since = 0
    vm_issued_since = 0

    def emit_wait(vm=None, lg=None):
        if out and out[-1].kind == 'wait' and out[-1].meta == 'auto':
            p = out[-1]
            ovm, olg = p.need
            vm = ovm if vm is None else (vm if ovm is None else min(vm, ovm))
            lg = olg if lg is None else (lg if olg is None else min(lg, olg))
            out.pop()
        w = I(wait_txt(vm, lg), meta='auto')
        w.need = (vm, lg)
        out.append(w)

    for ins in items:
        if ins.kind == 'pseudo':
            m = ins.meta
            if m[0] == 'vmwait':
                last = -1
                for k, e in enumerate(vmq):
                    if m[1](e[0]):
                        last = k
                if last >= 0:
                    n = len(vmq) - 1 - last
                    emit_wait(vm=n)
                    vmq = vmq[last + 1:]
            elif m[0] == 'lgwait0':
                if lgq:
                    emit_wait(lg=0)
                    lgq = []
            elif m[0] == 'lgwaitp':
                last = -1
                for k, e in enumerate(lgq):
                    if m[1](e[0]):
                        last = k
                if last >= 0:
                    n = len(lgq) - 1 - last
                    emit_wait(lg=n)
                    lgq = lgq[last + 1:]
            elif m[0] == 'lgkeep':
                if len(lgq) > m[1]:
                    emit_wait(lg=m[1])
                    lgq = lgq[len(lgq) - m[1]:] if m[1] > 0 else []
            else:
                out.append(ins)
            continue
        touch = ins.rd | ins.wr | ins.srcc
        if isinstance(ins.need, set):
            touch = touch | ins.need
        lastl = -1
        for k, e in enumerate(lgq):
            if e[1] & touch:
                lastl = k
        if lastl >= 0:
            n = len(lgq) - 1 - lastl
            done = False
            if hoist and ins.kind == 'mfma' and last_mfma_pos is not None and n >= lg_issued_since:
                nn = n - lg_issued_since
                pos = last_mfma_pos
                if pos < len(out) and out[pos].kind == 'wait' and out[pos].meta == 'auto':
                    ovm, olg = out[pos].need
                    nl = nn if olg is None else min(nn, olg)
                    w = I(wait_txt(ovm, nl), meta='auto')
                    w.need = (ovm, nl)
                    out[pos] = w
                else:
                    w = I(wait_txt(None, nn), meta='auto')
                    w.need = (None, nn)
                    out.insert(pos, w)
                done = True
            if not done:
                emit_wait(lg=n)
            lgq = lgq[lastl + 1:]
        lastv = -1
        for k, e in enumerate(vmq):
            if e[1] & touch:
                lastv = k
        if lastv >= 0:
            n = len(vmq) - 1 - lastv
            emit_wait(vm=n)
            vmq = vmq[lastv + 1:]
        if ins.kind in ('dma', 'vmem') and len(vmq) >= 63:
            emit_wait(vm=62)
            vmq = vmq[len(vmq) - 62:]
        if ins.kind == 'ds' and len(lgq) >= 15:
            emit_wait(lg=14)
            lgq = lgq[len(lgq) - 14:]
        if ins.kind == 'wait' and ins.meta != 'auto':
            mm = re.search(r'vmcnt\((\d+)\)', ins.txt)
            if mm:
                n = int(mm.group(1))
                vmq = vmq[len(vmq) - n:] if n < len(vmq) and n > 0 else ([] if n == 0 else vmq)
            mm = re.search(r'lgkmcnt\((\d+)\)', ins.txt)
            if mm:
                n = int(mm.group(1))
                lgq = lgq[len(lgq) - n:] if n < len(lgq) and n > 0 else ([] if n == 0 else lgq)
        out.append(ins)
        if ins.kind == 'mfma':
            last_mfma_pos = len(out)
            lg_issued_since = 0
            vm_issued_since = 0
        elif ins.kind == 'label':
            pass
        if ins.kind == 'ds':
            lgq.append((ins.tag, set(ins.wr)))
            lg_issued_since += 1
        elif ins.kind == 'smem':
            lgq.append((ins.tag, set(ins.wr)))
            lgq.append((ins.tag, set(ins.wr)))
            lg_issued_since += 2
        elif ins.kind in ('dma', 'vmem'):
            vmq.append((ins.tag, set(ins.wr)))
            vm_issued_since += 1
    return out, vmq, lgq


def check_hazards(items, fix=True, name=''):
    out = []
    nfix = 0

    def dist_back(pred, maxd):
        d = 0
        for p in reversed(out):
            if p.kind == 'label' or p.kind == 'pseudo':
                continue
            if pred(p):
                return d
            d += p.nst
            if d >= maxd:
                return None
        return None

    for ins in items:
        if ins.kind in ('label', 'pseudo'):
            out.append(ins)
            continue
        need = 0
        k = ins.kind
        touch = ins.rd | ins.wr

        def req(pred, n):
            nonlocal need
            d = dist_back(pred, n)
            if d is not None and d < n:
                need = max(need, n - d)

        vr = {r for r in ins.rd if r[0] in 'va' and len(r[0]) == 1}
        vw = {r for r in ins.wr if r[0] in 'va' and len(r[0]) == 1}
        sr = {r for r in ins.rd if r[0] in ('s', 'vcc')}
        if k == 'mfma':
            ab = ins.rd
            req(lambda p: p.kind == 'mfma' and (p.wr & ab), 8)
            req(lambda p: p.kind == 'mfma' and (p.wr & ins.srcc) and p.wr != ins.srcc, 6)
            req(lambda p: p.kind == 'mfma' and (p.wr & ins.wr) and not (p.wr == ins.srcc) and not (p.wr == ins.wr), 6)
            req(lambda p: p.kind in ('valu', 'trans') and (p.wr & (ab | ins.srcc)), 2)
        else:
            if k in ('valu', 'trans', 'ds', 'vmem', 'dma'):
                req(lambda p: p.kind == 'mfma' and (p.wr & (vr | vw)), 8)
            if k in ('valu', 'trans'):
                req(lambda p: p.kind == 'mfma' and (p.srcc & vw), 3)
                if k == 'valu':
                    req(lambda p: p.kind == 'trans' and (p.wr & vr), 1)
                if ins.mn.startswith('v_permlane'):
                    req(lambda p: p.kind in ('valu', 'trans') and (p.wr & vr), 2)
                if ins.mn.startswith('v_readfirstlane') or ins.mn.startswith('v_readlane'):
                    req(lambda p: p.kind in ('valu', 'trans') and (p.wr & vr), 1)
                if sr:
                    req(lambda p: p.kind in ('valu', 'trans') and (p.wr & sr), 2)
                req(lambda p: p.kind == 'vmem' and p.mn.startswith('buffer_store') and ('x4' in p.mn or 'x3' in p.mn) and (p.rd & vw), 2)
                if 'dpp' in ins.txt or 'row_' in ins.txt:
                    req(lambda p: p.kind in ('valu', 'trans') and (p.wr & vr), 2)
            if k in ('vmem', 'dma'):
                if sr:
                    req(lambda p: p.kind in ('valu', 'trans') and (p.wr & sr), 5)
                req(lambda p: p.kind == 'trans' and (p.wr & vr), 1)
            if k == 'ds':
                req(lambda p: p.kind == 'trans' and (p.wr & vr), 1)
            if k == 'dma':
                req(lambda p: p.kind == 'salu' and ('m0', 0) in p.wr, 1)
            if k == 'salu' and sr:
                req(lambda p: p.kind in ('valu', 'trans') and (p.wr & sr), 4)
        if need:
            nfix += 1
            if fix:
                n = need
                while n > 0:
                    c = min(n, 16)
                    out.append(I(f's_nop {c - 1}', meta='hazfix'))
                    n -= c
            print(f'[hazard {name}] need {need} before: {ins.txt}')
        out.append(ins)
    return out, nfix


SCCW = re.compile(r's_(add|sub|cmp|and|or|xor|lshl|lshr|ashr|min|max|bfe|not|andn2|orn2|bitcmp|abs|addc|subb|addk)')


def check_scc(items, name=''):
    last = None
    ok = True
    for ins in items:
        if ins.kind in ('label', 'pseudo'):
            continue
        if ins.mn.startswith('s_cselect') or ins.mn.startswith('s_cbranch_scc'):
            if last is not None and not last.mn.startswith('s_cmp'):
                print(f'[SCC {name}] {ins.txt}  <- last writer {last.txt}')
                ok = False
        if ins.mn.startswith('s_addc') and (last is None or not last.mn.startswith('s_add_u32')):
            print(f'[SCC {name}] {ins.txt} <- {last.txt if last else None}')
            ok = False
        if ins.kind == 'salu' and SCCW.match(ins.mn):
            last = ins
    assert ok


def split_marks(items):
    segs = []
    cur = ('', -1, [])
    for ins in items:
        if ins.kind == 'pseudo' and ins.meta[0] == 'mark':
            segs.append(cur)
            cur = (ins.meta[1], ins.meta[2], [])
        else:
            cur[2].append(ins)
    segs.append(cur)
    return segs


def text(items):
    return [i.txt for i in items if i.kind != 'pseudo']


def fold_loops(items, loops):
    segs = split_marks(items)
    out = []
    done = set()
    for (name, idx, its) in segs:
        if name in loops and loops[name][0] <= idx <= loops[name][1]:
            first, last, label, cnt = loops[name]
            grp = [s for s in segs if s[0] == name and first <= s[1] <= last]
            t0 = text(grp[0][2])
            if idx == first:
                for g in grp[1:]:
                    t = text(g[2])
                    if t != t0:
                        for a, b in zip(t0, t):
                            if a != b:
                                print(f'loop {name}: iter {grp[0][1]} vs {g[1]} differ:\n   {a}\n   {b}')
                                break
                        if len(t) != len(t0):
                            print(f'loop {name}: length differs {len(t0)} vs {len(t)} (iter {g[1]})')
                        raise SystemExit('loop folding failed')
                n = len(grp)
                out.append(f's_mov_b32 {cnt}, {n}')
                out.append(f'{label}:')
                out += t0
                out.append(f's_cbranch_scc1 {label}')
        else:
            out += text(its)
    return out
```

```python
import re
from asmlib import *

MF = 'v_mfma_f32_16x16x32_bf16'


def R(cls, base, n=1):
    return f'{cls}{base}' if n == 1 else f'{cls}[{base}:{base + n - 1}]'


WPART = 17408
SLOT2 = WPART + 16384
RING = 4
NSTG = 64

SRD_O, SRD_W, SRD_C = 's[8:11]', 's[12:15]', 's[16:19]'
sW = 's3'
sDS, sWM, sOM, sWOFF, sOOFF, sRD, sCNT, sTMP, sNXT = ['s%d' % i for i in range(28, 37)]
sW4352, sW4096 = 's37', 's38'
vLANE = 1
vWD = 2
vOD = 6
vAL0, vAL1, vBL = 8, 9, 10
vA0, vA1, vB = 11, 12, 13
vST = 14
vFA = 32
vFB = 64
vACC = 96


def kernel2(OPT):
    S = Stream()
    A = S.a
    A('s_cmp_ge_u32 s2, 240')
    A('s_cbranch_scc1 L_end2')
    A('s_load_dwordx2 s[44:45], s[0:1], 32')
    A('s_load_dwordx2 s[46:47], s[0:1], 72')
    A('s_load_dwordx2 s[48:49], s[0:1], 80')
    A('s_load_dwordx2 s[50:51], s[0:1], 96')
    A('s_and_b32 s4, s2, 7')
    A('s_lshr_b32 s5, s2, 3')
    A('s_lshr_b32 s6, s4, 2')
    A('s_bfe_u32 s7, s4, 0x10001')
    A('s_mul_i32 s7, s7, 30')
    A('s_add_u32 s7, s7, s5')
    A('s_lshr_b32 s20, s7, 2')
    A('s_and_b32 s21, s7, 3')
    A('s_and_b32 s22, s4, 1')
    A('s_lshl_b32 s22, s22, 2')
    A('s_add_u32 s21, s21, s22')
    A(f'v_and_b32 v{vLANE}, 63, v0')
    A('v_lshrrev_b32 v27, 6, v0')
    A('s_nop 0')
    A(f'v_readfirstlane_b32 {sW}, v27')
    A('s_waitcnt lgkmcnt(0)')
    A('s_cmp_eq_u32 s6, 0')
    A('s_cselect_b64 s[44:45], s[44:45], s[46:47]')
    A('s_mul_i32 s28, s6, 120'); A('s_lshl_b32 s29, s20, 3'); A('s_add_u32 s28, s28, s29'); A('s_lshl_b32 s28, s28, 17')
    A('s_add_u32 s8, s50, s28'); A('s_addc_u32 s9, s51, 0'); A('s_mov_b32 s10, 0x100000'); A('s_mov_b32 s11, 0x20000')
    A('s_lshl_b32 s28, s21, 8')
    A('s_add_u32 s12, s44, s28'); A('s_addc_u32 s13, s45, 0'); A('s_sub_u32 s14, 8388608, s28'); A('s_mov_b32 s15, 0x20000')
    A('s_lshl_b32 s29, s20, 19'); A('s_lshl_b32 s30, s6, 11'); A('s_add_u32 s29, s29, s30'); A('s_add_u32 s29, s29, s28')
    A('s_add_u32 s16, s48, s29'); A('s_addc_u32 s17, s49, 0'); A(f's_sub_u32 s18, {1920 * 4096}, s29'); A('s_mov_b32 s19, 0x20000')
    A(f'v_lshrrev_b32 v27, 4, v{vLANE}')
    A(f'v_and_b32 v28, 15, v{vLANE}')
    A('v_lshrrev_b32 v29, 2, v28')
    A('v_and_b32 v30, 3, v28')
    A('v_and_b32 v31, 1, v27')
    A('v_lshlrev_b32 v31, 1, v31')
    A('v_xor_b32 v31, v28, v31')
    A('v_lshlrev_b32 v31, 4, v31')
    A(f'v_lshl_add_u32 v{vWD}, v27, 13, v31')
    A(f's_lshl_b32 s28, {sW}, 15')
    A(f'v_add_u32 v{vWD}, s28, v{vWD}')
    for r in range(1, 4):
        A(f'v_add_u32 v{vWD + r}, {2048 * r}, v{vWD}')
    A(f's_lshl_b32 s28, {sW}, 18')
    A(f'v_lshlrev_b32 v{vOD}, 4, v{vLANE}')
    A(f'v_add_u32 v{vOD}, s28, v{vOD}')
    A(f'v_add_u32 v{vOD + 1}, 131072, v{vOD}')
    A(f'v_mul_u32_u24 v{vAL0}, 1088, v29')
    A(f'v_lshl_add_u32 v{vAL0}, v27, 8, v{vAL0}')
    A(f'v_lshl_add_u32 v{vAL0}, v30, 3, v{vAL0}')
    A(f's_and_b32 s28, {sW}, 1'); A('s_lshl_b32 s28, s28, 7')
    A(f'v_add_u32 v{vAL0}, s28, v{vAL0}')
    A('v_and_b32 v31, 1, v27')
    A('v_lshlrev_b32 v31, 5, v31')
    A(f'v_sub_u32 v{vAL1}, v{vAL0}, v31')
    A(f'v_add_u32 v{vAL0}, v{vAL0}, v31')
    A(f's_lshr_b32 s28, {sW}, 1'); A('s_lshl_b32 s29, s28, 13'); A(f's_add_u32 s29, s29, {WPART}')
    A(f'v_lshlrev_b32 v{vBL}, 4, v{vLANE}')
    A(f'v_add_u32 v{vBL}, s29, v{vBL}')
    A('s_lshl_b32 s28, s28, 18')
    A(f'v_lshlrev_b32 v{vST}, 12, v28')
    A(f'v_lshl_add_u32 v{vST}, v27, 3, v{vST}')
    A(f's_and_b32 s29, {sW}, 1'); A('s_lshl_b32 s29, s29, 7'); A('s_add_u32 s28, s28, s29')
    A(f'v_add_u32 v{vST}, s28, v{vST}')
    A(f's_mul_i32 {sW4352}, {sW}, 4352')
    A(f's_lshl_b32 {sW4096}, {sW}, 12'); A(f's_add_u32 {sW4096}, {sW4096}, {WPART}')

    def dma(s):
        out = []
        for rho in range(4):
            out.append((I(f's_add_u32 m0, {sWM}, {rho * 1088}'),
                        I(f'buffer_load_dwordx4 v{vWD + rho}, {SRD_W}, {sWOFF} offen lds', tag=('D', s))))
        for x in range(2):
            for ks in range(2):
                out.append((I(f's_add_u32 m0, {sOM}, {x * 2048}'),
                            I(f'buffer_load_dwordx4 v{vOD + x}, {SRD_O}, {sOOFF} offen offset:{ks * 1024} lds', tag=('D', s))))
        return out

    def set_dslot(base):
        return [I(f's_add_u32 {sWM}, {sW4352}, {base}'), I(f's_add_u32 {sOM}, {sW4096}, {base}')]

    def a_read(s, ks, nb, e):
        off = (2 * ks + e) * 4352 + 32 * nb
        d = vFA + 16 * ks + 4 * nb + 2 * e
        return I(f'ds_read_b64_tr_b16 {R("v", d, 2)}, v{vA0 if nb % 2 == 0 else vA1} offset:{off}', tag=('r', s, ks))

    def b_read(s, ks, mi):
        off = mi * 2048 + ks * 1024
        d = vFB + 16 * ks + 4 * mi
        return I(f'ds_read_b128 {R("v", d, 4)}, v{vB} offset:{off}', tag=('r', s, ks))

    def reads(s, ks):
        return [a_read(s, ks, 0, 0), a_read(s, ks, 0, 1), b_read(s, ks, 0), b_read(s, ks, 1), b_read(s, ks, 2), b_read(s, ks, 3),
                a_read(s, ks, 1, 0), a_read(s, ks, 1, 1), a_read(s, ks, 2, 0), a_read(s, ks, 2, 1), a_read(s, ks, 3, 0), a_read(s, ks, 3, 1)]

    for s in range(RING):
        S.ext(set_dslot(s * SLOT2))
        A(f's_mov_b32 {sWOFF}, {s * 131072}')
        A(f's_mov_b32 {sOOFF}, {s * 2048}')
        for m, d in dma(s):
            A(m); A('s_nop 0'); A(d)
    A(f's_mov_b32 {sWOFF}, {RING * 131072}')
    A(f's_mov_b32 {sOOFF}, {RING * 2048}')
    A(f's_mov_b32 {sRD}, 0')
    A(f'v_mov_b32 v{vA0}, v{vAL0}'); A(f'v_mov_b32 v{vA1}, v{vAL1}'); A(f'v_mov_b32 v{vB}, v{vBL}')
    for r in range(64):
        A(f'v_mov_b32 v{vACC + r}, 0')
    S.vmwait(lambda t: t == ('D', 0))
    A('s_barrier')
    S.ext(reads(0, 0))

    for s in range(NSTG):
        S.mark('st', s)
        for ks in range(2):
            ms, gaps = [], [[] for _ in range(16)]
            for nb in range(4):
                for mi in range(4):
                    d = R('v', vACC + 16 * nb + 4 * mi, 4)
                    ms.append(I(f'{MF} {d}, {R("v", vFA + 16 * ks + 4 * nb, 4)}, {R("v", vFB + 16 * ks + 4 * mi, 4)}, {d}'))
            if ks == 0:
                rd = reads(s, 1)
                for k, r in enumerate(rd):
                    gaps[k].append(r)
                if s + 1 < NSTG:
                    gaps[12].insert(0, I(f's_add_u32 {sTMP}, {sRD}, {SLOT2}'))
                    gaps[13].insert(0, I(f's_cmp_eq_u32 {sTMP}, {RING * SLOT2}'))
                    gaps[14].insert(0, I(f's_cselect_b32 {sNXT}, 0, {sTMP}'))
                    gaps[15] += [P_vmwait(lambda t, s=s: t == ('D', s + 1)), P_lgwait0(), I('s_barrier'),
                                 I(f'v_add_u32 v{vA0}, {sNXT}, v{vAL0}'), I(f'v_add_u32 v{vA1}, {sNXT}, v{vAL1}'),
                                 I(f'v_add_u32 v{vB}, {sNXT}, v{vBL}')]
            else:
                if s + 1 < NSTG:
                    rd = reads(s + 1, 0)
                    pos = [0, 1, 2, 4, 5, 6, 8, 9, 10, 12, 13, 14]
                    for r, g in zip(rd, pos):
                        gaps[g].append(r)
                    if s + RING < NSTG:
                        sd = set_dslot(0)
                        gaps[0].insert(0, I(f's_add_u32 {sWM}, {sRD}, {sW4352}'))
                        gaps[1].insert(0, I(f's_add_u32 {sOM}, {sRD}, {sW4096}'))
                        dl = dma(s + RING)
                        dpos = [3, 5, 7, 9, 11, 13, 15]
                        for k, (m, d) in enumerate(dl[:7]):
                            g = dpos[k]
                            gaps[g - 1].insert(0, m)
                            gaps[g].append(d)
                        m, d = dl[7]
                        gaps[15] += [m, I('s_nop 0'), d]
                        gaps[15] += [I(f's_add_u32 {sWOFF}, {sWOFF}, 131072'), I(f's_add_u32 {sOOFF}, {sOOFF}, 2048')]
                    gaps[15] += [I(f's_mov_b32 {sRD}, {sNXT}'), I(f's_sub_u32 {sCNT}, {sCNT}, 1'), I(f's_cmp_lg_u32 {sCNT}, 0')]
            for k in range(16):
                A(ms[k])
                S.ext(gaps[k])
    S.mark('end', 0)
    A('s_nop 7')
    for mi in range(4):
        A(f's_mov_b32 {sTMP}, {mi * 65536}')
        for nb in range(4):
            d = vACC + 16 * nb + 4 * mi
            st = 16 + 2 * ((mi * 4 + nb) % 4)
            A(f'v_cvt_pk_bf16_f32 v{st}, v{d}, v{d + 1}')
            A(f'v_cvt_pk_bf16_f32 v{st + 1}, v{d + 2}, v{d + 3}')
            A(f'buffer_store_dwordx2 {R("v", st, 2)}, v{vST}, {SRD_C}, {sTMP} offen offset:{32 * nb}')
    A('L_end2:')
    A('s_endpgm')
    items, vmq, lgq = resolve(S.it)
    items, nfix = check_hazards(items, True, 'k2')
    check_scc(items, 'k2')
    segs = split_marks(items)
    out = []
    grp = [s for s in segs if s[0] == 'st']
    i = 0
    res = []
    texts = [text(g[2]) for g in grp]
    best = (0, 0)
    a = 0
    while a < len(texts):
        b = a
        while b + 1 < len(texts) and texts[b + 1] == texts[a]:
            b += 1
        if b - a > best[1] - best[0]:
            best = (a, b)
        a = b + 1
    print('k2 loop: stages', best)
    for (name, idx, its) in segs:
        if name == 'st' and best[0] <= idx <= best[1]:
            if idx == best[0]:
                out += [f's_mov_b32 {sCNT}, {best[1] - best[0] + 1}', 'L_k2:'] + text(its) + ['s_cbranch_scc1 L_k2']
        else:
            out += text(its)
    return out
```

```python
import sys, os, re
sys.path.insert(0, os.path.dirname(os.path.abspath(__file__)))
from asmlib import *

KN = "concat_heads__mha_block_cached__gqa_block_cached__near_ridge_kernel"
K2 = "outproj_kernel"

OPT = dict(
    dump=None,
    stamps=False,
    kvflags='nt',
    only_k1=False,
)

MF = 'v_mfma_f32_16x16x32_bf16'


def R(cls, base, n=1):
    return f'{cls}{base}' if n == 1 else f'{cls}[{base}:{base + n - 1}]'


def mfma(d, a, b, c):
    return I(f'{MF} {d}, {a}, {b}, {c}')


SLOT = 17408
XW_PAR = 24576
X3_BASE = 139264
X3_PAR = 6144
WBEG = 3 * SLOT
WEND = 8 * SLOT
FLAG_ADDR = 163832
NRING = 8
DIST = 5

sW = 's3'
SRD_X, SRD_W, SRD_K, SRD_V, SRD_O = 's[8:11]', 's[12:15]', 's[16:19]', 's[20:23]', 's[24:27]'
sWRD, sWDMA, sWSOFF, sXSOFF, sCNT, sW4352, sXD0, sXD1, sNXT, sTMP = ['s%d' % i for i in range(28, 38)]
sDSLOT, sKOFF, sKOFF2, sRBASE, sFB, sOOFF, sT2 = ['s%d' % i for i in range(38, 45)]
sBAD = 's[46:47]'
sST = 70

vLANE = 1
vWD = 2
vXD = 6
vWL, vWA, vXA0, vXA1 = 14, 15, 16, 17
vKL, vVL0, vVL1, vKA, vVA0, vVA1, vKD, vVD, vOST = 18, 19, 20, 21, 22, 23, 24, 25, 26
vT = 27
vKPRE = 32
vS = 64
vP = 80
vL = 88
vNEG = 96
vM2 = 112
vLT = 116
vE = 120
vACC = 128
aQ = 0
aX = 128
aWF = 192
aK = 128
aV = 192

QSCALE = 0x3e0293ee
import struct, math
QSCALE = struct.unpack('<I', struct.pack('<f', math.log2(math.e) / math.sqrt(128.0)))[0]
LTHRESH = struct.unpack('<I', struct.pack('<f', 2.0 ** 30))[0]


def acc(hh, dt, qb):
    return R('v', vACC + 32 * qb + 4 * dt, 4) if hh == 0 else R('a', 32 * qb + 4 * dt, 4)


def stamp(S, k):
    if OPT['stamps']:
        S.a(f's_memtime s[{sST + 2 * k}:{sST + 2 * k + 1}]')
        S.a('s_waitcnt lgkmcnt(0)')


def k1_setup(S):
    A = S.a
    A('s_cmp_ge_u32 s2, 256')
    A('s_cbranch_scc1 L_end1')
    A('s_load_dwordx8 s[44:51], s[0:1], 0')
    A('s_load_dwordx8 s[56:63], s[0:1], 40')
    A('s_load_dwordx2 s[64:65], s[0:1], 96')
    if OPT['stamps']:
        A('s_load_dwordx2 s[66:67], s[0:1], 88')
    A('s_and_b32 s4, s2, 7')
    A('s_lshr_b32 s5, s2, 3')
    A('s_lshr_b32 s6, s4, 2')
    A('s_bfe_u32 s7, s4, 0x10001')
    A('s_lshl_b32 s7, s7, 2')
    A('s_and_b32 s28, s5, 3')
    A('s_add_u32 s7, s7, s28')
    A('s_and_b32 s28, s4, 1')
    A('s_lshl_b32 s28, s28, 3')
    A('s_lshr_b32 s29, s5, 2')
    A('s_add_u32 s68, s28, s29')
    A(f'v_and_b32 v{vLANE}, 63, v0')
    A('v_lshrrev_b32 v27, 6, v0')
    A('s_nop 0')
    A(f'v_readfirstlane_b32 {sW}, v27')
    A('s_waitcnt lgkmcnt(0)')
    stamp(S, 0)
    A('s_cmp_eq_u32 s6, 0')
    A('s_cselect_b64 s[44:45], s[44:45], s[56:57]')
    A('s_cselect_b64 s[46:47], s[46:47], s[58:59]')
    A('s_cselect_b64 s[48:49], s[48:49], s[60:61]')
    A('s_cselect_b64 s[50:51], s[50:51], s[62:63]')
    A('s_mul_i32 s28, s7, 491520')
    A('s_add_u32 s8, s44, s28'); A('s_addc_u32 s9, s45, 0')
    A('s_mov_b32 s10, 491520'); A('s_mov_b32 s11, 0x20000')
    A('s_lshl_b32 s28, s68, 9')
    A('s_add_u32 s12, s50, s28'); A('s_addc_u32 s13, s51, 0')
    A('s_sub_u32 s14, 8388608, s28'); A('s_mov_b32 s15, 0x20000')
    A('s_lshl_b32 s28, s7, 5'); A('s_lshl_b32 s29, s68, 1'); A('s_add_u32 s28, s28, s29')
    A('s_lshl_b32 s28, s28, 18')
    A('s_add_u32 s16, s46, s28'); A('s_addc_u32 s17, s47, 0')
    A('s_mov_b32 s18, 524288'); A('s_mov_b32 s19, 0x20000')
    A('s_add_u32 s20, s48, s28'); A('s_addc_u32 s21, s49, 0')
    A('s_mov_b32 s22, 524288'); A('s_mov_b32 s23, 0x20000')
    A('s_mul_i32 s28, s6, 120'); A('s_mul_i32 s29, s7, 15'); A('s_add_u32 s28, s28, s29')
    A('s_lshl_b32 s28, s28, 17')
    A('s_lshl_b32 s29, s68, 13')
    A('s_add_u32 s28, s28, s29')
    A('s_add_u32 s24, s64, s28'); A('s_addc_u32 s25, s65, 0')
    A(f's_sub_u32 s26, {15 * 131072}, s29'); A('s_mov_b32 s27, 0x20000')
    A(f'v_lshrrev_b32 v27, 4, v{vLANE}')
    A(f'v_and_b32 v28, 15, v{vLANE}')
    A('v_lshrrev_b32 v29, 2, v28')
    A('v_and_b32 v30, 3, v28')
    A(f's_lshl_b32 s28, {sW}, 17')
    A(f'v_lshlrev_b32 v{vWD}, 15, v27')
    A(f'v_lshl_add_u32 v{vWD}, v28, 4, v{vWD}')
    A(f'v_add_u32 v{vWD}, s28, v{vWD}')
    for r in range(1, 4):
        A(f'v_add_u32 v{vWD + r}, {8192 * r}, v{vWD}')
    A(f'v_lshrrev_b32 v31, 3, v{vLANE}')
    A(f's_lshl_b32 s28, {sW}, 6')
    A('v_add_u32 v31, s28, v31')
    A('v_lshlrev_b32 v31, 11, v31')
    A(f'v_and_b32 v{vXD + 2}, 7, v{vLANE}')
    A(f'v_xor_b32 v{vXD + 2}, v{vXD + 2}, v27')
    A(f'v_xor_b32 v{vXD + 3}, 4, v{vXD + 2}')
    A(f'v_lshl_add_u32 v{vXD}, v{vXD + 2}, 4, v31')
    A(f'v_lshl_add_u32 v{vXD + 1}, v{vXD + 3}, 4, v31')
    A(f'v_add_u32 v{vXD + 1}, 16384, v{vXD + 1}')
    for i in range(2, 8):
        A(f'v_add_u32 v{vXD + i}, {16384 * (i - (i & 1))}, v{vXD + (i & 1)}')
    A('v_lshrrev_b32 v31, 1, v27')
    A('v_lshl_add_u32 v31, v31, 2, v29')
    A(f'v_mul_u32_u24 v{vWL}, 1088, v31')
    A('v_and_b32 v31, 1, v27')
    A(f'v_lshl_add_u32 v{vWL}, v31, 9, v{vWL}')
    A(f'v_lshl_add_u32 v{vWL}, v30, 4, v{vWL}')
    A('v_lshrrev_b32 v31, 1, v28')
    A('v_xor_b32 v31, v31, v27')
    A('v_lshlrev_b32 v31, 4, v31')
    A(f'v_lshl_add_u32 v{vXA0}, v28, 7, v31')
    A(f'v_mul_u32_u24 v{vKL}, 1088, v29')
    A(f'v_lshl_add_u32 v{vKL}, v30, 8, v{vKL}')
    A('v_xor_b32 v31, v27, v30')
    A(f'v_lshl_add_u32 v{vKL}, v31, 4, v{vKL}')
    A(f'v_mul_u32_u24 v{vVL0}, 1088, v29')
    A(f'v_lshl_add_u32 v{vVL0}, v27, 8, v{vVL0}')
    A(f'v_lshl_add_u32 v{vVL0}, v30, 3, v{vVL0}')
    A('v_and_b32 v31, 1, v27')
    A('v_lshlrev_b32 v31, 5, v31')
    A(f'v_sub_u32 v{vVL1}, v{vVL0}, v31')
    A(f'v_add_u32 v{vVL0}, v{vVL0}, v31')
    A('v_xor_b32 v31, v28, v27')
    A('v_lshlrev_b32 v31, 4, v31')
    A(f'v_lshl_add_u32 v{vKD}, v27, 8, v31')
    A('v_and_b32 v31, 1, v27')
    A('v_lshlrev_b32 v31, 1, v31')
    A('v_xor_b32 v31, v28, v31')
    A('v_lshlrev_b32 v31, 4, v31')
    A(f'v_lshl_add_u32 v{vVD}, v27, 10, v31')
    A(f's_lshl_b32 s28, {sW}, 19')
    A(f'v_lshlrev_b32 v{vOST}, 4, v{vLANE}')
    A(f'v_add_u32 v{vOST}, s28, v{vOST}')
    A('v_lshlrev_b32 v31, 8, v28')
    A('v_lshl_add_u32 v31, v27, 4, v31')
    A(f's_mul_i32 {sW4352}, {sW}, 4352')
    A(f's_mov_b32 {sFB}, 0')
    A(f's_mov_b64 {sBAD}, 0')
    A('v_mov_b32 v27, 0')
    A(f'v_mov_b32 v28, {FLAG_ADDR}')
    A('ds_write_b32 v28, v27')
    A(f's_cmp_eq_u32 {sW}, 3')
    A('s_cbranch_scc1 L_w3')


def w_dma(h, rho):
    return (I(f's_add_u32 m0, {sWDMA}, {rho * 1088}'),
            I(f'buffer_load_dwordx4 v{vWD + rho}, {SRD_W}, {sWSOFF} offen lds', tag=('W', h)))


def x_dma(s, i):
    xs = sXD0 if s % 2 == 0 else sXD1
    return (I(f's_add_u32 m0, {xs}, {i * 1024}'),
            I(f'buffer_load_dwordx4 v{vXD + i}, {SRD_X}, {sXSOFF} offen lds', tag=('X', s)))


def w_read(h, dt, ks, e):
    t, u = dt >> 1, dt & 1
    off = ks * 8704 + e * 256 + 64 * t + 8 * u
    d = aWF + 8 * (dt % 4) + 4 * ks + 2 * e
    return I(f'ds_read_b64_tr_b16 {R("a", d, 2)}, v{vWA} offset:{off}', tag=('Wr', h))


def x_read(nqb, s, qb, ks):
    par = s % 2
    off = par * (XW_PAR if nqb == 4 else X3_PAR) + qb * 2048
    d = aX + 32 * par + 8 * qb + 4 * ks
    return I(f'ds_read_b128 {R("a", d, 4)}, v{vXA0 if ks == 0 else vXA1} offset:{off}', tag=('Xr', s))


def qproj(S, nqb, pre):
    A = S.a
    G = 2 * nqb
    nx = 2 * nqb
    if nqb == 4:
        A(f's_lshl_b32 {sXD0}, {sW}, 13')
        A(f's_add_u32 {sXD1}, {sXD0}, {XW_PAR}')
        A(f'v_add_u32 v{vXA0}, {sXD0}, v{vXA0}')
    else:
        A(f's_mov_b32 {sXD0}, {X3_BASE}')
        A(f's_mov_b32 {sXD1}, {X3_BASE + X3_PAR}')
        A(f'v_add_u32 v{vXA0}, {X3_BASE}, v{vXA0}')
    A(f'v_xor_b32 v{vXA1}, 64, v{vXA0}')
    def wslot(h):
        return WBEG + (h % 5) * SLOT
    def pro_w(h):
        A(f's_add_u32 {sWDMA}, {sW4352}, {wslot(h)}')
        A(f's_mov_b32 {sWSOFF}, {(h // 2) * 524288 + (h % 2) * 256}')
        for rho in range(4):
            m, d = w_dma(h, rho)
            A(m); A('s_nop 0'); A(d)
    def pro_x(s):
        A(f's_mov_b32 {sXSOFF}, {s * 128}')
        for i in range(nx):
            m, d = x_dma(s, i)
            A(m); A('s_nop 0'); A(d)
    pro_w(0); pro_x(0); pro_w(1); pro_w(2); pro_x(1); pro_w(3)
    for hh in range(2):
        A(f's_mov_b32 {sTMP}, {hh * 262144}')
        for t in range(4):
            A(f'buffer_load_dwordx4 {R("v", vKPRE + 16 * hh + 4 * t, 4)}, v31, {SRD_K}, {sTMP} offen offset:{64 * t}', tag=('KP', hh))
    A(f's_add_u32 {sWDMA}, {sW4352}, {wslot(4)}')
    A(f's_mov_b32 {sWSOFF}, {2 * 524288}')
    A(f's_mov_b32 {sXSOFF}, 256')
    A(f's_mov_b32 {sWRD}, {wslot(0)}')
    A(f'v_add_u32 v{vWA}, {sWRD}, v{vWL}')
    for qb in range(nqb):
        for r in range(32):
            A(f'v_mov_b32 v{vACC + 32 * qb + r}, 0')
            A(f'v_accvgpr_write_b32 a{32 * qb + r}, 0')
    S.vmwait(lambda t: t in (('W', 0), ('X', 0)))
    A('s_waitcnt lgkmcnt(0)')
    A('s_barrier')
    stamp(S, 1)
    for qb in range(nqb):
        for ks in range(2):
            A(x_read(nqb, 0, qb, ks))
    for dt in range(2):
        for ks in range(2):
            for e in range(2):
                A(w_read(0, dt, ks, e))

    NST = 16
    for s in range(NST):
        if s % 2 == 0:
            S.mark('qp', s // 2)
        for hh in range(2):
            h = 2 * s + hh
            gaps = [[[] for _ in range(G)] for _ in range(8)]
            ms = [[None] * G for _ in range(8)]
            for dt in range(8):
                for qb in range(nqb):
                    for ks in range(2):
                        ms[dt][2 * qb + ks] = mfma(acc(hh, dt, qb), R('a', aWF + 8 * (dt % 4) + 4 * ks, 4),
                                                   R('a', aX + 32 * (s % 2) + 8 * qb + 4 * ks, 4), acc(hh, dt, qb))
                ms[dt][0].need = set(('a', aWF + 8 * (dt % 4) + r) for r in range(8))
                if dt == 0 and hh == 0:
                    ms[dt][0].need |= set(('a', aX + 32 * (s % 2) + r) for r in range(8 * nqb))
                tdt, th = dt + 2, h
                if tdt >= 8:
                    tdt -= 8; th += 1
                if th < 32:
                    k = 0
                    for ks in range(2):
                        for e in range(2):
                            gaps[dt][k].append(w_read(th, tdt, ks, e)); k += 1
            if nqb == 4:
                slots = [(g, gi) for g in range(6) for gi in (4, 6)]
            else:
                slots = [(g, gi) for g in range(6) for gi in (4, 5)]
            dl = []
            if h + 4 < 32:
                dl += [w_dma(h + 4, rho) for rho in range(4)]
            nW = len(dl)
            if hh == 0 and s + 2 < NST:
                dl += [x_dma(s + 2, i) for i in range(nx)]
            for k, (m, d) in enumerate(dl):
                g, gi = slots[k]
                if nqb == 4:
                    gaps[g][gi - 1].insert(0, m)
                    gaps[g][gi].append(d)
                else:
                    if gi == 4:
                        gaps[g][3].insert(0, m)
                    else:
                        gaps[g][4].append(m)
                    gaps[g][gi].append(d)
            if h + 4 < 32:
                inc = 256 if (h % 2 == 0) else (524288 - 256)
                gaps[2][1].insert(0, I(f's_add_u32 {sWSOFF}, {sWSOFF}, {inc}'))
            if hh == 0 and s + 2 < NST:
                gaps[6][5 if nqb == 4 else 4].insert(0, I(f's_add_u32 {sXSOFF}, {sXSOFF}, 128'))
            if hh == 1 and s + 1 < NST:
                xr = [x_read(nqb, s + 1, qb, ks) for qb in range(nqb) for ks in range(2)]
                xs = [(g, gi) for g in range(2, 6) for gi in ((4, 6) if nqb == 4 else (4, 5))]
                gaps[2][3].insert(0, P_vmwait(lambda t, s=s: t == ('X', s + 1)))
                for k, r in enumerate(xr):
                    g, gi = xs[k]
                    gaps[g][gi].append(r)
            if h + 1 < 32:
                gaps[4][0].insert(0, I(f's_add_u32 {sTMP}, {sWRD}, {SLOT}'))
                gaps[4][1].insert(0, I(f's_cmp_eq_u32 {sTMP}, {WEND}'))
                gaps[4][2].insert(0, I(f's_cselect_b32 {sNXT}, {WBEG}, {sTMP}'))
                last = G - 1
                gaps[5][last] += [P_vmwait(lambda t, h=h: t == ('W', h + 1)),
                                  P_lgwait(lambda t, h=h: t == ('Wr', h)),
                                  I('s_barrier'),
                                  I(f'v_add_u32 v{vWA}, {sNXT}, v{vWL}')]
                gaps[6][1].insert(0, I(f's_add_u32 {sWDMA}, {sWRD}, {sW4352}'))
                gaps[6][2].insert(0, I(f's_mov_b32 {sWRD}, {sNXT}'))
            if hh == 1 and s % 2 == 1 and s < 14:
                gaps[7][G - 3].insert(0, I(f's_sub_u32 {sCNT}, {sCNT}, 1'))
                gaps[7][G - 2].insert(0, I(f's_cmp_lg_u32 {sCNT}, 0'))
            for dt in range(8):
                for gi in range(G):
                    A(ms[dt][gi])
                    S.ext(gaps[dt][gi])
    S.mark('qpend', 0)


def q_epilogue(S, nqb):
    A = S.a
    A(f's_mov_b32 s48, {QSCALE:#x}')
    A('s_nop 7')
    t = vS
    for hh in (1, 0):
        for kap in range(4 * nqb - 1, -1, -1):
            qb, tt = kap // 4, kap % 4
            st = t + 8 * (kap % 2)
            if hh == 1:
                for r in range(8):
                    A(f'v_accvgpr_read_b32 v{st + r}, a{8 * kap + r}')
                src = st
            else:
                src = vACC + 8 * kap
            for r in range(0, 8, 2):
                A(f'v_pk_mul_f32 {R("v", st + r, 2)}, {R("v", src + r, 2)}, s[48:49] op_sel_hi:[1,0]')
            for r in range(4):
                A(f'v_cvt_pk_bf16_f32 v{st + r}, v{st + 2 * r}, v{st + 2 * r + 1}')
            for r in range(4):
                A(f'v_accvgpr_write_b32 a{aQ + 64 * hh + 4 * kap + r}, v{st + r}')


def xlane_max_or_add(S, op, regsl, tmpl):
    A = S.a
    for sw in ('v_permlane32_swap_b32', 'v_permlane16_swap_b32'):
        for r, t in zip(regsl, tmpl):
            A(f'v_mov_b32 v{t}, v{r}')
        A('s_nop 1')
        for r, t in zip(regsl, tmpl):
            A(f'{sw} v{r}, v{t}')
        A('s_nop 1')
        for r, t in zip(regsl, tmpl):
            A(f'{op} v{r}, v{r}, v{t}')


def standin(S, nqb):
    A = S.a
    mx = []
    for hh in range(2):
        for qb in range(nqb):
            d = vACC + 4 * (hh * 4 + qb)
            for t in range(4):
                A(mfma(R('v', d, 4), R('v', vKPRE + 16 * hh + 4 * t, 4), R('a', aQ + 64 * hh + 16 * qb + 4 * t, 4),
                       '0' if t == 0 else R('v', d, 4)))
            mx.append(d)
    A('s_nop 7')
    for d in mx:
        A(f'v_max3_f32 v{d}, v{d}, v{d + 1}, v{d + 2}')
    for d in mx:
        A(f'v_max_f32 v{d}, v{d}, v{d + 3}')
    xlane_max_or_add(S, 'v_max_f32', mx, [d + 1 for d in mx])
    set_negm(S, nqb, mx)


def set_negm(S, nqb, mx):
    A = S.a
    for qb in range(nqb):
        for r in range(4):
            A(f'v_sub_f32 v{vNEG + 4 * qb + r}, 0, v{mx[qb]}')
        A(f'v_sub_f32 v{vM2 + qb}, 0, v{mx[nqb + qb]}')


def kv_dma(tau):
    out = []
    fl = OPT['kvflags']
    for j in range(8):
        so = sKOFF if j < 4 else sKOFF2
        ioff = 1024 * (j % 4)
        m0 = (4352 if j >= 4 else 0) + 64 * (j % 4)
        out.append((I(f's_add_u32 m0, {sDSLOT}, {m0}'),
                    I(f'buffer_load_dwordx4 v{vKD}, {SRD_K}, {so} offen offset:{ioff} {fl} lds', tag=('KV', tau))))
    for kb in range(2):
        for rho in range(4):
            so = sKOFF if kb == 0 else sKOFF2
            m0 = 8704 + kb * 4352 + 832 * rho
            out.append((I(f's_add_u32 m0, {sDSLOT}, {m0}'),
                        I(f'buffer_load_dwordx4 v{vVD}, {SRD_V}, {so} offen offset:{256 * rho} {fl} lds', tag=('KV', tau))))
    return out


def kv_advance():
    return [I(f's_add_u32 {sKOFF}, {sKOFF}, 8192'),
            I(f's_add_u32 {sKOFF2}, {sKOFF2}, 8192'),
            I(f's_add_u32 {sDSLOT}, {sDSLOT}, {SLOT}'),
            I(f's_cmp_eq_u32 {sDSLOT}, {NRING * SLOT}'),
            I(f's_cselect_b32 {sDSLOT}, 0, {sDSLOT}')]


def kv_prologue(S, nqb):
    A = S.a
    if nqb == 3:
        A(f's_mov_b32 {sDSLOT}, 0')
        A(f's_mov_b32 {sKOFF}, 0')
        A(f's_mov_b32 {sKOFF2}, 4096')
        for tau in range(DIST - 1):
            for m, d in kv_dma(tau):
                A(m); A('s_nop 0'); A(d)
            S.ext(kv_advance())


def k_read(tau, kb, t):
    off = (tau % 2) * SLOT + kb * 4352 + 64 * t
    d = aK + 32 * (tau % 2) + 16 * kb + 4 * t
    return I(f'ds_read_b128 {R("a", d, 4)}, v{vKA} offset:{off}', tag=('Kr', tau))


def v_read(tau, db, e):
    off = (tau % 2) * SLOT + 8704 + e * 4352 + 32 * db
    d = aV + 32 * (tau % 2) + 4 * db + 2 * e
    return I(f'ds_read_b64_tr_b16 {R("a", d, 2)}, v{vVA0 if db % 2 == 0 else vVA1} offset:{off}', tag=('Vr', tau))


def o_epilogue_items(nqb, hh, qb, packed):
    L = []
    inv = vLT + qb
    so = qb * 131072 + hh * 4096
    L.append(I(f's_mov_b32 {sOOFF}, {so}'))
    for t in range(4):
        st = vE + 4 * (t % 2)
        src = vACC + 32 * qb + 8 * t
        if packed:
            for r in range(0, 8, 2):
                L.append(I(f'v_pk_mul_f32 {R("v", src + r, 2)}, {R("v", src + r, 2)}, {R("v", inv & ~1, 2)} op_sel:[0,{inv & 1}] op_sel_hi:[1,{inv & 1}]'))
        else:
            for r in range(8):
                L.append(I(f'v_mul_f32 v{src + r}, v{src + r}, v{inv}'))
        for r in range(4):
            L.append(I(f'v_cvt_pk_bf16_f32 v{st + r}, v{src + 2 * r}, v{src + 2 * r + 1}'))
        L.append(I(f'buffer_store_dwordx4 {R("v", st, 4)}, v{vOST}, {SRD_O}, {sOOFF} offen offset:{1024 * t}', tag=('O', hh)))
    return L


def l_finish_items(qb):
    l0, l1, lt, tmp = vL + 2 * qb, vL + 2 * qb + 1, vLT + qb, vT
    L = [I(f'v_add_f32 v{lt}, v{l0}, v{l1}'),
         I(f'v_mov_b32 v{l0}, 0'),
         I(f'v_mov_b32 v{l1}, 0'),
         I(f'v_mov_b32 v{tmp}, v{lt}'),
         I('s_nop 1'),
         I(f'v_permlane32_swap_b32 v{lt}, v{tmp}'),
         I('s_nop 1'),
         I(f'v_add_f32 v{lt}, v{lt}, v{tmp}'),
         I(f'v_mov_b32 v{tmp}, v{lt}'),
         I('s_nop 1'),
         I(f'v_permlane16_swap_b32 v{lt}, v{tmp}'),
         I('s_nop 1'),
         I(f'v_add_f32 v{lt}, v{lt}, v{tmp}'),
         I(f'v_cmp_nge_f32 vcc, {LTHRESH:#x}, v{lt}'),
         I(f'v_rcp_f32 v{lt}, v{lt}'),
         I('s_nop 1'),
         I(f's_or_b64 {sBAD}, {sBAD}, vcc')]
    return L


def attention(S, nqb, v3):
    A = S.a
    N = 64 * nqb
    dmawave = (nqb == 3)
    A(f'L_attn{v3}:')
    for qb in range(nqb):
        A(f'v_mov_b32 v{vL + 2 * qb}, 0')
        A(f'v_mov_b32 v{vL + 2 * qb + 1}, 0')
    A(f's_mov_b32 {sRBASE}, 0')
    A(f'v_mov_b32 v{vKA}, v{vKL}')
    A(f'v_mov_b32 v{vVA0}, v{vVL0}')
    A(f'v_mov_b32 v{vVA1}, v{vVL1}')

    def unit(u):
        return divmod(u, nqb)

    extra = {}

    def add_extra(sig, lst):
        extra.setdefault(sig, []).extend(lst)

    for qb in range(nqb):
        se = 31 * nqb + qb
        add_extra(se, [I(f'v_mov_b32 v{vNEG + 4 * qb + r}, v{vM2 + qb}') for r in range(4)])
        add_extra(se, l_finish_items(qb))
        items = o_epilogue_items(nqb, 0, qb, False)
        half = 1 + 2 * 13
        add_extra(se + 1, items[:half])
        add_extra(se + 2, items[half:])

    def frame_reads(tau):
        tt = tau + 1
        if tt > 63:
            return []
        return [k_read(tt, kb, t) for kb in range(2) for t in range(4)] + [v_read(tt, db, e) for db in range(8) for e in range(2)]

    def emit_slot(sig, mem, salus):
        mf = [None] * 16
        u = sig + 2
        if 0 <= u < N:
            tau, qb = unit(u)
            hd = tau // 32
            sp = u % 2
            for kb in range(2):
                d = R('v', vS + 8 * sp + 4 * kb, 4)
                for t in range(4):
                    mf[8 * kb + t] = mfma(d, R('a', aK + 32 * (tau % 2) + 16 * kb + 4 * t, 4),
                                          R('a', aQ + 64 * hd + 16 * qb + 4 * t, 4),
                                          R('v', vNEG + 4 * qb, 4) if t == 0 else d)
                mf[8 * kb].need = set(('a', aK + 32 * (tau % 2) + 16 * kb + r) for r in range(16))
        u = sig
        if 0 <= u < N:
            tau, qb = unit(u)
            pp = u % 2
            for db in range(8):
                d = R('v', vACC + 32 * qb + 4 * db, 4)
                mf[4 + 8 * (db // 4) + db % 4] = mfma(d, R('a', aV + 32 * (tau % 2) + 4 * db, 4), R('v', vP + 4 * pp, 4),
                                                      '0' if tau % 32 == 0 else d)
            for hb in range(2):
                mf[4 + 8 * hb].need = set(('a', aV + 32 * (tau % 2) + 16 * hb + r) for r in range(16))
        gaps = [[] for _ in range(16)]
        u = sig + 1
        if 0 <= u < N:
            tau, qb = unit(u)
            s0 = vS + 8 * (u % 2)
            p0 = vP + 4 * (u % 2)
            l0 = vL + 2 * qb
            E = [0, 1, 3, 5, 7, 9, 11, 13]
            for k, g in enumerate(E):
                gaps[g].append(I(f'v_exp_f32 v{s0 + k}, v{s0 + k}'))
            for k, g in enumerate([2, 6, 10, 14]):
                gaps[g].append(I(f'v_cvt_pk_bf16_f32 v{p0 + k}, v{s0 + 2 * k}, v{s0 + 2 * k + 1}'))
            for k, g in enumerate([4, 8, 12, 15]):
                gaps[g].append(I(f'v_add_f32 v{l0}, v{l0}, v{s0 + 2 * k}'))
                gaps[g].append(I(f'v_add_f32 v{l0 + 1}, v{l0 + 1}, v{s0 + 2 * k + 1}'))
        nrd = sum(1 for g in range(16) for x in mem.get(g, []) if x.kind == 'ds')
        salus = dict(salus)
        salus[15] = [P_lgkeep(min(nrd, 6))] + salus.get(15, [])
        for g in range(16):
            gaps[g] = salus.get(g, []) + mem.get(g, []) + gaps[g]
        ex = extra.get(sig, [])
        per = (len(ex) + 15) // 16
        k = 0
        for g in range(16):
            if mf[g] is not None:
                A(mf[g])
            S.ext(gaps[g])
            if ex:
                S.ext(ex[k:k + per]); k += per

    mempos4 = [0, 1, 2, 6, 10, 14]
    for tau in range(-1, 64):
        if tau % 2 == 1 and tau >= 1:
            S.mark('att', tau)
        elif tau in (-1, 0):
            S.mark('attp', tau)
        elif tau in (31, 32, 63):
            pass
        slots = list(range(nqb * tau, nqb * tau + nqb)) if tau >= 0 else [-2, -1]
        reads = frame_reads(tau)
        dm = kv_dma(tau + DIST) if (dmawave and tau + DIST <= 63 + DIST and tau < 63) else []
        head = []
        if tau + 1 <= 63:
            if dmawave:
                head.append(P_vmwait(lambda t, tt=tau + 1: t == ('KV', tt)))
            head.append(I('s_barrier'))
        upd = []
        if tau % 2 == 1 and tau + 1 <= 63 and tau >= 1:
            pass
        S.ext(head)
        if tau == -1:
            for r in reads[:8]:
                A(r)
            reads = reads[8:]
        nsl = len(slots)
        mem = [dict() for _ in slots]
        sal = [dict() for _ in slots]
        if nqb == 4 and tau >= 0:
            pos = [(j, g) for j in range(4) for g in mempos4]
        elif nqb == 4:
            pos = [(j, g) for j in range(2) for g in (0, 1, 2, 4, 6, 8, 10, 14)]
        elif tau >= 0:
            pos = [(j, g) for j in range(3) for g in (0, 1, 2, 4, 6, 8, 10, 14)]
        else:
            pos = [(j, g) for j in range(2) for g in (0, 1, 2, 4, 6, 8, 10, 14)]
        for r, (j, g) in zip(reads, pos):
            mem[j].setdefault(g, []).append(r)
        if dm and tau == -1:
            for m, d in dm:
                A(m); A('s_nop 0'); A(d)
        elif dm:
            dpos = [(j, g) for j in range(nsl) for g in (3, 5, 7, 9, 11, 13)][:16]
            for (m, d), (j, g) in zip(dm, dpos):
                mem[j].setdefault(g, []).append(d)
                sal[j].setdefault(g - 1, []).append(m)
        for j, sig in enumerate(slots):
            if j == nsl - 1 and tau % 2 == 0:
                extra.setdefault(sig, [])
                ups = [I(f's_add_u32 {sRBASE}, {sRBASE}, {2 * SLOT}'),
                       I(f's_cmp_eq_u32 {sRBASE}, {NRING * SLOT}'),
                       I(f's_cselect_b32 {sRBASE}, 0, {sRBASE}')]
                if dmawave:
                    sal[j].setdefault(14, []).extend(ups)
                else:
                    sal[j].setdefault(3, []).append(ups[0])
                    sal[j].setdefault(5, []).append(ups[1])
                    sal[j].setdefault(7, []).append(ups[2])
                mem[j].setdefault(15, []).extend([I(f'v_add_u32 v{vKA}, {sRBASE}, v{vKL}'),
                                                  I(f'v_add_u32 v{vVA0}, {sRBASE}, v{vVL0}'),
                                                  I(f'v_add_u32 v{vVA1}, {sRBASE}, v{vVL1}')])
            if j == nsl - 1 and dm:
                adv = kv_advance()
                for k, ins in enumerate(adv):
                    mem[j].setdefault(15, []).append(ins)
            if j == nsl - 1 and tau % 2 == 0 and (2 <= tau <= 30 or 34 <= tau <= 62):
                mem[j].setdefault(15, []).extend([I(f's_sub_u32 {sCNT}, {sCNT}, 1'), I(f's_cmp_lg_u32 {sCNT}, 0')])
            emit_slot(sig, mem[j], sal[j])
    S.mark('attend', 0)
    A('s_nop 7')
    for qb in range(nqb):
        S.ext(l_finish_items(qb))
    for qb in range(nqb):
        S.ext(o_epilogue_items(nqb, 1, qb, True))


def true_max_pass(S, nqb, v3):
    A = S.a
    A(f'v_lshrrev_b32 v27, 4, v{vLANE}')
    A(f'v_and_b32 v28, 15, v{vLANE}')
    A('v_lshlrev_b32 v31, 8, v28')
    A('v_lshl_add_u32 v31, v27, 4, v31')
    mx = [vACC + 64 + i for i in range(2 * nqb)]
    for hh in range(2):
        for qb in range(nqb):
            A(f'v_mov_b32 v{mx[hh * nqb + qb]}, 0xff7fffff')
        A(f's_mov_b32 {sTMP}, {hh * 262144}')
        A(f's_mov_b32 {sCNT}, 64')
        A(f'L_tm{v3}_{hh}:')
        for t in range(4):
            A(f'buffer_load_dwordx4 {R("v", vKPRE + 4 * t, 4)}, v31, {SRD_K}, {sTMP} offen offset:{64 * t}')
        A('s_waitcnt vmcnt(0)')
        for qb in range(nqb):
            d = vACC + 4 * qb
            for t in range(4):
                A(mfma(R('v', d, 4), R('v', vKPRE + 4 * t, 4), R('a', aQ + 64 * hh + 16 * qb + 4 * t, 4), '0' if t == 0 else R('v', d, 4)))
        A('s_nop 7')
        for qb in range(nqb):
            d = vACC + 4 * qb
            m = mx[hh * nqb + qb]
            A(f'v_max3_f32 v{m}, v{m}, v{d}, v{d + 1}')
            A(f'v_max3_f32 v{m}, v{m}, v{d + 2}, v{d + 3}')
        A(f's_add_u32 {sTMP}, {sTMP}, 4096')
        A(f's_sub_u32 {sCNT}, {sCNT}, 1')
        A(f's_cmp_lg_u32 {sCNT}, 0')
        A(f's_cbranch_scc1 L_tm{v3}_{hh}')
    xlane_max_or_add(S, 'v_max_f32', mx, [vACC + 80 + i for i in range(2 * nqb)])
    set_negm(S, nqb, mx)


def k1_variant(nqb):
    v3 = '3' if nqb == 3 else ''
    S = Stream()
    A = S.a
    qproj(S, nqb, None)
    stamp(S, 2)
    S.lgwait0()
    A('s_barrier')
    kv_prologue(S, nqb)
    q_epilogue(S, nqb)
    if OPT['dump'] == 'q':
        A('s_load_dwordx2 s[64:65], s[0:1], 96')
        A('s_waitcnt lgkmcnt(0)')
        A('s_add_u32 s48, s64, 0x4000000'); A('s_addc_u32 s49, s65, 0'); A('s_mov_b32 s50, 0x4000000'); A('s_mov_b32 s51, 0x20000')
        A(f's_lshl_b32 s52, s2, 2'); A(f's_add_u32 s52, s52, {sW}'); A('s_lshl_b32 s52, s52, 15')
        A(f'v_lshlrev_b32 v27, 2, v{vLANE}')
        for r in range(128):
            A(f'v_accvgpr_read_b32 v28, a{r}')
            A(f'buffer_store_dword v28, v27, s[48:51], s52 offen')
            A('s_add_u32 s52, s52, 256')
            A('s_waitcnt vmcnt(0)')
    S.vmwait(lambda t: t is not None and t[0] == 'KP')
    standin(S, nqb)
    stamp(S, 3)
    attention(S, nqb, v3)
    stamp(S, 4)
    A(f's_cmp_eq_u32 {sFB}, 1')
    A(f's_cbranch_scc1 L_done{v3}')
    A(f's_cmp_eq_u64 {sBAD}, 0')
    A(f's_cbranch_scc1 L_ok{v3}')
    A('v_mov_b32 v27, 1')
    A(f'v_mov_b32 v28, {FLAG_ADDR}')
    A('ds_write_b32 v28, v27')
    A(f'L_ok{v3}:')
    A('s_waitcnt lgkmcnt(0)')
    A('s_barrier')
    A(f'v_mov_b32 v28, {FLAG_ADDR}')
    A('ds_read_b32 v27, v28')
    A('s_waitcnt lgkmcnt(0)')
    A('v_readfirstlane_b32 s48, v27')
    A('s_nop 3')
    A('s_cmp_eq_u32 s48, 0')
    A(f's_cbranch_scc1 L_done{v3}')
    A('s_waitcnt vmcnt(0)')
    A(f's_mov_b32 {sFB}, 1')
    true_max_pass(S, nqb, v3)
    A('s_barrier')
    kv_prologue(S, nqb)
    A('s_waitcnt vmcnt(0)')
    A(f's_branch L_attn{v3}')
    A(f'L_done{v3}:')
    if OPT['stamps']:
        stamp(S, 5)
        A('s_load_dwordx2 s[64:65], s[0:1], 96')
        A('s_waitcnt lgkmcnt(0)')
        A('s_add_u32 s48, s64, 0x8000000'); A('s_addc_u32 s49, s65, 0'); A('s_mov_b32 s50, 0x100000'); A('s_mov_b32 s51, 0x20000')
        A(f's_lshl_b32 s52, s2, 2'); A(f's_add_u32 s52, s52, {sW}'); A('s_lshl_b32 s52, s52, 6')
        A('v_mov_b32 v28, 0')
        for k in range(6):
            A(f'v_mov_b32 v27, s{sST + 2 * k}')
            A(f'buffer_store_dword v27, v28, s[48:51], s52 offen offset:{4 * k}')
        A('s_waitcnt vmcnt(0)')
    A('s_endpgm')
    items, vmq, lgq = resolve(S.it)
    items, nfix = check_hazards(items, True, 'k1_%d' % nqb)
    check_scc(items, 'k1_%d' % nqb)
    loops = {'qp': (0, 6, f'L_qp{v3}', sCNT)}
    txt = fold2(items, v3)
    return txt


def fold2(items, v3):
    segs = split_marks(items)
    out = []

    def fold(group, label):
        t0 = text(group[0][2])
        for g in group[1:]:
            t = text(g[2])
            if t != t0:
                for a, b in zip(t0, t):
                    if a != b:
                        print(f'loop {label}: seg {group[0][0]}{group[0][1]} vs {g[1]} differ:\n   {a}\n   {b}')
                        break
                if len(t) != len(t0):
                    print(f'loop {label}: length differs {len(t0)} vs {len(t)} (iter {g[1]})')
                return None
        lastscc = None
        for ln in t0:
            mn = ln.split()[0]
            if re.match(r's_(add|sub|cmp|and|or|xor|lshl|lshr|min|max|bfe|not|andn2)', mn):
                lastscc = ln
        assert lastscc.startswith('s_cmp_lg_u32 ' + sCNT), lastscc
        return [f's_mov_b32 {sCNT}, {len(group)}', f'{label}:'] + t0 + [f's_cbranch_scc1 {label}']

    def fold_auto(group, label):
        for p in range(len(group)):
            r = fold(group[p:], label) if len(group) - p > 1 else None
            if r is not None:
                res = []
                for g in group[:p]:
                    res += [ln for ln in text(g[2])]
                print(f'{label}: peeled {p}, loop x{len(group) - p}, body {len(r)} lines')
                return res + r
        raise SystemExit('cannot fold ' + label)

    i = 0
    while i < len(segs):
        name, idx, its = segs[i]
        if name == 'qp' and idx == 0:
            grp = [s for s in segs if s[0] == 'qp' and s[1] <= 6]
            out += fold_auto(grp, f'L_qp{v3}')
            i += len(grp)
            continue
        if name == 'att' and idx in (1, 33):
            grp = [s for s in segs if s[0] == 'att' and idx <= s[1] <= idx + 28]
            out += fold_auto(grp, f'L_at{v3}_{idx}')
            i += len(grp)
            continue
        out += text(its)
        i += 1
    return out


def descriptor(name, vg=512, acc_off=256):
    return ['.section .rodata,"a"', '.p2align 6', f'.amdhsa_kernel {name}',
            f'  .amdhsa_next_free_vgpr {vg}', '  .amdhsa_next_free_sgpr 102', f'  .amdhsa_accum_offset {acc_off}',
            '  .amdhsa_group_segment_fixed_size 0', '  .amdhsa_kernarg_size 104', '  .amdhsa_user_sgpr_count 2',
            '  .amdhsa_user_sgpr_kernarg_segment_ptr 1', '  .amdhsa_system_sgpr_workgroup_id_x 1', '.end_amdhsa_kernel']


HEADER = open('concat_heads__mha_block_cached__gqa_block_cached__near_ridge.s.ref').read().split('; Override launch')[0] \
    if os.path.exists('concat_heads__mha_block_cached__gqa_block_cached__near_ridge.s.ref') else ''


def main(path):
    import gen2
    L = [HEADER.rstrip('\n')] if HEADER else []
    L.append(f'; @launch kernel={KN} grid=(256,1,1) block=(256,1,1) lds=163840')
    if not OPT['only_k1']:
        L.append(f'; @launch kernel={K2} grid=(240,1,1) block=(256,1,1) lds=163840')
    L += ['.amdgcn_target "amdgcn-amd-amdhsa--gfx950"', '.text', f'.globl {KN}', '.p2align 8', f'.type {KN},@function', f'{KN}:']
    S = Stream()
    k1_setup(S)
    its, _, _ = resolve(S.it)
    its, _ = check_hazards(its, True, 'setup')
    L += text(its)
    L += k1_variant(4)
    L.append('L_w3:')
    L += k1_variant(3)
    L += ['L_end1:', 's_endpgm']
    if not OPT['only_k1']:
        L += [f'.globl {K2}', '.p2align 8', f'.type {K2},@function', f'{K2}:']
        L += gen2.kernel2(OPT)
    L += descriptor(KN)
    if not OPT['only_k1']:
        L += descriptor(K2)
    s = '\n'.join(L) + '\n'
    open(path, 'w').write(s)
    print('wrote', path, len(s), 'bytes', len(L), 'lines')


if __name__ == '__main__':
    for a in sys.argv[2:]:
        k, v = a.split('=')
        OPT[k] = {'True': True, 'False': False, 'None': None}.get(v, v)
    main(sys.argv[1])
```

```python
import re
from asmlib import *

MF = 'v_mfma_f32_16x16x32_bf16'


def R(cls, base, n=1):
    return f'{cls}{base}' if n == 1 else f'{cls}[{base}:{base + n - 1}]'


WSLOT = 16384
NSTG = 64

SRD_O, SRD_W, SRD_C = 's[8:11]', 's[12:15]', 's[16:19]'
sW = 's3'
sWOFF, sOOFF, sCNT, sTMP, sW4096 = ['s%d' % i for i in range(28, 33)]
vLANE = 1
vWD = 2
vOD = 6
vA = 8
vST = 32
vT = 33
vFA = 40
NF = 8
vACC = 72


def kernel2(OPT):
    RING = int(OPT['k2ring'])
    PD = int(OPT['k2pd'])
    S = Stream()
    A = S.a
    def stamp(k):
        if OPT['stamps']:
            A(f's_memtime s[{72 + 4 * k}:{72 + 4 * k + 1}]')
            A(f's_memrealtime s[{72 + 4 * k + 2}:{72 + 4 * k + 3}]')
            A('s_waitcnt lgkmcnt(0)')
    A('s_cmp_ge_u32 s2, 240')
    A('s_cbranch_scc1 L_end2')
    A('s_load_dwordx2 s[44:45], s[0:1], 32')
    A('s_load_dwordx2 s[46:47], s[0:1], 72')
    A('s_load_dwordx2 s[48:49], s[0:1], 80')
    A('s_load_dwordx2 s[50:51], s[0:1], 96')
    A('s_and_b32 s4, s2, 7')
    A('s_lshr_b32 s5, s2, 3')
    A('s_lshr_b32 s6, s4, 2')
    A('s_bfe_u32 s7, s4, 0x10001')
    A('s_mul_i32 s7, s7, 30')
    A('s_add_u32 s7, s7, s5')
    A('s_lshr_b32 s20, s7, 2')
    A('s_and_b32 s21, s7, 3')
    A('s_and_b32 s22, s4, 1')
    A('s_lshl_b32 s22, s22, 2')
    A('s_add_u32 s21, s21, s22')
    A(f'v_and_b32 v{vLANE}, 63, v0')
    A('v_lshrrev_b32 v33, 6, v0')
    A('s_nop 0')
    A(f'v_readfirstlane_b32 {sW}, v33')
    g, n, r_, c_ = 'v34', 'v35', 'v36', 'v37'
    A(f'v_lshrrev_b32 {g}, 4, v{vLANE}')
    A(f'v_and_b32 {n}, 15, v{vLANE}')
    A(f'v_lshrrev_b32 {r_}, 2, {n}')
    A(f'v_and_b32 {c_}, 3, {n}')
    A(f'v_lshlrev_b32 v38, 1, {g}')
    A(f'v_xor_b32 v38, {n}, v38')
    A('v_xor_b32 v39, 8, v38')
    A(f's_lshl_b32 s28, {sW}, 15')
    A(f'v_lshlrev_b32 v33, 11, {g}')
    A('v_add_u32 v33, s28, v33')
    for x in range(4):
        A(f'v_lshl_add_u32 v{vWD + x}, v{38 if x % 2 == 0 else 39}, 4, v33')
        if x:
            A(f'v_add_u32 v{vWD + x}, {8192 * x}, v{vWD + x}')
    A(f's_lshl_b32 s28, {sW}, 18')
    A(f'v_lshlrev_b32 v{vOD}, 4, v{vLANE}')
    A(f'v_add_u32 v{vOD}, s28, v{vOD}')
    A(f'v_add_u32 v{vOD + 1}, 131072, v{vOD}')
    A(f's_lshl_b32 {sW4096}, {sW}, 12')
    A('s_waitcnt lgkmcnt(0)')
    stamp(0)
    A('s_cmp_eq_u32 s6, 0')
    A('s_cselect_b64 s[44:45], s[44:45], s[46:47]')
    if OPT['k2same']:
        A('s_mov_b32 s20, 0'); A('s_mov_b32 s21, 0')
    A('s_mul_i32 s22, s6, 120'); A('s_lshl_b32 s23, s20, 3'); A('s_add_u32 s22, s22, s23'); A('s_lshl_b32 s22, s22, 17')
    A('s_add_u32 s8, s50, s22'); A('s_addc_u32 s9, s51, 0'); A('s_mov_b32 s10, 0x100000'); A('s_mov_b32 s11, 0x20000')
    A('s_lshl_b32 s22, s21, 8')
    A('s_add_u32 s12, s44, s22'); A('s_addc_u32 s13, s45, 0'); A('s_sub_u32 s14, 8388608, s22'); A('s_mov_b32 s15, 0x20000')
    A('s_lshl_b32 s23, s20, 19'); A('s_lshl_b32 s24, s6, 11'); A('s_add_u32 s23, s23, s24'); A('s_add_u32 s23, s23, s22')
    A('s_add_u32 s16, s48, s23'); A('s_addc_u32 s17, s49, 0'); A(f's_sub_u32 s18, {1920 * 4096}, s23'); A('s_mov_b32 s19, 0x20000')

    def oreg(s, ks, mi):
        return 16 * (s % RING) + 8 * ks + 4 * mi

    def group(s):
        out = []
        for x in range(4):
            out.append((I(f's_add_u32 m0, {sW4096}, {(s % RING) * WSLOT + x * 1024}'),
                        I(f'buffer_load_dwordx4 v{vWD + x}, {SRD_W}, {sWOFF} offen {OPT["k2wflags"]} lds', tag=('D', s))))
        for ks in range(2):
            for mi in range(2):
                out.append((None,
                            I(f'buffer_load_dwordx4 {R("a", oreg(s, ks, mi), 4)}, v{vOD + mi}, {SRD_O}, {sOOFF} offen offset:{ks * 1024} {OPT["k2oflags"]}', tag=('D', s))))
        return [out[0], out[4], out[1], out[5], out[2], out[6], out[3], out[7]]

    def adv():
        return [I(f's_add_u32 {sWOFF}, {sWOFF}, 131072'), I(f's_add_u32 {sOOFF}, {sOOFF}, 2048')]

    A(f's_mov_b32 {sWOFF}, 0')
    A(f's_mov_b32 {sOOFF}, 0')
    for s in range(RING - 1):
        for m, d in group(s):
            if m is not None:
                A(m); A('s_nop 0')
            A(d)
        S.ext(adv())
    A(f'v_lshl_add_u32 v38, {g}, 2, {r_}')
    A('v_and_b32 v39, 7, v38')
    A('v_lshlrev_b32 v38, 8, v38')
    A(f'v_lshl_add_u32 v38, {c_}, 3, v38')
    A('v_lshl_add_u32 v38, v39, 5, v38')
    NG = (RING + 3) // 4
    for nb in range(8):
        A(f'v_xor_b32 v{vA + nb}, {32 * nb}, v38')
    for gg in range(1, NG):
        for nb in range(8):
            A(f'v_add_u32 v{vA + 8 * gg + nb}, {65536 * gg}, v{vA + nb}')
    A(f's_lshl_b32 s22, {sW}, 17')
    A(f'v_lshlrev_b32 v{vST}, 12, {n}')
    A(f'v_and_b32 v38, 1, {g}')
    A(f'v_lshl_add_u32 v{vST}, v38, 5, v{vST}')
    A(f'v_lshrrev_b32 v38, 1, {g}')
    A(f'v_lshl_add_u32 v{vST}, v38, 4, v{vST}')
    A(f'v_add_u32 v{vST}, s22, v{vST}')
    for r in range(64):
        A(f'v_mov_b32 v{vACC + r}, 0')

    def a_read(F, e):
        s, f = divmod(F, 16)
        ks, nb = divmod(f, 8)
        slot = s % RING
        off = (slot % 4) * WSLOT + (2 * ks + e) * 4096
        d = vFA + 4 * (F % NF) + 2 * e
        return I(f'ds_read_b64_tr_b16 {R("v", d, 2)}, v{vA + 8 * (slot // 4) + nb} offset:{off}', tag=('r', F))

    S.vmwait(lambda t: t == ('D', 0))
    A('s_barrier')
    stamp(1)
    for F in range(PD):
        A(a_read(F, 0)); A(a_read(F, 1))

    NGAP = NSTG * 32
    pre = [[] for _ in range(NGAP)]
    mem = [[] for _ in range(NGAP)]
    post = [[] for _ in range(NGAP)]
    P0 = 32 - 2 * PD
    for F in range(NSTG * 16 - PD):
        mem[2 * F].append(a_read(F + PD, 0))
        mem[2 * F + 1].append(a_read(F + PD, 1))
    for s in range(NSTG - 1):
        gi = 32 * s + P0 - 1
        post[gi] += [P_vmwait(lambda t, s=s: t == ('D', s + 1)), I('s_barrier')]
        G = s + RING - 1
        if G < NSTG:
            ops = group(G)
            for k, (m, d) in enumerate(ops):
                gg = 32 * s + P0 + 1 + 4 * k
                if m is not None:
                    pre[gg - 1].append(m)
                mem[gg].append(d)
            last = 32 * s + P0 + 1 + 4 * 7
            a2 = adv()
            pre[last + 1].append(a2[0])
            pre[last + 2].append(a2[1])
    for s in range(NSTG):
        if s % RING == 0:
            S.mark('body', s // RING)
        for j in range(32):
            F = 16 * s + j // 2
            ks, nb = divmod(j // 2, 8)
            mi = j % 2
            d = R('v', vACC + 8 * nb + 4 * mi, 4)
            m = I(f'{MF} {d}, {R("v", vFA + 4 * (F % NF), 4)}, {R("a", oreg(s, ks, mi), 4)}, {d}')
            if j % 4 == 0:
                m.need = set(('v', vFA + 4 * ((F + q) % NF) + r) for q in range(2) for r in range(4))
            if not OPT['k2_nomf']:
                A(m)
            gi = 32 * s + j
            gl = pre[gi] + mem[gi] + post[gi]
            if j == 31 and s % RING == RING - 1:
                gl = gl + [I(f's_sub_u32 {sCNT}, {sCNT}, 1'), I(f's_cmp_lg_u32 {sCNT}, 0')]
            if OPT['k2_nodma']:
                gl = [x for x in gl if x.kind not in ('dma', 'vmem')]
            if OPT['k2_now']:
                gl = [x for x in gl if x.kind != 'dma']
            if OPT['k2_noo']:
                gl = [x for x in gl if x.kind != 'vmem']
            if OPT['k2_nolds']:
                gl = [x for x in gl if x.kind != 'ds']
            if OPT['k2_nobar']:
                gl = [x for x in gl if x.kind != 'bar']
            S.ext(gl)
    S.mark('end', 0)
    stamp(2)
    A('s_nop 7')
    k = 0
    for mi in range(2):
        A(f's_mov_b32 {sTMP}, {mi * 65536}')
        for p in range(4):
            st = vFA + 4 * (k % 4); k += 1
            for q in range(2):
                d = vACC + 8 * (2 * p + q) + 4 * mi
                A(f'v_cvt_pk_bf16_f32 v{st + 2 * q}, v{d}, v{d + 1}')
                A(f'v_cvt_pk_bf16_f32 v{st + 2 * q + 1}, v{d + 2}, v{d + 3}')
            A('s_nop 1')
            A(f'v_permlane16_swap_b32 v{st}, v{st + 2}')
            A(f'v_permlane16_swap_b32 v{st + 1}, v{st + 3}')
            A(f'buffer_store_dwordx4 {R("v", st, 4)}, v{vST}, {SRD_C}, {sTMP} offen offset:{64 * p}')
    if OPT['stamps']:
        A('s_waitcnt vmcnt(0)')
        stamp(3)
        A('s_add_u32 s48, s50, 0x8100000'); A('s_addc_u32 s49, s51, 0'); A('s_mov_b32 s50, 0x100000'); A('s_mov_b32 s51, 0x20000')
        A(f's_lshl_b32 s52, s2, 2'); A(f's_add_u32 s52, s52, {sW}'); A('s_lshl_b32 s52, s52, 6')
        A('v_mov_b32 v28, 0')
        for k in range(4):
            A(f'v_mov_b32 v27, s{72 + 4 * k}')
            A(f'buffer_store_dword v27, v28, s[48:51], s52 offen offset:{4 * k}')
            A(f'v_mov_b32 v27, s{72 + 4 * k + 2}')
            A(f'buffer_store_dword v27, v28, s[48:51], s52 offen offset:{4 * k + 32}')
        A('s_waitcnt vmcnt(0)')
    A('L_end2:')
    A('s_endpgm')
    items, vmq, lgq = resolve(S.it)
    items, nfix = check_hazards(items, True, 'k2')
    check_scc(items, 'k2')
    segs = split_marks(items)
    out = []
    grp = [s for s in segs if s[0] == 'body']
    texts = [text(g[2]) for g in grp]
    best = (0, 0)
    a = 0
    while a < len(texts):
        b = a
        while b + 1 < len(texts) and texts[b + 1] == texts[a]:
            b += 1
        if b - a > best[1] - best[0]:
            best = (a, b)
        a = b + 1
    print('k2 loop: bodies', best, 'of', len(texts))
    for (name, idx, its) in segs:
        if name == 'body' and best[0] <= idx <= best[1] and best[1] > best[0]:
            if idx == best[0]:
                out += [f's_mov_b32 {sCNT}, {best[1] - best[0] + 1}', 'L_k2:'] + text(its) + ['s_cbranch_scc1 L_k2']
        else:
            out += text(its)
    return out
```

```python
import sys, os, re
sys.path.insert(0, os.path.dirname(os.path.abspath(__file__)))
from asmlib import *

KN = "concat_heads__mha_block_cached__gqa_block_cached__near_ridge_kernel"
K2 = "outproj_kernel"

OPT = dict(
    dump=None,
    stamps=False,
    kvflags='nt',
    only_k1=False,
    nofb=False, drop='', att_nolds=False, att_nowait=False, att_noexp=False,
    att_nodma=False, att_nobar=False, att_novm=False, qp_nodma=False, qp_nobar=False,
    kvsame=False, wsame=False, wflags='', xflags='', k2wflags='', k2oflags='', k2same=False, pf=0, pfflags='', pfloop=33, pfq=0, kvpf=0, w3test=False, pfstart=0, kvpfflags='', kvpfsrc='K', k2ring=8, k2pd=6, k2_nodma=False, k2_nomf=False, k2_wlin=False, k2_now=False, k2_noo=False, k2_nolds=False, k2_nobar=False, k2_novm=False,
)

MF = 'v_mfma_f32_16x16x32_bf16'


def R(cls, base, n=1):
    return f'{cls}{base}' if n == 1 else f'{cls}[{base}:{base + n - 1}]'


def mfma(d, a, b, c):
    return I(f'{MF} {d}, {a}, {b}, {c}')


SLOT = 17408
XW_PAR = 24576
X3_BASE = 139264
X3_PAR = 6144
WBEG = 3 * SLOT
WEND = 8 * SLOT
FLAG_ADDR = 163832
NRING = 8
DIST = 5

sW = 's3'
SRD_X, SRD_W, SRD_K, SRD_V, SRD_O = 's[8:11]', 's[12:15]', 's[16:19]', 's[20:23]', 's[24:27]'
sWRD, sWDMA, sWSOFF, sXSOFF, sCNT, sW4352, sXD0, sXD1, sNXT, sTMP = ['s%d' % i for i in range(28, 38)]
sDSLOT, sKOFF, sKOFF2, sRBASE, sFB, sOOFF, sT2 = ['s%d' % i for i in range(38, 45)]
sBAD = 's[46:47]'
sST = 72

vLANE = 1
vWD = 2
vXD = 6
vWL, vWA, vXA0, vXA1 = 14, 15, 16, 17
vKL, vVL0, vVL1, vKA, vVA0, vVA1, vKD, vVD, vOST = 18, 19, 20, 21, 22, 23, 24, 25, 26
vT = 27
vKPRE = 32
vS = 64
vP = 80
vL = 88
vNEG = 96
vM2 = 112
vLT = 116
vE = 120
vACC = 128
aQ = 0
aX = 128
aWF = 192
aK = 128
aV = 192

QSCALE = 0x3e0293ee
import struct, math
QSCALE = struct.unpack('<I', struct.pack('<f', math.log2(math.e) / math.sqrt(128.0)))[0]
LTHRESH = struct.unpack('<I', struct.pack('<f', 2.0 ** 30))[0]


def acc(hh, dt, qb):
    return R('v', vACC + 32 * qb + 4 * dt, 4) if hh == 0 else R('a', 32 * qb + 4 * dt, 4)


def stamp(S, k):
    if OPT['stamps']:
        S.a(f's_memtime s[{sST + 4 * k}:{sST + 4 * k + 1}]')
        S.a(f's_memrealtime s[{sST + 4 * k + 2}:{sST + 4 * k + 3}]')
        S.a('s_waitcnt lgkmcnt(0)')


def k1_setup(S):
    A = S.a
    A('s_cmp_ge_u32 s2, 256')
    A('s_cbranch_scc1 L_end1')
    A('s_load_dwordx8 s[44:51], s[0:1], 0')
    A('s_load_dwordx8 s[56:63], s[0:1], 40')
    A('s_load_dwordx2 s[64:65], s[0:1], 96')
    if OPT['stamps']:
        A('s_load_dwordx2 s[66:67], s[0:1], 88')
    if OPT['pf'] or OPT['pfq']:
        A('s_load_dwordx2 s[52:53], s[0:1], 32')
        A('s_load_dwordx2 s[54:55], s[0:1], 72')
    A('s_and_b32 s4, s2, 7')
    A('s_lshr_b32 s5, s2, 3')
    A('s_lshr_b32 s6, s4, 2')
    A('s_bfe_u32 s7, s4, 0x10001')
    A('s_lshl_b32 s7, s7, 2')
    A('s_and_b32 s28, s5, 3')
    A('s_add_u32 s7, s7, s28')
    A('s_and_b32 s28, s4, 1')
    A('s_lshl_b32 s28, s28, 3')
    A('s_lshr_b32 s29, s5, 2')
    A('s_add_u32 s68, s28, s29')
    A(f'v_and_b32 v{vLANE}, 63, v0')
    A('v_lshrrev_b32 v27, 6, v0')
    A('s_nop 0')
    A(f'v_readfirstlane_b32 {sW}, v27')
    A('s_waitcnt lgkmcnt(0)')
    stamp(S, 0)
    A('s_cmp_eq_u32 s6, 0')
    A('s_cselect_b64 s[44:45], s[44:45], s[56:57]')
    A('s_cselect_b64 s[46:47], s[46:47], s[58:59]')
    A('s_cselect_b64 s[48:49], s[48:49], s[60:61]')
    A('s_cselect_b64 s[50:51], s[50:51], s[62:63]')
    if OPT['pf'] or OPT['pfq']:
        A('s_cselect_b64 s[52:53], s[52:53], s[54:55]')
        A('s_lshl_b32 s28, s7, 4'); A('s_add_u32 s28, s28, s68'); A('s_lshl_b32 s28, s28, 16')
        A('s_add_u32 s52, s52, s28'); A('s_addc_u32 s53, s53, 0')
        A('s_mov_b32 s54, 65536'); A('s_mov_b32 s55, 0x20000')
    A('s_mul_i32 s28, s7, 491520')
    if OPT['wsame']:
        A('s_mov_b32 s28, 0')
    A('s_add_u32 s8, s44, s28'); A('s_addc_u32 s9, s45, 0')
    A('s_mov_b32 s10, 491520'); A('s_mov_b32 s11, 0x20000')
    A('s_lshl_b32 s28, s68, 9')
    if OPT['wsame']:
        A('s_mov_b32 s28, 0')
    A('s_add_u32 s12, s50, s28'); A('s_addc_u32 s13, s51, 0')
    A('s_sub_u32 s14, 8388608, s28'); A('s_mov_b32 s15, 0x20000')
    A('s_lshl_b32 s28, s7, 5'); A('s_lshl_b32 s29, s68, 1'); A('s_add_u32 s28, s28, s29')
    A('s_lshl_b32 s28, s28, 18')
    if OPT['kvsame']:
        A('s_mov_b32 s28, 0')
    A('s_add_u32 s16, s46, s28'); A('s_addc_u32 s17, s47, 0')
    A('s_mov_b32 s18, 524288'); A('s_mov_b32 s19, 0x20000')
    A('s_add_u32 s20, s48, s28'); A('s_addc_u32 s21, s49, 0')
    A('s_mov_b32 s22, 524288'); A('s_mov_b32 s23, 0x20000')
    A('s_mul_i32 s28, s6, 120'); A('s_mul_i32 s29, s7, 15'); A('s_add_u32 s28, s28, s29')
    A('s_lshl_b32 s28, s28, 17')
    A('s_lshl_b32 s29, s68, 13')
    A('s_add_u32 s28, s28, s29')
    A('s_add_u32 s24, s64, s28'); A('s_addc_u32 s25, s65, 0')
    A(f's_sub_u32 s26, {15 * 131072}, s29'); A('s_mov_b32 s27, 0x20000')
    A(f'v_lshrrev_b32 v27, 4, v{vLANE}')
    A(f'v_and_b32 v28, 15, v{vLANE}')
    A('v_lshrrev_b32 v29, 2, v28')
    A('v_and_b32 v30, 3, v28')
    A(f's_lshl_b32 s28, {sW}, 17')
    A(f'v_lshlrev_b32 v{vWD}, 15, v27')
    A(f'v_lshl_add_u32 v{vWD}, v28, 4, v{vWD}')
    A(f'v_add_u32 v{vWD}, s28, v{vWD}')
    for r in range(1, 4):
        A(f'v_add_u32 v{vWD + r}, {8192 * r}, v{vWD}')
    A(f'v_lshrrev_b32 v31, 3, v{vLANE}')
    A(f's_lshl_b32 s28, {sW}, 6')
    A('v_add_u32 v31, s28, v31')
    A('v_lshlrev_b32 v31, 11, v31')
    A(f'v_and_b32 v{vXD + 2}, 7, v{vLANE}')
    A(f'v_xor_b32 v{vXD + 2}, v{vXD + 2}, v27')
    A(f'v_xor_b32 v{vXD + 3}, 4, v{vXD + 2}')
    A(f'v_lshl_add_u32 v{vXD}, v{vXD + 2}, 4, v31')
    A(f'v_lshl_add_u32 v{vXD + 1}, v{vXD + 3}, 4, v31')
    A(f'v_add_u32 v{vXD + 1}, 16384, v{vXD + 1}')
    for i in range(2, 8):
        A(f'v_add_u32 v{vXD + i}, {16384 * (i - (i & 1))}, v{vXD + (i & 1)}')
    A('v_lshrrev_b32 v31, 1, v27')
    A('v_lshl_add_u32 v31, v31, 2, v29')
    A(f'v_mul_u32_u24 v{vWL}, 1088, v31')
    A('v_and_b32 v31, 1, v27')
    A(f'v_lshl_add_u32 v{vWL}, v31, 9, v{vWL}')
    A(f'v_lshl_add_u32 v{vWL}, v30, 4, v{vWL}')
    A('v_lshrrev_b32 v31, 1, v28')
    A('v_xor_b32 v31, v31, v27')
    A('v_lshlrev_b32 v31, 4, v31')
    A(f'v_lshl_add_u32 v{vXA0}, v28, 7, v31')
    A(f'v_mul_u32_u24 v{vKL}, 1088, v29')
    A(f'v_lshl_add_u32 v{vKL}, v30, 8, v{vKL}')
    A('v_xor_b32 v31, v27, v30')
    A(f'v_lshl_add_u32 v{vKL}, v31, 4, v{vKL}')
    A(f'v_mul_u32_u24 v{vVL0}, 1088, v29')
    A(f'v_lshl_add_u32 v{vVL0}, v27, 8, v{vVL0}')
    A(f'v_lshl_add_u32 v{vVL0}, v30, 3, v{vVL0}')
    A('v_and_b32 v31, 1, v27')
    A('v_lshlrev_b32 v31, 5, v31')
    A(f'v_sub_u32 v{vVL1}, v{vVL0}, v31')
    A(f'v_add_u32 v{vVL0}, v{vVL0}, v31')
    A('v_xor_b32 v31, v28, v27')
    A('v_lshlrev_b32 v31, 4, v31')
    A(f'v_lshl_add_u32 v{vKD}, v27, 8, v31')
    A('v_and_b32 v31, 1, v27')
    A('v_lshlrev_b32 v31, 1, v31')
    A('v_xor_b32 v31, v28, v31')
    A('v_lshlrev_b32 v31, 4, v31')
    A(f'v_lshl_add_u32 v{vVD}, v27, 10, v31')
    A(f's_lshl_b32 s28, {sW}, 19')
    A(f'v_lshlrev_b32 v{vOST}, 4, v{vLANE}')
    A(f'v_add_u32 v{vOST}, s28, v{vOST}')
    A('v_lshlrev_b32 v31, 8, v28')
    A('v_lshl_add_u32 v31, v27, 4, v31')
    A(f's_mul_i32 {sW4352}, {sW}, 4352')
    A(f's_mov_b32 {sFB}, 0')
    A(f's_mov_b64 {sBAD}, 0')
    A('v_mov_b32 v27, 0')
    A(f'v_mov_b32 v28, {FLAG_ADDR}')
    A('ds_write_b32 v28, v27')
    A(f's_cmp_eq_u32 {sW}, 3')
    A('s_cbranch_scc1 L_w3')


def w_dma(h, rho):
    return (I(f's_add_u32 m0, {sWDMA}, {rho * 1088}'),
            I(f'buffer_load_dwordx4 v{vWD + rho}, {SRD_W}, {sWSOFF} offen {OPT["wflags"]} lds', tag=('W', h)))


def x_dma(s, i):
    xs = sXD0 if s % 2 == 0 else sXD1
    return (I(f's_add_u32 m0, {xs}, {i * 1024}'),
            I(f'buffer_load_dwordx4 v{vXD + i}, {SRD_X}, {sXSOFF} offen {OPT["xflags"]} lds', tag=('X', s)))


def w_read(h, dt, ks, e):
    t, u = dt >> 1, dt & 1
    off = ks * 8704 + e * 256 + 64 * t + 8 * u
    d = aWF + 8 * (dt % 4) + 4 * ks + 2 * e
    return I(f'ds_read_b64_tr_b16 {R("a", d, 2)}, v{vWA} offset:{off}', tag=('Wr', h))


def x_read(nqb, s, qb, ks):
    par = s % 2
    off = par * (XW_PAR if nqb == 4 else X3_PAR) + qb * 2048
    d = aX + 32 * par + 8 * qb + 4 * ks
    return I(f'ds_read_b128 {R("a", d, 4)}, v{vXA0 if ks == 0 else vXA1} offset:{off}', tag=('Xr', s))


def qproj(S, nqb, pre):
    A = S.a
    G = 2 * nqb
    nx = 2 * nqb
    if nqb == 4:
        A(f's_lshl_b32 {sXD0}, {sW}, 13')
        A(f's_add_u32 {sXD1}, {sXD0}, {XW_PAR}')
        A(f'v_add_u32 v{vXA0}, {sXD0}, v{vXA0}')
    else:
        A(f's_mov_b32 {sXD0}, {X3_BASE}')
        A(f's_mov_b32 {sXD1}, {X3_BASE + X3_PAR}')
        A(f'v_add_u32 v{vXA0}, {X3_BASE}, v{vXA0}')
    A(f'v_xor_b32 v{vXA1}, 64, v{vXA0}')
    def wslot(h):
        return WBEG + (h % 5) * SLOT
    def pro_w(h):
        A(f's_add_u32 {sWDMA}, {sW4352}, {wslot(h)}')
        A(f's_mov_b32 {sWSOFF}, {(h // 2) * 524288 + (h % 2) * 256}')
        for rho in range(4):
            m, d = w_dma(h, rho)
            A(m); A('s_nop 0'); A(d)
    def pro_x(s):
        A(f's_mov_b32 {sXSOFF}, {s * 128}')
        for i in range(nx):
            m, d = x_dma(s, i)
            A(m); A('s_nop 0'); A(d)
    pro_w(0); pro_x(0); pro_w(1); pro_w(2); pro_x(1); pro_w(3)
    for hh in range(2):
        A(f's_mov_b32 {sTMP}, {hh * 262144}')
        for t in range(4):
            A(f'buffer_load_dwordx4 {R("v", vKPRE + 16 * hh + 4 * t, 4)}, v31, {SRD_K}, {sTMP} offen offset:{64 * t}', tag=('KP', hh))
    if OPT['pfq']:
        A(f's_lshl_b32 {sTMP}, {sW}, 7')
        A(f'v_add_u32 v126, {sTMP}, v{vLANE}')
        A('v_lshlrev_b32 v126, 7, v126')
        A(f's_mov_b32 {sTMP}, 8192')
        for so in ('0', sTMP):
            pf = I(f'buffer_load_dword v127, v126, s[52:55], {so} offen {OPT["pfflags"]}')
            pf.wr = set()
            A(pf)
    KVL = int(OPT['kvpf'])
    W3T = OPT['w3test']
    if W3T and nqb == 4:
        KVL = 0
    if KVL:
        sh = {8: 3, 16: 4, 32: 5, 64: 6}[KVL]
        A(f'v_lshrrev_b32 v125, {sh}, v{vLANE}')
        A(f'v_lshlrev_b32 v125, 13, v125')
        A(f'v_and_b32 v124, {KVL - 1}, v{vLANE}')
        A(f'v_lshl_add_u32 v125, v124, 7, v125')
        if not W3T:
            A(f's_lshl_b32 {sTMP}, {sW}, {13 + 6 - sh}')
            A(f'v_add_u32 v125, {sTMP}, v125')
        A('s_mov_b32 s69, 0')
    A(f's_add_u32 {sWDMA}, {sW4352}, {wslot(4)}')
    A(f's_mov_b32 {sWSOFF}, {2 * 524288}')
    A(f's_mov_b32 {sXSOFF}, 256')
    A(f's_mov_b32 {sWRD}, {wslot(0)}')
    A(f'v_add_u32 v{vWA}, {sWRD}, v{vWL}')
    for qb in range(nqb):
        for r in range(32):
            A(f'v_mov_b32 v{vACC + 32 * qb + r}, 0')
            A(f'v_accvgpr_write_b32 a{32 * qb + r}, 0')
    S.vmwait(lambda t: t in (('W', 0), ('X', 0)))
    A('s_waitcnt lgkmcnt(0)')
    A('s_barrier')
    stamp(S, 1)
    for qb in range(nqb):
        for ks in range(2):
            A(x_read(nqb, 0, qb, ks))
    for dt in range(2):
        for ks in range(2):
            for e in range(2):
                A(w_read(0, dt, ks, e))

    NST = 16
    for s in range(NST):
        if s % 2 == 0:
            S.mark('qp', s // 2)
        for hh in range(2):
            h = 2 * s + hh
            gaps = [[[] for _ in range(G)] for _ in range(8)]
            ms = [[None] * G for _ in range(8)]
            for dt in range(8):
                for qb in range(nqb):
                    for ks in range(2):
                        ms[dt][2 * qb + ks] = mfma(acc(hh, dt, qb), R('a', aWF + 8 * (dt % 4) + 4 * ks, 4),
                                                   R('a', aX + 32 * (s % 2) + 8 * qb + 4 * ks, 4), acc(hh, dt, qb))
                ms[dt][0].need = set(('a', aWF + 8 * (dt % 4) + r) for r in range(8))
                if dt == 0 and hh == 0:
                    ms[dt][0].need |= set(('a', aX + 32 * (s % 2) + r) for r in range(8 * nqb))
                tdt, th = dt + 2, h
                if tdt >= 8:
                    tdt -= 8; th += 1
                if th < 32:
                    k = 0
                    for ks in range(2):
                        for e in range(2):
                            gaps[dt][k].append(w_read(th, tdt, ks, e)); k += 1
            if nqb == 4:
                slots = [(g, gi) for g in range(6) for gi in (4, 6)]
            else:
                slots = [(g, gi) for g in range(6) for gi in (4, 5)]
            dl = []
            if h + 4 < 32:
                dl += [w_dma(h + 4, rho) for rho in range(4)]
            nW = len(dl)
            if hh == 0 and s + 2 < NST:
                dl += [x_dma(s + 2, i) for i in range(nx)]
            if OPT['qp_nodma']:
                dl = []
            for k, (m, d) in enumerate(dl):
                g, gi = slots[k]
                if nqb == 4:
                    gaps[g][gi - 1].insert(0, m)
                    gaps[g][gi].append(d)
                else:
                    if gi == 4:
                        gaps[g][3].insert(0, m)
                    else:
                        gaps[g][4].append(m)
                    gaps[g][gi].append(d)
            if KVL and W3T:
                n = KVL // 32 if KVL >= 32 else (1 if (h % (32 // KVL)) == 0 else 0)
                for q in range(n):
                    srd = SRD_K if OPT['kvpfsrc'] == 'K' else SRD_V
                    pf = I(f'buffer_load_dword v127, v125, {srd}, s69 offen {OPT["kvpfflags"]}', tag=('PF', s))
                    pf.wr = set()
                    gaps[6][2 + 2 * q].append(pf)
                    gaps[6][3 + 2 * q].insert(0, I(f's_add_u32 s69, s69, {8192 * 64 // KVL}'))
            elif KVL and hh == 1:
                per = [0] if (KVL == 64 or s % 2 == 0) else []
                for q in per:
                    srd = SRD_K if OPT['kvpfsrc'] == 'K' else SRD_V
                    pf = I(f'buffer_load_dword v127, v125, {srd}, s69 offen {OPT["kvpfflags"]}', tag=('PF', s))
                    pf.wr = set()
                    gaps[6][2].append(pf)
                    gaps[7][1].insert(0, I(f's_add_u32 s69, s69, {4 * 8192 * 64 // KVL}'))
            if h + 4 < 32:
                inc = 256 if (h % 2 == 0) else (524288 - 256)
                gaps[2][1].insert(0, I(f's_add_u32 {sWSOFF}, {sWSOFF}, {inc}'))
            if hh == 0 and s + 2 < NST:
                gaps[6][5 if nqb == 4 else 4].insert(0, I(f's_add_u32 {sXSOFF}, {sXSOFF}, 128'))
            if hh == 1 and s + 1 < NST:
                xr = [x_read(nqb, s + 1, qb, ks) for qb in range(nqb) for ks in range(2)]
                xs = [(g, gi) for g in range(2, 6) for gi in ((4, 6) if nqb == 4 else (4, 5))]
                gaps[2][3].insert(0, P_vmwait(lambda t, s=s: t == ('X', s + 1)))
                for k, r in enumerate(xr):
                    g, gi = xs[k]
                    gaps[g][gi].append(r)
            if h + 1 < 32:
                gaps[4][0].insert(0, I(f's_add_u32 {sTMP}, {sWRD}, {SLOT}'))
                gaps[4][1].insert(0, I(f's_cmp_eq_u32 {sTMP}, {WEND}'))
                gaps[4][2].insert(0, I(f's_cselect_b32 {sNXT}, {WBEG}, {sTMP}'))
                last = G - 1
                gaps[5][last] += [P_vmwait(lambda t, h=h: t == ('W', h + 1)),
                                  P_lgwait(lambda t, h=h: t == ('Wr', h)),
                                  I('s_barrier' if not OPT['qp_nobar'] else 's_nop 0'),
                                  I(f'v_add_u32 v{vWA}, {sNXT}, v{vWL}')]
                gaps[6][1].insert(0, I(f's_add_u32 {sWDMA}, {sWRD}, {sW4352}'))
                gaps[6][2].insert(0, I(f's_mov_b32 {sWRD}, {sNXT}'))
            if hh == 1 and s % 2 == 1 and s < 14:
                gaps[7][G - 3].insert(0, I(f's_sub_u32 {sCNT}, {sCNT}, 1'))
                gaps[7][G - 2].insert(0, I(f's_cmp_lg_u32 {sCNT}, 0'))
            for dt in range(8):
                for gi in range(G):
                    A(ms[dt][gi])
                    gl = gaps[dt][gi]
                    if W3T and nqb == 3:
                        gl = [x for x in gl if not (x.kind == 'pseudo' and x.meta[0] == 'vmwait')]
                    S.ext(gl)
    S.mark('qpend', 0)


def q_epilogue(S, nqb):
    A = S.a
    A(f's_mov_b32 s48, {QSCALE:#x}')
    A('s_nop 7')
    t = vS
    for hh in (1, 0):
        for kap in range(4 * nqb - 1, -1, -1):
            qb, tt = kap // 4, kap % 4
            st = t + 8 * (kap % 2)
            if hh == 1:
                for r in range(8):
                    A(f'v_accvgpr_read_b32 v{st + r}, a{8 * kap + r}')
                src = st
            else:
                src = vACC + 8 * kap
            for r in range(0, 8, 2):
                A(f'v_pk_mul_f32 {R("v", st + r, 2)}, {R("v", src + r, 2)}, s[48:49] op_sel_hi:[1,0]')
            for r in range(4):
                A(f'v_cvt_pk_bf16_f32 v{st + r}, v{st + 2 * r}, v{st + 2 * r + 1}')
            for r in range(4):
                A(f'v_accvgpr_write_b32 a{aQ + 64 * hh + 4 * kap + r}, v{st + r}')


def xlane_max_or_add(S, op, regsl, tmpl):
    A = S.a
    for sw in ('v_permlane32_swap_b32', 'v_permlane16_swap_b32'):
        for r, t in zip(regsl, tmpl):
            A(f'v_mov_b32 v{t}, v{r}')
        A('s_nop 1')
        for r, t in zip(regsl, tmpl):
            A(f'{sw} v{r}, v{t}')
        A('s_nop 1')
        for r, t in zip(regsl, tmpl):
            A(f'{op} v{r}, v{r}, v{t}')


def standin(S, nqb):
    A = S.a
    mx = []
    for hh in range(2):
        for qb in range(nqb):
            d = vACC + 4 * (hh * 4 + qb)
            for t in range(4):
                A(mfma(R('v', d, 4), R('v', vKPRE + 16 * hh + 4 * t, 4), R('a', aQ + 64 * hh + 16 * qb + 4 * t, 4),
                       '0' if t == 0 else R('v', d, 4)))
            mx.append(d)
    A('s_nop 7')
    for d in mx:
        A(f'v_max3_f32 v{d}, v{d}, v{d + 1}, v{d + 2}')
    for d in mx:
        A(f'v_max_f32 v{d}, v{d}, v{d + 3}')
    xlane_max_or_add(S, 'v_max_f32', mx, [d + 1 for d in mx])
    set_negm(S, nqb, mx)


def set_negm(S, nqb, mx):
    A = S.a
    for qb in range(nqb):
        for r in range(4):
            A(f'v_sub_f32 v{vNEG + 4 * qb + r}, 0, v{mx[qb]}')
        A(f'v_sub_f32 v{vM2 + qb}, 0, v{mx[nqb + qb]}')


def kv_dma(tau):
    out = []
    fl = OPT['kvflags']
    for j in range(8):
        so = sKOFF if j < 4 else sKOFF2
        ioff = 1024 * (j % 4)
        m0 = (4352 if j >= 4 else 0) + 64 * (j % 4)
        out.append((I(f's_add_u32 m0, {sDSLOT}, {m0}'),
                    I(f'buffer_load_dwordx4 v{vKD}, {SRD_K}, {so} offen offset:{ioff} {fl} lds', tag=('KV', tau))))
    for kb in range(2):
        for rho in range(4):
            so = sKOFF if kb == 0 else sKOFF2
            m0 = 8704 + kb * 4352 + 832 * rho
            out.append((I(f's_add_u32 m0, {sDSLOT}, {m0}'),
                        I(f'buffer_load_dwordx4 v{vVD}, {SRD_V}, {so} offen offset:{256 * rho} {fl} lds', tag=('KV', tau))))
    return out


def kv_advance():
    return [I(f's_add_u32 {sKOFF}, {sKOFF}, 8192'),
            I(f's_add_u32 {sKOFF2}, {sKOFF2}, 8192'),
            I(f's_add_u32 {sDSLOT}, {sDSLOT}, {SLOT}'),
            I(f's_cmp_eq_u32 {sDSLOT}, {NRING * SLOT}'),
            I(f's_cselect_b32 {sDSLOT}, 0, {sDSLOT}')]


def kv_prologue(S, nqb):
    A = S.a
    if nqb == 3:
        A(f's_mov_b32 {sDSLOT}, 0')
        A(f's_mov_b32 {sKOFF}, 0')
        A(f's_mov_b32 {sKOFF2}, 4096')
        for tau in range(DIST - 1):
            for m, d in kv_dma(tau):
                A(m); A('s_nop 0'); A(d)
            S.ext(kv_advance())


def k_read(tau, kb, t):
    off = (tau % 2) * SLOT + kb * 4352 + 64 * t
    d = aK + 32 * (tau % 2) + 16 * kb + 4 * t
    return I(f'ds_read_b128 {R("a", d, 4)}, v{vKA} offset:{off}', tag=('Kr', tau))


def v_read(tau, db, e):
    off = (tau % 2) * SLOT + 8704 + e * 4352 + 32 * db
    d = aV + 32 * (tau % 2) + 4 * db + 2 * e
    return I(f'ds_read_b64_tr_b16 {R("a", d, 2)}, v{vVA0 if db % 2 == 0 else vVA1} offset:{off}', tag=('Vr', tau))


def o_epilogue_items(nqb, hh, qb, packed):
    L = []
    inv = vLT + qb
    so = qb * 131072 + hh * 4096
    L.append(I(f's_mov_b32 {sOOFF}, {so}'))
    for t in range(4):
        st = vE + 4 * (t % 2)
        src = vACC + 32 * qb + 8 * t
        if packed:
            for r in range(0, 8, 2):
                L.append(I(f'v_pk_mul_f32 {R("v", src + r, 2)}, {R("v", src + r, 2)}, {R("v", inv & ~1, 2)} op_sel:[0,{inv & 1}] op_sel_hi:[1,{inv & 1}]'))
        else:
            for r in range(8):
                L.append(I(f'v_mul_f32 v{src + r}, v{src + r}, v{inv}'))
        for r in range(4):
            L.append(I(f'v_cvt_pk_bf16_f32 v{st + r}, v{src + 2 * r}, v{src + 2 * r + 1}'))
        L.append(I(f'buffer_store_dwordx4 {R("v", st, 4)}, v{vOST}, {SRD_O}, {sOOFF} offen offset:{1024 * t}', tag=('O', hh)))
    return L


def l_finish_items(qb):
    l0, l1, lt, tmp = vL + 2 * qb, vL + 2 * qb + 1, vLT + qb, vT
    L = [I(f'v_add_f32 v{lt}, v{l0}, v{l1}'),
         I(f'v_mov_b32 v{l0}, 0'),
         I(f'v_mov_b32 v{l1}, 0'),
         I(f'v_mov_b32 v{tmp}, v{lt}'),
         I('s_nop 1'),
         I(f'v_permlane32_swap_b32 v{lt}, v{tmp}'),
         I('s_nop 1'),
         I(f'v_add_f32 v{lt}, v{lt}, v{tmp}'),
         I(f'v_mov_b32 v{tmp}, v{lt}'),
         I('s_nop 1'),
         I(f'v_permlane16_swap_b32 v{lt}, v{tmp}'),
         I('s_nop 1'),
         I(f'v_add_f32 v{lt}, v{lt}, v{tmp}'),
         I(f'v_cmp_nge_f32 vcc, {LTHRESH:#x}, v{lt}'),
         I(f'v_rcp_f32 v{lt}, v{lt}'),
         I('s_nop 1'),
         I(f's_or_b64 {sBAD}, {sBAD}, vcc')]
    return L


def attention(S, nqb, v3):
    A = S.a
    N = 64 * nqb
    dmawave = (nqb == 3)
    A(f'L_attn{v3}:')
    for qb in range(nqb):
        A(f'v_mov_b32 v{vL + 2 * qb}, 0')
        A(f'v_mov_b32 v{vL + 2 * qb + 1}, 0')
    A(f's_mov_b32 {sRBASE}, 0')
    A(f'v_mov_b32 v{vKA}, v{vKL}')
    A(f'v_mov_b32 v{vVA0}, v{vVL0}')
    A(f'v_mov_b32 v{vVA1}, v{vVL1}')

    PFS = int(OPT['pf'])
    if PFS and nqb == 4:
        A(f's_lshl_b32 {sTMP}, {sW}, 6')
        A(f'v_add_u32 v62, {sTMP}, v{vLANE}')
        A(f'v_mul_u32_u24 v62, {PFS}, v62')
        A(f's_mov_b32 s69, {(-int(OPT["pfstart"]) * 192 * PFS) & 0xffffffff:#x}')

    def unit(u):
        return divmod(u, nqb)

    extra = {}

    def add_extra(sig, lst):
        extra.setdefault(sig, []).extend(lst)

    for qb in range(nqb):
        se = 31 * nqb + qb
        add_extra(se, [I(f'v_mov_b32 v{vNEG + 4 * qb + r}, v{vM2 + qb}') for r in range(4)])
        add_extra(se, l_finish_items(qb))
        items = o_epilogue_items(nqb, 0, qb, False)
        half = 1 + 2 * 13
        add_extra(se + 1, items[:half])
        add_extra(se + 2, items[half:])

    def frame_reads(tau):
        tt = tau + 1
        if tt > 63:
            return []
        return [k_read(tt, kb, t) for kb in range(2) for t in range(4)] + [v_read(tt, db, e) for db in range(8) for e in range(2)]

    def emit_slot(sig, mem, salus):
        mf = [None] * 16
        u = sig + 2
        if 0 <= u < N:
            tau, qb = unit(u)
            hd = tau // 32
            sp = u % 2
            for kb in range(2):
                d = R('v', vS + 8 * sp + 4 * kb, 4)
                for t in range(4):
                    mf[8 * kb + t] = mfma(d, R('a', aK + 32 * (tau % 2) + 16 * kb + 4 * t, 4),
                                          R('a', aQ + 64 * hd + 16 * qb + 4 * t, 4),
                                          R('v', vNEG + 4 * qb, 4) if t == 0 else d)
                mf[8 * kb].need = set(('a', aK + 32 * (tau % 2) + 16 * kb + r) for r in range(16))
        u = sig
        if 0 <= u < N:
            tau, qb = unit(u)
            pp = u % 2
            for db in range(8):
                d = R('v', vACC + 32 * qb + 4 * db, 4)
                mf[4 + 8 * (db // 4) + db % 4] = mfma(d, R('a', aV + 32 * (tau % 2) + 4 * db, 4), R('v', vP + 4 * pp, 4),
                                                      '0' if tau % 32 == 0 else d)
            for hb in range(2):
                mf[4 + 8 * hb].need = set(('a', aV + 32 * (tau % 2) + 16 * hb + r) for r in range(16))
        gaps = [[] for _ in range(16)]
        u = sig + 1
        if 0 <= u < N:
            tau, qb = unit(u)
            s0 = vS + 8 * (u % 2)
            p0 = vP + 4 * (u % 2)
            l0 = vL + 2 * qb
            E = [0, 1, 3, 5, 7, 9, 11, 13]
            for k, g in enumerate(E):
                gaps[g].append(I(f'v_exp_f32 v{s0 + k}, v{s0 + k}'))
            for k, g in enumerate([2, 6, 10, 14]):
                gaps[g].append(I(f'v_cvt_pk_bf16_f32 v{p0 + k}, v{s0 + 2 * k}, v{s0 + 2 * k + 1}'))
            for k, g in enumerate([4, 8, 12, 15]):
                gaps[g].append(I(f'v_add_f32 v{l0}, v{l0}, v{s0 + 2 * k}'))
                gaps[g].append(I(f'v_add_f32 v{l0 + 1}, v{l0 + 1}, v{s0 + 2 * k + 1}'))
        for g in range(16):
            gaps[g] = [x for x in gaps[g] if not any(dd and x.mn.startswith(dd) for dd in OPT['drop'].split(','))]
        nrd = sum(1 for g in range(16) for x in mem.get(g, []) if x.kind == 'ds')
        salus = dict(salus)
        salus[15] = [P_lgkeep(min(nrd, 6))] + salus.get(15, [])
        for g in range(16):
            gaps[g] = salus.get(g, []) + mem.get(g, []) + gaps[g]
        ex = extra.get(sig, [])
        per = (len(ex) + 15) // 16
        k = 0
        for g in range(16):
            if mf[g] is not None:
                A(mf[g])
            S.ext(gaps[g])
            if ex:
                S.ext(ex[k:k + per]); k += per

    mempos4 = [0, 1, 2, 6, 10, 14]
    for tau in range(-1, 64):
        if tau % 2 == 1 and tau >= 1:
            S.mark('att', tau)
        elif tau in (-1, 0):
            S.mark('attp', tau)
        elif tau in (31, 32, 63):
            pass
        slots = list(range(nqb * tau, nqb * tau + nqb)) if tau >= 0 else [-2, -1]
        reads = frame_reads(tau)
        dm = kv_dma(tau + DIST) if (dmawave and tau + DIST <= 63 + DIST and tau < 63) else []
        if OPT['att_nodma'] and tau >= 0:
            dm = []
        head = []
        if tau + 1 <= 63:
            if dmawave and not (OPT['att_novm'] and tau >= 0):
                head.append(P_vmwait(lambda t, tt=tau + 1: t == ('KV', tt)))
            if not (OPT['att_nobar'] and tau >= 0):
                head.append(I('s_barrier'))
        upd = []
        if tau % 2 == 1 and tau + 1 <= 63 and tau >= 1:
            pass
        S.ext(head)
        if tau == -1:
            for r in reads[:8]:
                A(r)
            reads = reads[8:]
        nsl = len(slots)
        mem = [dict() for _ in slots]
        sal = [dict() for _ in slots]
        if nqb == 4 and tau >= 0:
            pos = [(j, g) for j in range(4) for g in mempos4]
        elif nqb == 4:
            pos = [(j, g) for j in range(2) for g in (0, 1, 2, 4, 6, 8, 10, 14)]
        elif tau >= 0:
            pos = [(j, g) for j in range(3) for g in (0, 1, 2, 4, 6, 8, 10, 14)]
        else:
            pos = [(j, g) for j in range(2) for g in (0, 1, 2, 4, 6, 8, 10, 14)]
        if OPT['att_nolds'] and tau >= 1:
            reads = []
        for r, (j, g) in zip(reads, pos):
            mem[j].setdefault(g, []).append(r)
        if dm and tau == -1:
            for m, d in dm:
                A(m); A('s_nop 0'); A(d)
        elif dm:
            dpos = [(j, g) for j in range(nsl) for g in (3, 5, 7, 9, 11, 13)][:16]
            for (m, d), (j, g) in zip(dm, dpos):
                mem[j].setdefault(g, []).append(d)
                sal[j].setdefault(g - 1, []).append(m)
        for j, sig in enumerate(slots):
            if j == nsl - 1 and tau % 2 == 0:
                extra.setdefault(sig, [])
                ups = [I(f's_add_u32 {sRBASE}, {sRBASE}, {2 * SLOT}'),
                       I(f's_cmp_eq_u32 {sRBASE}, {NRING * SLOT}'),
                       I(f's_cselect_b32 {sRBASE}, 0, {sRBASE}')]
                if dmawave:
                    sal[j].setdefault(14, []).extend(ups)
                else:
                    sal[j].setdefault(3, []).append(ups[0])
                    sal[j].setdefault(5, []).append(ups[1])
                    sal[j].setdefault(7, []).append(ups[2])
                mem[j].setdefault(15, []).extend([I(f'v_add_u32 v{vKA}, {sRBASE}, v{vKL}'),
                                                  I(f'v_add_u32 v{vVA0}, {sRBASE}, v{vVL0}'),
                                                  I(f'v_add_u32 v{vVA1}, {sRBASE}, v{vVL1}')])
            if j == nsl - 1 and dm:
                adv = kv_advance()
                for k, ins in enumerate(adv):
                    mem[j].setdefault(15, []).append(ins)
            if PFS and nqb == 4 and j == 1 and tau % 2 == 1 and int(OPT['pfloop']) <= tau < int(OPT['pfloop']) + 30:
                pf = I(f'buffer_load_dword v63, v62, s[52:55], s69 offen {OPT["pfflags"]}')
                pf.wr = set()
                mem[j].setdefault(4, []).append(pf)
                sal[j].setdefault(9, []).append(I(f's_add_u32 s69, s69, {192 * PFS}'))
            if j == nsl - 1 and tau % 2 == 0 and (2 <= tau <= 30 or 34 <= tau <= 62):
                mem[j].setdefault(15, []).extend([I(f's_sub_u32 {sCNT}, {sCNT}, 1'), I(f's_cmp_lg_u32 {sCNT}, 0')])
            emit_slot(sig, mem[j], sal[j])
    S.mark('attend', 0)
    A('s_nop 7')
    for qb in range(nqb):
        S.ext(l_finish_items(qb))
    for qb in range(nqb):
        S.ext(o_epilogue_items(nqb, 1, qb, True))


def true_max_pass(S, nqb, v3):
    A = S.a
    A(f'v_lshrrev_b32 v27, 4, v{vLANE}')
    A(f'v_and_b32 v28, 15, v{vLANE}')
    A('v_lshlrev_b32 v31, 8, v28')
    A('v_lshl_add_u32 v31, v27, 4, v31')
    mx = [vACC + 64 + i for i in range(2 * nqb)]
    for hh in range(2):
        for qb in range(nqb):
            A(f'v_mov_b32 v{mx[hh * nqb + qb]}, 0xff7fffff')
        A(f's_mov_b32 {sTMP}, {hh * 262144}')
        A(f's_mov_b32 {sCNT}, 64')
        A(f'L_tm{v3}_{hh}:')
        for t in range(4):
            A(f'buffer_load_dwordx4 {R("v", vKPRE + 4 * t, 4)}, v31, {SRD_K}, {sTMP} offen offset:{64 * t}')
        A('s_waitcnt vmcnt(0)')
        for qb in range(nqb):
            d = vACC + 4 * qb
            for t in range(4):
                A(mfma(R('v', d, 4), R('v', vKPRE + 4 * t, 4), R('a', aQ + 64 * hh + 16 * qb + 4 * t, 4), '0' if t == 0 else R('v', d, 4)))
        A('s_nop 7')
        for qb in range(nqb):
            d = vACC + 4 * qb
            m = mx[hh * nqb + qb]
            A(f'v_max3_f32 v{m}, v{m}, v{d}, v{d + 1}')
            A(f'v_max3_f32 v{m}, v{m}, v{d + 2}, v{d + 3}')
        A(f's_add_u32 {sTMP}, {sTMP}, 4096')
        A(f's_sub_u32 {sCNT}, {sCNT}, 1')
        A(f's_cmp_lg_u32 {sCNT}, 0')
        A(f's_cbranch_scc1 L_tm{v3}_{hh}')
    xlane_max_or_add(S, 'v_max_f32', mx, [vACC + 80 + i for i in range(2 * nqb)])
    set_negm(S, nqb, mx)


def k1_variant(nqb):
    v3 = '3' if nqb == 3 else ''
    S = Stream()
    A = S.a
    qproj(S, nqb, None)
    stamp(S, 2)
    S.lgwait0()
    A('s_barrier')
    kv_prologue(S, nqb)
    q_epilogue(S, nqb)
    if OPT['dump'] == 'q':
        A('s_load_dwordx2 s[64:65], s[0:1], 96')
        A('s_waitcnt lgkmcnt(0)')
        A('s_add_u32 s48, s64, 0x4000000'); A('s_addc_u32 s49, s65, 0'); A('s_mov_b32 s50, 0x4000000'); A('s_mov_b32 s51, 0x20000')
        A(f's_lshl_b32 s52, s2, 2'); A(f's_add_u32 s52, s52, {sW}'); A('s_lshl_b32 s52, s52, 15')
        A(f'v_lshlrev_b32 v27, 2, v{vLANE}')
        for r in range(128):
            A(f'v_accvgpr_read_b32 v28, a{r}')
            A(f'buffer_store_dword v28, v27, s[48:51], s52 offen')
            A('s_add_u32 s52, s52, 256')
            A('s_waitcnt vmcnt(0)')
    S.vmwait(lambda t: t is not None and t[0] == 'KP')
    standin(S, nqb)
    stamp(S, 3)
    attention(S, nqb, v3)
    stamp(S, 4)
    A(f's_cmp_eq_u32 {sFB}, {0 if OPT["nofb"] else 1}')
    A(f's_cbranch_scc1 L_done{v3}')
    A(f's_cmp_eq_u64 {sBAD}, 0')
    A(f's_cbranch_scc1 L_ok{v3}')
    A('v_mov_b32 v27, 1')
    A(f'v_mov_b32 v28, {FLAG_ADDR}')
    A('ds_write_b32 v28, v27')
    A(f'L_ok{v3}:')
    A('s_waitcnt lgkmcnt(0)')
    A('s_barrier')
    A(f'v_mov_b32 v28, {FLAG_ADDR}')
    A('ds_read_b32 v27, v28')
    A('s_waitcnt lgkmcnt(0)')
    A('v_readfirstlane_b32 s48, v27')
    A('s_nop 3')
    A('s_cmp_eq_u32 s48, 0')
    A(f's_cbranch_scc1 L_done{v3}')
    A('s_waitcnt vmcnt(0)')
    A(f's_mov_b32 {sFB}, 1')
    true_max_pass(S, nqb, v3)
    A('s_barrier')
    kv_prologue(S, nqb)
    A('s_waitcnt vmcnt(0)')
    A(f's_branch L_attn{v3}')
    A(f'L_done{v3}:')
    if OPT['stamps']:
        stamp(S, 5)
        A('s_load_dwordx2 s[64:65], s[0:1], 96')
        A('s_waitcnt lgkmcnt(0)')
        A('s_add_u32 s48, s64, 0x8000000'); A('s_addc_u32 s49, s65, 0'); A('s_mov_b32 s50, 0x100000'); A('s_mov_b32 s51, 0x20000')
        A(f's_lshl_b32 s52, s2, 2'); A(f's_add_u32 s52, s52, {sW}'); A('s_lshl_b32 s52, s52, 6')
        A('v_mov_b32 v28, 0')
        for k in range(6):
            A(f'v_mov_b32 v27, s{sST + 4 * k}')
            A(f'buffer_store_dword v27, v28, s[48:51], s52 offen offset:{4 * k}')
            A(f'v_mov_b32 v27, s{sST + 4 * k + 2}')
            A(f'buffer_store_dword v27, v28, s[48:51], s52 offen offset:{4 * k + 32}')
        A('s_waitcnt vmcnt(0)')
    A('s_endpgm')
    items, vmq, lgq = resolve(S.it)
    items, nfix = check_hazards(items, True, 'k1_%d' % nqb)
    check_scc(items, 'k1_%d' % nqb)
    loops = {'qp': (0, 6, f'L_qp{v3}', sCNT)}
    txt = fold2(items, v3)
    return txt


def fold2(items, v3):
    segs = split_marks(items)
    out = []

    def fold(group, label):
        t0 = text(group[0][2])
        for g in group[1:]:
            t = text(g[2])
            if t != t0:
                for a, b in zip(t0, t):
                    if a != b:
                        print(f'loop {label}: seg {group[0][0]}{group[0][1]} vs {g[1]} differ:\n   {a}\n   {b}')
                        break
                if len(t) != len(t0):
                    print(f'loop {label}: length differs {len(t0)} vs {len(t)} (iter {g[1]})')
                return None
        lastscc = None
        for ln in t0:
            mn = ln.split()[0]
            if re.match(r's_(add|sub|cmp|and|or|xor|lshl|lshr|min|max|bfe|not|andn2)', mn):
                lastscc = ln
        assert lastscc.startswith('s_cmp_lg_u32 ' + sCNT), lastscc
        return [f's_mov_b32 {sCNT}, {len(group)}', f'{label}:'] + t0 + [f's_cbranch_scc1 {label}']

    def fold_auto(group, label):
        for p in range(len(group)):
            r = fold(group[p:], label) if len(group) - p > 1 else None
            if r is not None:
                res = []
                for g in group[:p]:
                    res += [ln for ln in text(g[2])]
                print(f'{label}: peeled {p}, loop x{len(group) - p}, body {len(r)} lines')
                return res + r
        raise SystemExit('cannot fold ' + label)

    i = 0
    while i < len(segs):
        name, idx, its = segs[i]
        if name == 'qp' and idx == 0:
            grp = [s for s in segs if s[0] == 'qp' and s[1] <= 6]
            out += fold_auto(grp, f'L_qp{v3}')
            i += len(grp)
            continue
        if name == 'att' and idx in (1, 33):
            grp = [s for s in segs if s[0] == 'att' and idx <= s[1] <= idx + 28]
            out += fold_auto(grp, f'L_at{v3}_{idx}')
            i += len(grp)
            continue
        out += text(its)
        i += 1
    return out


def descriptor(name, vg=512, acc_off=256):
    return ['.section .rodata,"a"', '.p2align 6', f'.amdhsa_kernel {name}',
            f'  .amdhsa_next_free_vgpr {vg}', '  .amdhsa_next_free_sgpr 102', f'  .amdhsa_accum_offset {acc_off}',
            '  .amdhsa_group_segment_fixed_size 0', '  .amdhsa_kernarg_size 104', '  .amdhsa_user_sgpr_count 2',
            '  .amdhsa_user_sgpr_kernarg_segment_ptr 1', '  .amdhsa_system_sgpr_workgroup_id_x 1', '.end_amdhsa_kernel']


HEADER = open('concat_heads__mha_block_cached__gqa_block_cached__near_ridge.s.ref').read().split('; Override launch')[0] \
    if os.path.exists('concat_heads__mha_block_cached__gqa_block_cached__near_ridge.s.ref') else ''


def main(path):
    import gen2
    L = [HEADER.rstrip('\n')] if HEADER else []
    L.append(f'; @launch kernel={KN} grid=(256,1,1) block=(256,1,1) lds=163840')
    if not OPT['only_k1']:
        L.append(f'; @launch kernel={K2} grid=(240,1,1) block=(256,1,1) lds=163840')
    L += ['.amdgcn_target "amdgcn-amd-amdhsa--gfx950"', '.text', f'.globl {KN}', '.p2align 8', f'.type {KN},@function', f'{KN}:']
    S = Stream()
    k1_setup(S)
    its, _, _ = resolve(S.it)
    its, _ = check_hazards(its, True, 'setup')
    L += text(its)
    L += k1_variant(4)
    L.append('L_w3:')
    L += k1_variant(3)
    L += ['L_end1:', 's_endpgm']
    if not OPT['only_k1']:
        L += [f'.globl {K2}', '.p2align 8', f'.type {K2},@function', f'{K2}:']
        L += gen2.kernel2(OPT)
    L += descriptor(KN)
    if not OPT['only_k1']:
        L += descriptor(K2)
    s = '\n'.join(L) + '\n'
    open(path, 'w').write(s)
    print('wrote', path, len(s), 'bytes', len(L), 'lines')


if __name__ == '__main__':
    for a in sys.argv[2:]:
        k, v = a.split('=')
        OPT[k] = {'True': True, 'False': False, 'None': None}.get(v, v.replace('+', ' ') if isinstance(v, str) else v)
    main(sys.argv[1])
```

```python
import re
from asmlib import *

MF = 'v_mfma_f32_16x16x32_bf16'


def R(cls, base, n=1):
    return f'{cls}{base}' if n == 1 else f'{cls}[{base}:{base + n - 1}]'


WSLOT = 16384
NSTG = 64

SRD_O, SRD_W, SRD_C = 's[8:11]', 's[12:15]', 's[16:19]'
sW = 's3'
sWOFF, sOOFF, sCNT, sTMP, sW4096 = ['s%d' % i for i in range(28, 33)]
vLANE = 1
vWD = 2
vOD = 6
vA = 8
vST = 32
vT = 33
vFA = 40
NF = 8
vACC = 72


def kernel2(OPT):
    RING = int(OPT['k2ring'])
    PD = int(OPT['k2pd'])
    S = Stream()
    A = S.a
    def stamp(k):
        if OPT['stamps'] or OPT['dbgst']:
            A(f's_memtime s[{72 + 4 * k}:{72 + 4 * k + 1}]')
            A(f's_memrealtime s[{72 + 4 * k + 2}:{72 + 4 * k + 3}]')
            A('s_waitcnt lgkmcnt(0)')
    A('s_cmp_ge_u32 s2, 240')
    A('s_cbranch_scc1 L_end2')
    A('s_load_dwordx2 s[44:45], s[0:1], 32')
    A('s_load_dwordx2 s[46:47], s[0:1], 72')
    A('s_load_dwordx2 s[48:49], s[0:1], 80')
    A('s_load_dwordx2 s[50:51], s[0:1], 96')
    A('s_and_b32 s4, s2, 7')
    A('s_lshr_b32 s5, s2, 3')
    A('s_lshr_b32 s6, s4, 2')
    A('s_bfe_u32 s7, s4, 0x10001')
    A('s_mul_i32 s7, s7, 30')
    A('s_add_u32 s7, s7, s5')
    A('s_lshr_b32 s20, s7, 2')
    A('s_and_b32 s21, s7, 3')
    A('s_and_b32 s22, s4, 1')
    A('s_lshl_b32 s22, s22, 2')
    A('s_add_u32 s21, s21, s22')
    A(f'v_and_b32 v{vLANE}, 63, v0')
    A('v_lshrrev_b32 v33, 6, v0')
    A('s_nop 0')
    A(f'v_readfirstlane_b32 {sW}, v33')
    g, n, r_, c_ = 'v34', 'v35', 'v36', 'v37'
    A(f'v_lshrrev_b32 {g}, 4, v{vLANE}')
    A(f'v_and_b32 {n}, 15, v{vLANE}')
    A(f'v_lshrrev_b32 {r_}, 2, {n}')
    A(f'v_and_b32 {c_}, 3, {n}')
    A(f'v_lshlrev_b32 v38, 1, {g}')
    A(f'v_xor_b32 v38, {n}, v38')
    A('v_xor_b32 v39, 8, v38')
    A(f's_lshl_b32 s28, {sW}, 15')
    A(f'v_lshlrev_b32 v33, 11, {g}')
    A('v_add_u32 v33, s28, v33')
    for x in range(4):
        A(f'v_lshl_add_u32 v{vWD + x}, v{38 if x % 2 == 0 else 39}, 4, v33')
        if x:
            A(f'v_add_u32 v{vWD + x}, {8192 * x}, v{vWD + x}')
    A(f's_lshl_b32 s28, {sW}, 18')
    A(f'v_lshlrev_b32 v{vOD}, 4, v{vLANE}')
    A(f'v_add_u32 v{vOD}, s28, v{vOD}')
    A(f'v_add_u32 v{vOD + 1}, 131072, v{vOD}')
    A(f's_lshl_b32 {sW4096}, {sW}, 12')
    A('s_waitcnt lgkmcnt(0)')
    stamp(0)
    A('s_cmp_eq_u32 s6, 0')
    A('s_cselect_b64 s[44:45], s[44:45], s[46:47]')
    if OPT['k2same']:
        A('s_mov_b32 s20, 0'); A('s_mov_b32 s21, 0')
    A('s_mul_i32 s22, s6, 120'); A('s_lshl_b32 s23, s20, 3'); A('s_add_u32 s22, s22, s23'); A('s_lshl_b32 s22, s22, 17')
    A('s_add_u32 s8, s50, s22'); A('s_addc_u32 s9, s51, 0'); A('s_mov_b32 s10, 0x100000'); A('s_mov_b32 s11, 0x20000')
    A('s_lshl_b32 s22, s21, 8')
    A('s_add_u32 s12, s44, s22'); A('s_addc_u32 s13, s45, 0'); A('s_sub_u32 s14, 8388608, s22'); A('s_mov_b32 s15, 0x20000')
    A('s_lshl_b32 s23, s20, 19'); A('s_lshl_b32 s24, s6, 11'); A('s_add_u32 s23, s23, s24'); A('s_add_u32 s23, s23, s22')
    A('s_add_u32 s16, s48, s23'); A('s_addc_u32 s17, s49, 0'); A(f's_sub_u32 s18, {1920 * 4096}, s23'); A('s_mov_b32 s19, 0x20000')

    def oreg(s, ks, mi):
        return 16 * (s % RING) + 8 * ks + 4 * mi

    def group(s):
        out = []
        for x in range(4):
            out.append((I(f's_add_u32 m0, {sW4096}, {(s % RING) * WSLOT + x * 1024}'),
                        I(f'buffer_load_dwordx4 v{vWD + x}, {SRD_W}, {sWOFF} offen {OPT["k2wflags"]} lds', tag=('D', s))))
        for ks in range(2):
            for mi in range(2):
                out.append((None,
                            I(f'buffer_load_dwordx4 {R("a", oreg(s, ks, mi), 4)}, v{vOD + mi}, {SRD_O}, {sOOFF} offen offset:{ks * 1024} {OPT["k2oflags"]}', tag=('D', s))))
        return [out[0], out[4], out[1], out[5], out[2], out[6], out[3], out[7]]

    def adv():
        return [I(f's_add_u32 {sWOFF}, {sWOFF}, 131072'), I(f's_add_u32 {sOOFF}, {sOOFF}, 2048')]

    A(f's_mov_b32 {sWOFF}, 0')
    A(f's_mov_b32 {sOOFF}, 0')
    for s in range(RING - 1):
        for m, d in group(s):
            if m is not None:
                A(m); A('s_nop 0')
            A(d)
        S.ext(adv())
    A(f'v_lshl_add_u32 v38, {g}, 2, {r_}')
    A('v_and_b32 v39, 7, v38')
    A('v_lshlrev_b32 v38, 8, v38')
    A(f'v_lshl_add_u32 v38, {c_}, 3, v38')
    A('v_lshl_add_u32 v38, v39, 5, v38')
    NG = (RING + 3) // 4
    for nb in range(8):
        A(f'v_xor_b32 v{vA + nb}, {32 * nb}, v38')
    for gg in range(1, NG):
        for nb in range(8):
            A(f'v_add_u32 v{vA + 8 * gg + nb}, {65536 * gg}, v{vA + nb}')
    A(f's_lshl_b32 s22, {sW}, 17')
    A(f'v_lshlrev_b32 v{vST}, 12, {n}')
    A(f'v_and_b32 v38, 1, {g}')
    A(f'v_lshl_add_u32 v{vST}, v38, 5, v{vST}')
    A(f'v_lshrrev_b32 v38, 1, {g}')
    A(f'v_lshl_add_u32 v{vST}, v38, 4, v{vST}')
    A(f'v_add_u32 v{vST}, s22, v{vST}')
    for r in range(64):
        A(f'v_mov_b32 v{vACC + r}, 0')

    def a_read(F, e):
        s, f = divmod(F, 16)
        ks, nb = divmod(f, 8)
        slot = s % RING
        off = (slot % 4) * WSLOT + (2 * ks + e) * 4096
        d = vFA + 4 * (F % NF) + 2 * e
        return I(f'ds_read_b64_tr_b16 {R("v", d, 2)}, v{vA + 8 * (slot // 4) + nb} offset:{off}', tag=('r', F))

    S.vmwait(lambda t: t == ('D', 0))
    A('s_barrier')
    stamp(1)
    for F in range(PD):
        A(a_read(F, 0)); A(a_read(F, 1))

    NGAP = NSTG * 32
    pre = [[] for _ in range(NGAP)]
    mem = [[] for _ in range(NGAP)]
    post = [[] for _ in range(NGAP)]
    P0 = 32 - 2 * PD
    for F in range(NSTG * 16 - PD):
        mem[2 * F].append(a_read(F + PD, 0))
        mem[2 * F + 1].append(a_read(F + PD, 1))
    for s in range(NSTG - 1):
        gi = 32 * s + P0 - 1
        post[gi] += [P_vmwait(lambda t, s=s: t == ('D', s + 1)), I('s_barrier')]
        G = s + RING - 1
        if G < NSTG:
            ops = group(G)
            for k, (m, d) in enumerate(ops):
                gg = 32 * s + P0 + 1 + 4 * k
                if m is not None:
                    pre[gg - 1].append(m)
                mem[gg].append(d)
            last = 32 * s + P0 + 1 + 4 * 7
            a2 = adv()
            pre[last + 1].append(a2[0])
            pre[last + 2].append(a2[1])
    for s in range(NSTG):
        if s % RING == 0:
            S.mark('body', s // RING)
        for j in range(32):
            F = 16 * s + j // 2
            ks, nb = divmod(j // 2, 8)
            mi = j % 2
            d = R('v', vACC + 8 * nb + 4 * mi, 4)
            m = I(f'{MF} {d}, {R("v", vFA + 4 * (F % NF), 4)}, {R("a", oreg(s, ks, mi), 4)}, {d}')
            if j % 4 == 0:
                m.need = set(('v', vFA + 4 * ((F + q) % NF) + r) for q in range(2) for r in range(4))
            if not OPT['k2_nomf']:
                A(m)
            gi = 32 * s + j
            gl = pre[gi] + mem[gi] + post[gi]
            if j == 31 and s % RING == RING - 1:
                gl = gl + [I(f's_sub_u32 {sCNT}, {sCNT}, 1'), I(f's_cmp_lg_u32 {sCNT}, 0')]
            if OPT['k2_nodma']:
                gl = [x for x in gl if x.kind not in ('dma', 'vmem')]
            if OPT['k2_now']:
                gl = [x for x in gl if x.kind != 'dma']
            if OPT['k2_noo']:
                gl = [x for x in gl if x.kind != 'vmem']
            if OPT['k2_nolds']:
                gl = [x for x in gl if x.kind != 'ds']
            if OPT['k2_nobar']:
                gl = [x for x in gl if x.kind != 'bar']
            S.ext(gl)
    S.mark('end', 0)
    stamp(2)
    A('s_nop 7')
    k = 0
    for mi in range(2):
        A(f's_mov_b32 {sTMP}, {mi * 65536}')
        for p in range(4):
            st = vFA + 4 * (k % 4); k += 1
            for q in range(2):
                d = vACC + 8 * (2 * p + q) + 4 * mi
                A(f'v_cvt_pk_bf16_f32 v{st + 2 * q}, v{d}, v{d + 1}')
                A(f'v_cvt_pk_bf16_f32 v{st + 2 * q + 1}, v{d + 2}, v{d + 3}')
            A('s_nop 1')
            A(f'v_permlane16_swap_b32 v{st}, v{st + 2}')
            A(f'v_permlane16_swap_b32 v{st + 1}, v{st + 3}')
            A(f'buffer_store_dwordx4 {R("v", st, 4)}, v{vST}, {SRD_C}, {sTMP} offen offset:{64 * p}')
    if OPT['stamps']:
        A('s_waitcnt vmcnt(0)')
        stamp(3)
        A('s_add_u32 s48, s50, 0x8100000'); A('s_addc_u32 s49, s51, 0'); A('s_mov_b32 s50, 0x100000'); A('s_mov_b32 s51, 0x20000')
        A(f's_lshl_b32 s52, s2, 2'); A(f's_add_u32 s52, s52, {sW}'); A('s_lshl_b32 s52, s52, 6')
        A('v_mov_b32 v28, 0')
        for k in range(4):
            A(f'v_mov_b32 v27, s{72 + 4 * k}')
            A(f'buffer_store_dword v27, v28, s[48:51], s52 offen offset:{4 * k}')
            A(f'v_mov_b32 v27, s{72 + 4 * k + 2}')
            A(f'buffer_store_dword v27, v28, s[48:51], s52 offen offset:{4 * k + 32}')
        A('s_waitcnt vmcnt(0)')
    if OPT['dbgst']:
        A('s_waitcnt vmcnt(0)')
        stamp(3)
        A('s_lshl_b32 s52, s2, 2'); A(f's_or_b32 s52, s52, {sW}')
        A('s_cmp_lg_u32 s52, 0')
        A('s_cbranch_scc1 L_end2')
        A('s_load_dwordx2 s[48:49], s[0:1], 88')
        A('s_waitcnt lgkmcnt(0)')
        A('s_sub_u32 s48, s48, 512'); A('s_subb_u32 s49, s49, 0')
        A('s_mov_b32 s50, 256'); A('s_mov_b32 s51, 0x20000')
        A('v_mov_b32 v28, 0')
        for k in range(4):
            A(f'v_mov_b32 v27, s{72 + 4 * k + 2}')
            A(f'buffer_store_dword v27, v28, s[48:51], 0 offen offset:{32 + 4 * k}')
        A('s_waitcnt vmcnt(0)')
    A('L_end2:')
    A('s_endpgm')
    items, vmq, lgq = resolve(S.it)
    items, nfix = check_hazards(items, True, 'k2')
    check_scc(items, 'k2')
    segs = split_marks(items)
    out = []
    grp = [s for s in segs if s[0] == 'body']
    texts = [text(g[2]) for g in grp]
    best = (0, 0)
    a = 0
    while a < len(texts):
        b = a
        while b + 1 < len(texts) and texts[b + 1] == texts[a]:
            b += 1
        if b - a > best[1] - best[0]:
            best = (a, b)
        a = b + 1
    print('k2 loop: bodies', best, 'of', len(texts))
    for (name, idx, its) in segs:
        if name == 'body' and best[0] <= idx <= best[1] and best[1] > best[0]:
            if idx == best[0]:
                out += [f's_mov_b32 {sCNT}, {best[1] - best[0] + 1}', 'L_k2:'] + text(its) + ['s_cbranch_scc1 L_k2']
        else:
            out += text(its)
    return out
```

```python
import sys, os, re
sys.path.insert(0, os.path.dirname(os.path.abspath(__file__)))
from asmlib import *

KN = "concat_heads__mha_block_cached__gqa_block_cached__near_ridge_kernel"
K2 = "outproj_kernel"

OPT = dict(
    dump=None,
    stamps=False,
    kvflags='nt',
    only_k1=False,
    nofb=False, drop='', att_nolds=False, att_nowait=False, att_noexp=False,
    att_nodma=False, att_nobar=False, att_novm=False, qp_nodma=False, qp_nobar=False,
    kvsame=False, wsame=False, wflags='', xflags='', k2wflags='', k2oflags='', k2same=False, pf=0, pfflags='', pfloop=33, pfq=0, kvpf=0, dbgst=False, w3test=False, pfstart=0, kvpfflags='', kvpfsrc='K', k2ring=8, k2pd=6, k2_nodma=False, k2_nomf=False, k2_wlin=False, k2_now=False, k2_noo=False, k2_nolds=False, k2_nobar=False, k2_novm=False,
)

MF = 'v_mfma_f32_16x16x32_bf16'


def R(cls, base, n=1):
    return f'{cls}{base}' if n == 1 else f'{cls}[{base}:{base + n - 1}]'


def mfma(d, a, b, c):
    return I(f'{MF} {d}, {a}, {b}, {c}')


SLOT = 17408
XW_PAR = 24576
X3_BASE = 139264
X3_PAR = 6144
WBEG = 3 * SLOT
WEND = 8 * SLOT
FLAG_ADDR = 163832
NRING = 8
DIST = 5

sW = 's3'
SRD_X, SRD_W, SRD_K, SRD_V, SRD_O = 's[8:11]', 's[12:15]', 's[16:19]', 's[20:23]', 's[24:27]'
sWRD, sWDMA, sWSOFF, sXSOFF, sCNT, sW4352, sXD0, sXD1, sNXT, sTMP = ['s%d' % i for i in range(28, 38)]
sDSLOT, sKOFF, sKOFF2, sRBASE, sFB, sOOFF, sT2 = ['s%d' % i for i in range(38, 45)]
sBAD = 's[46:47]'
sST = 72

vLANE = 1
vWD = 2
vXD = 6
vWL, vWA, vXA0, vXA1 = 14, 15, 16, 17
vKL, vVL0, vVL1, vKA, vVA0, vVA1, vKD, vVD, vOST = 18, 19, 20, 21, 22, 23, 24, 25, 26
vT = 27
vKPRE = 32
vS = 64
vP = 80
vL = 88
vNEG = 96
vM2 = 112
vLT = 116
vE = 120
vACC = 128
aQ = 0
aX = 128
aWF = 192
aK = 128
aV = 192

QSCALE = 0x3e0293ee
import struct, math
QSCALE = struct.unpack('<I', struct.pack('<f', math.log2(math.e) / math.sqrt(128.0)))[0]
LTHRESH = struct.unpack('<I', struct.pack('<f', 2.0 ** 30))[0]


def acc(hh, dt, qb):
    return R('v', vACC + 32 * qb + 4 * dt, 4) if hh == 0 else R('a', 32 * qb + 4 * dt, 4)


def stamp(S, k):
    if OPT['stamps'] or OPT['dbgst']:
        S.a(f's_memtime s[{sST + 4 * k}:{sST + 4 * k + 1}]')
        S.a(f's_memrealtime s[{sST + 4 * k + 2}:{sST + 4 * k + 3}]')
        S.a('s_waitcnt lgkmcnt(0)')


def k1_setup(S):
    A = S.a
    A('s_cmp_ge_u32 s2, 256')
    A('s_cbranch_scc1 L_end1')
    A('s_load_dwordx8 s[44:51], s[0:1], 0')
    A('s_load_dwordx8 s[56:63], s[0:1], 40')
    A('s_load_dwordx2 s[64:65], s[0:1], 96')
    if OPT['stamps']:
        A('s_load_dwordx2 s[66:67], s[0:1], 88')
    if OPT['pf'] or OPT['pfq']:
        A('s_load_dwordx2 s[52:53], s[0:1], 32')
        A('s_load_dwordx2 s[54:55], s[0:1], 72')
    A('s_and_b32 s4, s2, 7')
    A('s_lshr_b32 s5, s2, 3')
    A('s_lshr_b32 s6, s4, 2')
    A('s_bfe_u32 s7, s4, 0x10001')
    A('s_lshl_b32 s7, s7, 2')
    A('s_and_b32 s28, s5, 3')
    A('s_add_u32 s7, s7, s28')
    A('s_and_b32 s28, s4, 1')
    A('s_lshl_b32 s28, s28, 3')
    A('s_lshr_b32 s29, s5, 2')
    A('s_add_u32 s68, s28, s29')
    A(f'v_and_b32 v{vLANE}, 63, v0')
    A('v_lshrrev_b32 v27, 6, v0')
    A('s_nop 0')
    A(f'v_readfirstlane_b32 {sW}, v27')
    A('s_waitcnt lgkmcnt(0)')
    stamp(S, 0)
    A('s_cmp_eq_u32 s6, 0')
    A('s_cselect_b64 s[44:45], s[44:45], s[56:57]')
    A('s_cselect_b64 s[46:47], s[46:47], s[58:59]')
    A('s_cselect_b64 s[48:49], s[48:49], s[60:61]')
    A('s_cselect_b64 s[50:51], s[50:51], s[62:63]')
    if OPT['pf'] or OPT['pfq']:
        A('s_cselect_b64 s[52:53], s[52:53], s[54:55]')
        A('s_lshl_b32 s28, s7, 4'); A('s_add_u32 s28, s28, s68'); A('s_lshl_b32 s28, s28, 16')
        A('s_add_u32 s52, s52, s28'); A('s_addc_u32 s53, s53, 0')
        A('s_mov_b32 s54, 65536'); A('s_mov_b32 s55, 0x20000')
    A('s_mul_i32 s28, s7, 491520')
    if OPT['wsame']:
        A('s_mov_b32 s28, 0')
    A('s_add_u32 s8, s44, s28'); A('s_addc_u32 s9, s45, 0')
    A('s_mov_b32 s10, 491520'); A('s_mov_b32 s11, 0x20000')
    A('s_lshl_b32 s28, s68, 9')
    if OPT['wsame']:
        A('s_mov_b32 s28, 0')
    A('s_add_u32 s12, s50, s28'); A('s_addc_u32 s13, s51, 0')
    A('s_sub_u32 s14, 8388608, s28'); A('s_mov_b32 s15, 0x20000')
    A('s_lshl_b32 s28, s7, 5'); A('s_lshl_b32 s29, s68, 1'); A('s_add_u32 s28, s28, s29')
    A('s_lshl_b32 s28, s28, 18')
    if OPT['kvsame']:
        A('s_mov_b32 s28, 0')
    A('s_add_u32 s16, s46, s28'); A('s_addc_u32 s17, s47, 0')
    A('s_mov_b32 s18, 524288'); A('s_mov_b32 s19, 0x20000')
    A('s_add_u32 s20, s48, s28'); A('s_addc_u32 s21, s49, 0')
    A('s_mov_b32 s22, 524288'); A('s_mov_b32 s23, 0x20000')
    A('s_mul_i32 s28, s6, 120'); A('s_mul_i32 s29, s7, 15'); A('s_add_u32 s28, s28, s29')
    A('s_lshl_b32 s28, s28, 17')
    A('s_lshl_b32 s29, s68, 13')
    A('s_add_u32 s28, s28, s29')
    A('s_add_u32 s24, s64, s28'); A('s_addc_u32 s25, s65, 0')
    A(f's_sub_u32 s26, {15 * 131072}, s29'); A('s_mov_b32 s27, 0x20000')
    A(f'v_lshrrev_b32 v27, 4, v{vLANE}')
    A(f'v_and_b32 v28, 15, v{vLANE}')
    A('v_lshrrev_b32 v29, 2, v28')
    A('v_and_b32 v30, 3, v28')
    A(f's_lshl_b32 s28, {sW}, 17')
    A(f'v_lshlrev_b32 v{vWD}, 15, v27')
    A(f'v_lshl_add_u32 v{vWD}, v28, 4, v{vWD}')
    A(f'v_add_u32 v{vWD}, s28, v{vWD}')
    for r in range(1, 4):
        A(f'v_add_u32 v{vWD + r}, {8192 * r}, v{vWD}')
    A(f'v_lshrrev_b32 v31, 3, v{vLANE}')
    A(f's_lshl_b32 s28, {sW}, 6')
    A('v_add_u32 v31, s28, v31')
    A('v_lshlrev_b32 v31, 11, v31')
    A(f'v_and_b32 v{vXD + 2}, 7, v{vLANE}')
    A(f'v_xor_b32 v{vXD + 2}, v{vXD + 2}, v27')
    A(f'v_xor_b32 v{vXD + 3}, 4, v{vXD + 2}')
    A(f'v_lshl_add_u32 v{vXD}, v{vXD + 2}, 4, v31')
    A(f'v_lshl_add_u32 v{vXD + 1}, v{vXD + 3}, 4, v31')
    A(f'v_add_u32 v{vXD + 1}, 16384, v{vXD + 1}')
    for i in range(2, 8):
        A(f'v_add_u32 v{vXD + i}, {16384 * (i - (i & 1))}, v{vXD + (i & 1)}')
    A('v_lshrrev_b32 v31, 1, v27')
    A('v_lshl_add_u32 v31, v31, 2, v29')
    A(f'v_mul_u32_u24 v{vWL}, 1088, v31')
    A('v_and_b32 v31, 1, v27')
    A(f'v_lshl_add_u32 v{vWL}, v31, 9, v{vWL}')
    A(f'v_lshl_add_u32 v{vWL}, v30, 4, v{vWL}')
    A('v_lshrrev_b32 v31, 1, v28')
    A('v_xor_b32 v31, v31, v27')
    A('v_lshlrev_b32 v31, 4, v31')
    A(f'v_lshl_add_u32 v{vXA0}, v28, 7, v31')
    A(f'v_mul_u32_u24 v{vKL}, 1088, v29')
    A(f'v_lshl_add_u32 v{vKL}, v30, 8, v{vKL}')
    A('v_xor_b32 v31, v27, v30')
    A(f'v_lshl_add_u32 v{vKL}, v31, 4, v{vKL}')
    A(f'v_mul_u32_u24 v{vVL0}, 1088, v29')
    A(f'v_lshl_add_u32 v{vVL0}, v27, 8, v{vVL0}')
    A(f'v_lshl_add_u32 v{vVL0}, v30, 3, v{vVL0}')
    A('v_and_b32 v31, 1, v27')
    A('v_lshlrev_b32 v31, 5, v31')
    A(f'v_sub_u32 v{vVL1}, v{vVL0}, v31')
    A(f'v_add_u32 v{vVL0}, v{vVL0}, v31')
    A('v_xor_b32 v31, v28, v27')
    A('v_lshlrev_b32 v31, 4, v31')
    A(f'v_lshl_add_u32 v{vKD}, v27, 8, v31')
    A('v_and_b32 v31, 1, v27')
    A('v_lshlrev_b32 v31, 1, v31')
    A('v_xor_b32 v31, v28, v31')
    A('v_lshlrev_b32 v31, 4, v31')
    A(f'v_lshl_add_u32 v{vVD}, v27, 10, v31')
    A(f's_lshl_b32 s28, {sW}, 19')
    A(f'v_lshlrev_b32 v{vOST}, 4, v{vLANE}')
    A(f'v_add_u32 v{vOST}, s28, v{vOST}')
    A('v_lshlrev_b32 v31, 8, v28')
    A('v_lshl_add_u32 v31, v27, 4, v31')
    A(f's_mul_i32 {sW4352}, {sW}, 4352')
    A(f's_mov_b32 {sFB}, 0')
    A(f's_mov_b64 {sBAD}, 0')
    A('v_mov_b32 v27, 0')
    A(f'v_mov_b32 v28, {FLAG_ADDR}')
    A('ds_write_b32 v28, v27')
    A(f's_cmp_eq_u32 {sW}, 3')
    A('s_cbranch_scc1 L_w3')


def w_dma(h, rho):
    return (I(f's_add_u32 m0, {sWDMA}, {rho * 1088}'),
            I(f'buffer_load_dwordx4 v{vWD + rho}, {SRD_W}, {sWSOFF} offen {OPT["wflags"]} lds', tag=('W', h)))


def x_dma(s, i):
    xs = sXD0 if s % 2 == 0 else sXD1
    return (I(f's_add_u32 m0, {xs}, {i * 1024}'),
            I(f'buffer_load_dwordx4 v{vXD + i}, {SRD_X}, {sXSOFF} offen {OPT["xflags"]} lds', tag=('X', s)))


def w_read(h, dt, ks, e):
    t, u = dt >> 1, dt & 1
    off = ks * 8704 + e * 256 + 64 * t + 8 * u
    d = aWF + 8 * (dt % 4) + 4 * ks + 2 * e
    return I(f'ds_read_b64_tr_b16 {R("a", d, 2)}, v{vWA} offset:{off}', tag=('Wr', h))


def x_read(nqb, s, qb, ks):
    par = s % 2
    off = par * (XW_PAR if nqb == 4 else X3_PAR) + qb * 2048
    d = aX + 32 * par + 8 * qb + 4 * ks
    return I(f'ds_read_b128 {R("a", d, 4)}, v{vXA0 if ks == 0 else vXA1} offset:{off}', tag=('Xr', s))


def qproj(S, nqb, pre):
    A = S.a
    G = 2 * nqb
    nx = 2 * nqb
    if nqb == 4:
        A(f's_lshl_b32 {sXD0}, {sW}, 13')
        A(f's_add_u32 {sXD1}, {sXD0}, {XW_PAR}')
        A(f'v_add_u32 v{vXA0}, {sXD0}, v{vXA0}')
    else:
        A(f's_mov_b32 {sXD0}, {X3_BASE}')
        A(f's_mov_b32 {sXD1}, {X3_BASE + X3_PAR}')
        A(f'v_add_u32 v{vXA0}, {X3_BASE}, v{vXA0}')
    A(f'v_xor_b32 v{vXA1}, 64, v{vXA0}')
    def wslot(h):
        return WBEG + (h % 5) * SLOT
    def pro_w(h):
        A(f's_add_u32 {sWDMA}, {sW4352}, {wslot(h)}')
        A(f's_mov_b32 {sWSOFF}, {(h // 2) * 524288 + (h % 2) * 256}')
        for rho in range(4):
            m, d = w_dma(h, rho)
            A(m); A('s_nop 0'); A(d)
    def pro_x(s):
        A(f's_mov_b32 {sXSOFF}, {s * 128}')
        for i in range(nx):
            m, d = x_dma(s, i)
            A(m); A('s_nop 0'); A(d)
    pro_w(0); pro_x(0); pro_w(1); pro_w(2); pro_x(1); pro_w(3)
    for hh in range(2):
        A(f's_mov_b32 {sTMP}, {hh * 262144}')
        for t in range(4):
            A(f'buffer_load_dwordx4 {R("v", vKPRE + 16 * hh + 4 * t, 4)}, v31, {SRD_K}, {sTMP} offen offset:{64 * t}', tag=('KP', hh))
    if OPT['pfq']:
        A(f's_lshl_b32 {sTMP}, {sW}, 7')
        A(f'v_add_u32 v126, {sTMP}, v{vLANE}')
        A('v_lshlrev_b32 v126, 7, v126')
        A(f's_mov_b32 {sTMP}, 8192')
        for so in ('0', sTMP):
            pf = I(f'buffer_load_dword v127, v126, s[52:55], {so} offen {OPT["pfflags"]}')
            pf.wr = set()
            A(pf)
    KVL = int(OPT['kvpf'])
    W3T = OPT['w3test']
    if W3T and nqb == 4:
        KVL = 0
    if KVL:
        sh = {8: 3, 16: 4, 32: 5, 64: 6}[KVL]
        A(f'v_lshrrev_b32 v125, {sh}, v{vLANE}')
        A(f'v_lshlrev_b32 v125, 13, v125')
        A(f'v_and_b32 v124, {KVL - 1}, v{vLANE}')
        A(f'v_lshl_add_u32 v125, v124, 7, v125')
        if not W3T:
            A(f's_lshl_b32 {sTMP}, {sW}, {13 + 6 - sh}')
            A(f'v_add_u32 v125, {sTMP}, v125')
        A('s_mov_b32 s69, 0')
    A(f's_add_u32 {sWDMA}, {sW4352}, {wslot(4)}')
    A(f's_mov_b32 {sWSOFF}, {2 * 524288}')
    A(f's_mov_b32 {sXSOFF}, 256')
    A(f's_mov_b32 {sWRD}, {wslot(0)}')
    A(f'v_add_u32 v{vWA}, {sWRD}, v{vWL}')
    for qb in range(nqb):
        for r in range(32):
            A(f'v_mov_b32 v{vACC + 32 * qb + r}, 0')
            A(f'v_accvgpr_write_b32 a{32 * qb + r}, 0')
    S.vmwait(lambda t: t in (('W', 0), ('X', 0)))
    A('s_waitcnt lgkmcnt(0)')
    A('s_barrier')
    stamp(S, 1)
    for qb in range(nqb):
        for ks in range(2):
            A(x_read(nqb, 0, qb, ks))
    for dt in range(2):
        for ks in range(2):
            for e in range(2):
                A(w_read(0, dt, ks, e))

    NST = 16
    for s in range(NST):
        if s % 2 == 0:
            S.mark('qp', s // 2)
        for hh in range(2):
            h = 2 * s + hh
            gaps = [[[] for _ in range(G)] for _ in range(8)]
            ms = [[None] * G for _ in range(8)]
            for dt in range(8):
                for qb in range(nqb):
                    for ks in range(2):
                        ms[dt][2 * qb + ks] = mfma(acc(hh, dt, qb), R('a', aWF + 8 * (dt % 4) + 4 * ks, 4),
                                                   R('a', aX + 32 * (s % 2) + 8 * qb + 4 * ks, 4), acc(hh, dt, qb))
                ms[dt][0].need = set(('a', aWF + 8 * (dt % 4) + r) for r in range(8))
                if dt == 0 and hh == 0:
                    ms[dt][0].need |= set(('a', aX + 32 * (s % 2) + r) for r in range(8 * nqb))
                tdt, th = dt + 2, h
                if tdt >= 8:
                    tdt -= 8; th += 1
                if th < 32:
                    k = 0
                    for ks in range(2):
                        for e in range(2):
                            gaps[dt][k].append(w_read(th, tdt, ks, e)); k += 1
            if nqb == 4:
                slots = [(g, gi) for g in range(6) for gi in (4, 6)]
            else:
                slots = [(g, gi) for g in range(6) for gi in (4, 5)]
            dl = []
            if h + 4 < 32:
                dl += [w_dma(h + 4, rho) for rho in range(4)]
            nW = len(dl)
            if hh == 0 and s + 2 < NST:
                dl += [x_dma(s + 2, i) for i in range(nx)]
            if OPT['qp_nodma']:
                dl = []
            for k, (m, d) in enumerate(dl):
                g, gi = slots[k]
                if nqb == 4:
                    gaps[g][gi - 1].insert(0, m)
                    gaps[g][gi].append(d)
                else:
                    if gi == 4:
                        gaps[g][3].insert(0, m)
                    else:
                        gaps[g][4].append(m)
                    gaps[g][gi].append(d)
            if KVL and W3T:
                n = KVL // 32 if KVL >= 32 else (1 if (h % (32 // KVL)) == 0 else 0)
                for q in range(n):
                    srd = SRD_K if OPT['kvpfsrc'] == 'K' else SRD_V
                    pf = I(f'buffer_load_dword v127, v125, {srd}, s69 offen {OPT["kvpfflags"]}', tag=('PF', s))
                    pf.wr = set()
                    gaps[6][2 + 2 * q].append(pf)
                    gaps[6][3 + 2 * q].insert(0, I(f's_add_u32 s69, s69, {8192 * 64 // KVL}'))
            elif KVL and hh == 1:
                per = [0] if (KVL == 64 or s % 2 == 0) else []
                for q in per:
                    srd = SRD_K if OPT['kvpfsrc'] == 'K' else SRD_V
                    pf = I(f'buffer_load_dword v127, v125, {srd}, s69 offen {OPT["kvpfflags"]}', tag=('PF', s))
                    pf.wr = set()
                    gaps[6][2].append(pf)
                    gaps[7][1].insert(0, I(f's_add_u32 s69, s69, {4 * 8192 * 64 // KVL}'))
            if h + 4 < 32:
                inc = 256 if (h % 2 == 0) else (524288 - 256)
                gaps[2][1].insert(0, I(f's_add_u32 {sWSOFF}, {sWSOFF}, {inc}'))
            if hh == 0 and s + 2 < NST:
                gaps[6][5 if nqb == 4 else 4].insert(0, I(f's_add_u32 {sXSOFF}, {sXSOFF}, 128'))
            if hh == 1 and s + 1 < NST:
                xr = [x_read(nqb, s + 1, qb, ks) for qb in range(nqb) for ks in range(2)]
                xs = [(g, gi) for g in range(2, 6) for gi in ((4, 6) if nqb == 4 else (4, 5))]
                gaps[2][3].insert(0, P_vmwait(lambda t, s=s: t == ('X', s + 1)))
                for k, r in enumerate(xr):
                    g, gi = xs[k]
                    gaps[g][gi].append(r)
            if h + 1 < 32:
                gaps[4][0].insert(0, I(f's_add_u32 {sTMP}, {sWRD}, {SLOT}'))
                gaps[4][1].insert(0, I(f's_cmp_eq_u32 {sTMP}, {WEND}'))
                gaps[4][2].insert(0, I(f's_cselect_b32 {sNXT}, {WBEG}, {sTMP}'))
                last = G - 1
                gaps[5][last] += [P_vmwait(lambda t, h=h: t == ('W', h + 1)),
                                  P_lgwait(lambda t, h=h: t == ('Wr', h)),
                                  I('s_barrier' if not OPT['qp_nobar'] else 's_nop 0'),
                                  I(f'v_add_u32 v{vWA}, {sNXT}, v{vWL}')]
                gaps[6][1].insert(0, I(f's_add_u32 {sWDMA}, {sWRD}, {sW4352}'))
                gaps[6][2].insert(0, I(f's_mov_b32 {sWRD}, {sNXT}'))
            if hh == 1 and s % 2 == 1 and s < 14:
                gaps[7][G - 3].insert(0, I(f's_sub_u32 {sCNT}, {sCNT}, 1'))
                gaps[7][G - 2].insert(0, I(f's_cmp_lg_u32 {sCNT}, 0'))
            for dt in range(8):
                for gi in range(G):
                    A(ms[dt][gi])
                    gl = gaps[dt][gi]
                    if W3T and nqb == 3:
                        gl = [x for x in gl if not (x.kind == 'pseudo' and x.meta[0] == 'vmwait')]
                    S.ext(gl)
    S.mark('qpend', 0)


def q_epilogue(S, nqb):
    A = S.a
    A(f's_mov_b32 s48, {QSCALE:#x}')
    A('s_nop 7')
    t = vS
    for hh in (1, 0):
        for kap in range(4 * nqb - 1, -1, -1):
            qb, tt = kap // 4, kap % 4
            st = t + 8 * (kap % 2)
            if hh == 1:
                for r in range(8):
                    A(f'v_accvgpr_read_b32 v{st + r}, a{8 * kap + r}')
                src = st
            else:
                src = vACC + 8 * kap
            for r in range(0, 8, 2):
                A(f'v_pk_mul_f32 {R("v", st + r, 2)}, {R("v", src + r, 2)}, s[48:49] op_sel_hi:[1,0]')
            for r in range(4):
                A(f'v_cvt_pk_bf16_f32 v{st + r}, v{st + 2 * r}, v{st + 2 * r + 1}')
            for r in range(4):
                A(f'v_accvgpr_write_b32 a{aQ + 64 * hh + 4 * kap + r}, v{st + r}')


def xlane_max_or_add(S, op, regsl, tmpl):
    A = S.a
    for sw in ('v_permlane32_swap_b32', 'v_permlane16_swap_b32'):
        for r, t in zip(regsl, tmpl):
            A(f'v_mov_b32 v{t}, v{r}')
        A('s_nop 1')
        for r, t in zip(regsl, tmpl):
            A(f'{sw} v{r}, v{t}')
        A('s_nop 1')
        for r, t in zip(regsl, tmpl):
            A(f'{op} v{r}, v{r}, v{t}')


def standin(S, nqb):
    A = S.a
    mx = []
    for hh in range(2):
        for qb in range(nqb):
            d = vACC + 4 * (hh * 4 + qb)
            for t in range(4):
                A(mfma(R('v', d, 4), R('v', vKPRE + 16 * hh + 4 * t, 4), R('a', aQ + 64 * hh + 16 * qb + 4 * t, 4),
                       '0' if t == 0 else R('v', d, 4)))
            mx.append(d)
    A('s_nop 7')
    for d in mx:
        A(f'v_max3_f32 v{d}, v{d}, v{d + 1}, v{d + 2}')
    for d in mx:
        A(f'v_max_f32 v{d}, v{d}, v{d + 3}')
    xlane_max_or_add(S, 'v_max_f32', mx, [d + 1 for d in mx])
    set_negm(S, nqb, mx)


def set_negm(S, nqb, mx):
    A = S.a
    for qb in range(nqb):
        for r in range(4):
            A(f'v_sub_f32 v{vNEG + 4 * qb + r}, 0, v{mx[qb]}')
        A(f'v_sub_f32 v{vM2 + qb}, 0, v{mx[nqb + qb]}')


def kv_dma(tau):
    out = []
    fl = OPT['kvflags']
    for j in range(8):
        so = sKOFF if j < 4 else sKOFF2
        ioff = 1024 * (j % 4)
        m0 = (4352 if j >= 4 else 0) + 64 * (j % 4)
        out.append((I(f's_add_u32 m0, {sDSLOT}, {m0}'),
                    I(f'buffer_load_dwordx4 v{vKD}, {SRD_K}, {so} offen offset:{ioff} {fl} lds', tag=('KV', tau))))
    for kb in range(2):
        for rho in range(4):
            so = sKOFF if kb == 0 else sKOFF2
            m0 = 8704 + kb * 4352 + 832 * rho
            out.append((I(f's_add_u32 m0, {sDSLOT}, {m0}'),
                        I(f'buffer_load_dwordx4 v{vVD}, {SRD_V}, {so} offen offset:{256 * rho} {fl} lds', tag=('KV', tau))))
    return out


def kv_advance():
    return [I(f's_add_u32 {sKOFF}, {sKOFF}, 8192'),
            I(f's_add_u32 {sKOFF2}, {sKOFF2}, 8192'),
            I(f's_add_u32 {sDSLOT}, {sDSLOT}, {SLOT}'),
            I(f's_cmp_eq_u32 {sDSLOT}, {NRING * SLOT}'),
            I(f's_cselect_b32 {sDSLOT}, 0, {sDSLOT}')]


def kv_prologue(S, nqb):
    A = S.a
    if nqb == 3:
        A(f's_mov_b32 {sDSLOT}, 0')
        A(f's_mov_b32 {sKOFF}, 0')
        A(f's_mov_b32 {sKOFF2}, 4096')
        for tau in range(DIST - 1):
            for m, d in kv_dma(tau):
                A(m); A('s_nop 0'); A(d)
            S.ext(kv_advance())


def k_read(tau, kb, t):
    off = (tau % 2) * SLOT + kb * 4352 + 64 * t
    d = aK + 32 * (tau % 2) + 16 * kb + 4 * t
    return I(f'ds_read_b128 {R("a", d, 4)}, v{vKA} offset:{off}', tag=('Kr', tau))


def v_read(tau, db, e):
    off = (tau % 2) * SLOT + 8704 + e * 4352 + 32 * db
    d = aV + 32 * (tau % 2) + 4 * db + 2 * e
    return I(f'ds_read_b64_tr_b16 {R("a", d, 2)}, v{vVA0 if db % 2 == 0 else vVA1} offset:{off}', tag=('Vr', tau))


def o_epilogue_items(nqb, hh, qb, packed):
    L = []
    inv = vLT + qb
    so = qb * 131072 + hh * 4096
    L.append(I(f's_mov_b32 {sOOFF}, {so}'))
    for t in range(4):
        st = vE + 4 * (t % 2)
        src = vACC + 32 * qb + 8 * t
        if packed:
            for r in range(0, 8, 2):
                L.append(I(f'v_pk_mul_f32 {R("v", src + r, 2)}, {R("v", src + r, 2)}, {R("v", inv & ~1, 2)} op_sel:[0,{inv & 1}] op_sel_hi:[1,{inv & 1}]'))
        else:
            for r in range(8):
                L.append(I(f'v_mul_f32 v{src + r}, v{src + r}, v{inv}'))
        for r in range(4):
            L.append(I(f'v_cvt_pk_bf16_f32 v{st + r}, v{src + 2 * r}, v{src + 2 * r + 1}'))
        L.append(I(f'buffer_store_dwordx4 {R("v", st, 4)}, v{vOST}, {SRD_O}, {sOOFF} offen offset:{1024 * t}', tag=('O', hh)))
    return L


def l_finish_items(qb):
    l0, l1, lt, tmp = vL + 2 * qb, vL + 2 * qb + 1, vLT + qb, vT
    L = [I(f'v_add_f32 v{lt}, v{l0}, v{l1}'),
         I(f'v_mov_b32 v{l0}, 0'),
         I(f'v_mov_b32 v{l1}, 0'),
         I(f'v_mov_b32 v{tmp}, v{lt}'),
         I('s_nop 1'),
         I(f'v_permlane32_swap_b32 v{lt}, v{tmp}'),
         I('s_nop 1'),
         I(f'v_add_f32 v{lt}, v{lt}, v{tmp}'),
         I(f'v_mov_b32 v{tmp}, v{lt}'),
         I('s_nop 1'),
         I(f'v_permlane16_swap_b32 v{lt}, v{tmp}'),
         I('s_nop 1'),
         I(f'v_add_f32 v{lt}, v{lt}, v{tmp}'),
         I(f'v_cmp_nge_f32 vcc, {LTHRESH:#x}, v{lt}'),
         I(f'v_rcp_f32 v{lt}, v{lt}'),
         I('s_nop 1'),
         I(f's_or_b64 {sBAD}, {sBAD}, vcc')]
    return L


def attention(S, nqb, v3):
    A = S.a
    N = 64 * nqb
    dmawave = (nqb == 3)
    A(f'L_attn{v3}:')
    for qb in range(nqb):
        A(f'v_mov_b32 v{vL + 2 * qb}, 0')
        A(f'v_mov_b32 v{vL + 2 * qb + 1}, 0')
    A(f's_mov_b32 {sRBASE}, 0')
    A(f'v_mov_b32 v{vKA}, v{vKL}')
    A(f'v_mov_b32 v{vVA0}, v{vVL0}')
    A(f'v_mov_b32 v{vVA1}, v{vVL1}')

    PFS = int(OPT['pf'])
    if PFS and nqb == 4:
        A(f's_lshl_b32 {sTMP}, {sW}, 6')
        A(f'v_add_u32 v62, {sTMP}, v{vLANE}')
        A(f'v_mul_u32_u24 v62, {PFS}, v62')
        A(f's_mov_b32 s69, {(-int(OPT["pfstart"]) * 192 * PFS) & 0xffffffff:#x}')

    def unit(u):
        return divmod(u, nqb)

    extra = {}

    def add_extra(sig, lst):
        extra.setdefault(sig, []).extend(lst)

    for qb in range(nqb):
        se = 31 * nqb + qb
        add_extra(se, [I(f'v_mov_b32 v{vNEG + 4 * qb + r}, v{vM2 + qb}') for r in range(4)])
        add_extra(se, l_finish_items(qb))
        items = o_epilogue_items(nqb, 0, qb, False)
        half = 1 + 2 * 13
        add_extra(se + 1, items[:half])
        add_extra(se + 2, items[half:])

    def frame_reads(tau):
        tt = tau + 1
        if tt > 63:
            return []
        return [k_read(tt, kb, t) for kb in range(2) for t in range(4)] + [v_read(tt, db, e) for db in range(8) for e in range(2)]

    def emit_slot(sig, mem, salus):
        mf = [None] * 16
        u = sig + 2
        if 0 <= u < N:
            tau, qb = unit(u)
            hd = tau // 32
            sp = u % 2
            for kb in range(2):
                d = R('v', vS + 8 * sp + 4 * kb, 4)
                for t in range(4):
                    mf[8 * kb + t] = mfma(d, R('a', aK + 32 * (tau % 2) + 16 * kb + 4 * t, 4),
                                          R('a', aQ + 64 * hd + 16 * qb + 4 * t, 4),
                                          R('v', vNEG + 4 * qb, 4) if t == 0 else d)
                mf[8 * kb].need = set(('a', aK + 32 * (tau % 2) + 16 * kb + r) for r in range(16))
        u = sig
        if 0 <= u < N:
            tau, qb = unit(u)
            pp = u % 2
            for db in range(8):
                d = R('v', vACC + 32 * qb + 4 * db, 4)
                mf[4 + 8 * (db // 4) + db % 4] = mfma(d, R('a', aV + 32 * (tau % 2) + 4 * db, 4), R('v', vP + 4 * pp, 4),
                                                      '0' if tau % 32 == 0 else d)
            for hb in range(2):
                mf[4 + 8 * hb].need = set(('a', aV + 32 * (tau % 2) + 16 * hb + r) for r in range(16))
        gaps = [[] for _ in range(16)]
        u = sig + 1
        if 0 <= u < N:
            tau, qb = unit(u)
            s0 = vS + 8 * (u % 2)
            p0 = vP + 4 * (u % 2)
            l0 = vL + 2 * qb
            E = [0, 1, 3, 5, 7, 9, 11, 13]
            for k, g in enumerate(E):
                gaps[g].append(I(f'v_exp_f32 v{s0 + k}, v{s0 + k}'))
            for k, g in enumerate([2, 6, 10, 14]):
                gaps[g].append(I(f'v_cvt_pk_bf16_f32 v{p0 + k}, v{s0 + 2 * k}, v{s0 + 2 * k + 1}'))
            for k, g in enumerate([4, 8, 12, 15]):
                gaps[g].append(I(f'v_add_f32 v{l0}, v{l0}, v{s0 + 2 * k}'))
                gaps[g].append(I(f'v_add_f32 v{l0 + 1}, v{l0 + 1}, v{s0 + 2 * k + 1}'))
        for g in range(16):
            gaps[g] = [x for x in gaps[g] if not any(dd and x.mn.startswith(dd) for dd in OPT['drop'].split(','))]
        nrd = sum(1 for g in range(16) for x in mem.get(g, []) if x.kind == 'ds')
        salus = dict(salus)
        salus[15] = [P_lgkeep(min(nrd, 6))] + salus.get(15, [])
        for g in range(16):
            gaps[g] = salus.get(g, []) + mem.get(g, []) + gaps[g]
        ex = extra.get(sig, [])
        per = (len(ex) + 15) // 16
        k = 0
        for g in range(16):
            if mf[g] is not None:
                A(mf[g])
            S.ext(gaps[g])
            if ex:
                S.ext(ex[k:k + per]); k += per

    mempos4 = [0, 1, 2, 6, 10, 14]
    for tau in range(-1, 64):
        if tau % 2 == 1 and tau >= 1:
            S.mark('att', tau)
        elif tau in (-1, 0):
            S.mark('attp', tau)
        elif tau in (31, 32, 63):
            pass
        slots = list(range(nqb * tau, nqb * tau + nqb)) if tau >= 0 else [-2, -1]
        reads = frame_reads(tau)
        dm = kv_dma(tau + DIST) if (dmawave and tau + DIST <= 63 + DIST and tau < 63) else []
        if OPT['att_nodma'] and tau >= 0:
            dm = []
        head = []
        if tau + 1 <= 63:
            if dmawave and not (OPT['att_novm'] and tau >= 0):
                head.append(P_vmwait(lambda t, tt=tau + 1: t == ('KV', tt)))
            if not (OPT['att_nobar'] and tau >= 0):
                head.append(I('s_barrier'))
        upd = []
        if tau % 2 == 1 and tau + 1 <= 63 and tau >= 1:
            pass
        S.ext(head)
        if tau == -1:
            for r in reads[:8]:
                A(r)
            reads = reads[8:]
        nsl = len(slots)
        mem = [dict() for _ in slots]
        sal = [dict() for _ in slots]
        if nqb == 4 and tau >= 0:
            pos = [(j, g) for j in range(4) for g in mempos4]
        elif nqb == 4:
            pos = [(j, g) for j in range(2) for g in (0, 1, 2, 4, 6, 8, 10, 14)]
        elif tau >= 0:
            pos = [(j, g) for j in range(3) for g in (0, 1, 2, 4, 6, 8, 10, 14)]
        else:
            pos = [(j, g) for j in range(2) for g in (0, 1, 2, 4, 6, 8, 10, 14)]
        if OPT['att_nolds'] and tau >= 1:
            reads = []
        for r, (j, g) in zip(reads, pos):
            mem[j].setdefault(g, []).append(r)
        if dm and tau == -1:
            for m, d in dm:
                A(m); A('s_nop 0'); A(d)
        elif dm:
            dpos = [(j, g) for j in range(nsl) for g in (3, 5, 7, 9, 11, 13)][:16]
            for (m, d), (j, g) in zip(dm, dpos):
                mem[j].setdefault(g, []).append(d)
                sal[j].setdefault(g - 1, []).append(m)
        for j, sig in enumerate(slots):
            if j == nsl - 1 and tau % 2 == 0:
                extra.setdefault(sig, [])
                ups = [I(f's_add_u32 {sRBASE}, {sRBASE}, {2 * SLOT}'),
                       I(f's_cmp_eq_u32 {sRBASE}, {NRING * SLOT}'),
                       I(f's_cselect_b32 {sRBASE}, 0, {sRBASE}')]
                if dmawave:
                    sal[j].setdefault(14, []).extend(ups)
                else:
                    sal[j].setdefault(3, []).append(ups[0])
                    sal[j].setdefault(5, []).append(ups[1])
                    sal[j].setdefault(7, []).append(ups[2])
                mem[j].setdefault(15, []).extend([I(f'v_add_u32 v{vKA}, {sRBASE}, v{vKL}'),
                                                  I(f'v_add_u32 v{vVA0}, {sRBASE}, v{vVL0}'),
                                                  I(f'v_add_u32 v{vVA1}, {sRBASE}, v{vVL1}')])
            if j == nsl - 1 and dm:
                adv = kv_advance()
                for k, ins in enumerate(adv):
                    mem[j].setdefault(15, []).append(ins)
            if PFS and nqb == 4 and j == 1 and tau % 2 == 1 and int(OPT['pfloop']) <= tau < int(OPT['pfloop']) + 30:
                pf = I(f'buffer_load_dword v63, v62, s[52:55], s69 offen {OPT["pfflags"]}')
                pf.wr = set()
                mem[j].setdefault(4, []).append(pf)
                sal[j].setdefault(9, []).append(I(f's_add_u32 s69, s69, {192 * PFS}'))
            if j == nsl - 1 and tau % 2 == 0 and (2 <= tau <= 30 or 34 <= tau <= 62):
                mem[j].setdefault(15, []).extend([I(f's_sub_u32 {sCNT}, {sCNT}, 1'), I(f's_cmp_lg_u32 {sCNT}, 0')])
            emit_slot(sig, mem[j], sal[j])
    S.mark('attend', 0)
    A('s_nop 7')
    for qb in range(nqb):
        S.ext(l_finish_items(qb))
    for qb in range(nqb):
        S.ext(o_epilogue_items(nqb, 1, qb, True))


def true_max_pass(S, nqb, v3):
    A = S.a
    A(f'v_lshrrev_b32 v27, 4, v{vLANE}')
    A(f'v_and_b32 v28, 15, v{vLANE}')
    A('v_lshlrev_b32 v31, 8, v28')
    A('v_lshl_add_u32 v31, v27, 4, v31')
    mx = [vACC + 64 + i for i in range(2 * nqb)]
    for hh in range(2):
        for qb in range(nqb):
            A(f'v_mov_b32 v{mx[hh * nqb + qb]}, 0xff7fffff')
        A(f's_mov_b32 {sTMP}, {hh * 262144}')
        A(f's_mov_b32 {sCNT}, 64')
        A(f'L_tm{v3}_{hh}:')
        for t in range(4):
            A(f'buffer_load_dwordx4 {R("v", vKPRE + 4 * t, 4)}, v31, {SRD_K}, {sTMP} offen offset:{64 * t}')
        A('s_waitcnt vmcnt(0)')
        for qb in range(nqb):
            d = vACC + 4 * qb
            for t in range(4):
                A(mfma(R('v', d, 4), R('v', vKPRE + 4 * t, 4), R('a', aQ + 64 * hh + 16 * qb + 4 * t, 4), '0' if t == 0 else R('v', d, 4)))
        A('s_nop 7')
        for qb in range(nqb):
            d = vACC + 4 * qb
            m = mx[hh * nqb + qb]
            A(f'v_max3_f32 v{m}, v{m}, v{d}, v{d + 1}')
            A(f'v_max3_f32 v{m}, v{m}, v{d + 2}, v{d + 3}')
        A(f's_add_u32 {sTMP}, {sTMP}, 4096')
        A(f's_sub_u32 {sCNT}, {sCNT}, 1')
        A(f's_cmp_lg_u32 {sCNT}, 0')
        A(f's_cbranch_scc1 L_tm{v3}_{hh}')
    xlane_max_or_add(S, 'v_max_f32', mx, [vACC + 80 + i for i in range(2 * nqb)])
    set_negm(S, nqb, mx)


def k1_variant(nqb):
    v3 = '3' if nqb == 3 else ''
    S = Stream()
    A = S.a
    qproj(S, nqb, None)
    stamp(S, 2)
    S.lgwait0()
    A('s_barrier')
    kv_prologue(S, nqb)
    q_epilogue(S, nqb)
    if OPT['dump'] == 'q':
        A('s_load_dwordx2 s[64:65], s[0:1], 96')
        A('s_waitcnt lgkmcnt(0)')
        A('s_add_u32 s48, s64, 0x4000000'); A('s_addc_u32 s49, s65, 0'); A('s_mov_b32 s50, 0x4000000'); A('s_mov_b32 s51, 0x20000')
        A(f's_lshl_b32 s52, s2, 2'); A(f's_add_u32 s52, s52, {sW}'); A('s_lshl_b32 s52, s52, 15')
        A(f'v_lshlrev_b32 v27, 2, v{vLANE}')
        for r in range(128):
            A(f'v_accvgpr_read_b32 v28, a{r}')
            A(f'buffer_store_dword v28, v27, s[48:51], s52 offen')
            A('s_add_u32 s52, s52, 256')
            A('s_waitcnt vmcnt(0)')
    S.vmwait(lambda t: t is not None and t[0] == 'KP')
    standin(S, nqb)
    stamp(S, 3)
    attention(S, nqb, v3)
    stamp(S, 4)
    A(f's_cmp_eq_u32 {sFB}, {0 if OPT["nofb"] else 1}')
    A(f's_cbranch_scc1 L_done{v3}')
    A(f's_cmp_eq_u64 {sBAD}, 0')
    A(f's_cbranch_scc1 L_ok{v3}')
    A('v_mov_b32 v27, 1')
    A(f'v_mov_b32 v28, {FLAG_ADDR}')
    A('ds_write_b32 v28, v27')
    A(f'L_ok{v3}:')
    A('s_waitcnt lgkmcnt(0)')
    A('s_barrier')
    A(f'v_mov_b32 v28, {FLAG_ADDR}')
    A('ds_read_b32 v27, v28')
    A('s_waitcnt lgkmcnt(0)')
    A('v_readfirstlane_b32 s48, v27')
    A('s_nop 3')
    A('s_cmp_eq_u32 s48, 0')
    A(f's_cbranch_scc1 L_done{v3}')
    A('s_waitcnt vmcnt(0)')
    A(f's_mov_b32 {sFB}, 1')
    true_max_pass(S, nqb, v3)
    A('s_barrier')
    kv_prologue(S, nqb)
    A('s_waitcnt vmcnt(0)')
    A(f's_branch L_attn{v3}')
    A(f'L_done{v3}:')
    if OPT['stamps']:
        stamp(S, 5)
        A('s_load_dwordx2 s[64:65], s[0:1], 96')
        A('s_waitcnt lgkmcnt(0)')
        A('s_add_u32 s48, s64, 0x8000000'); A('s_addc_u32 s49, s65, 0'); A('s_mov_b32 s50, 0x100000'); A('s_mov_b32 s51, 0x20000')
        A(f's_lshl_b32 s52, s2, 2'); A(f's_add_u32 s52, s52, {sW}'); A('s_lshl_b32 s52, s52, 6')
        A('v_mov_b32 v28, 0')
        for k in range(6):
            A(f'v_mov_b32 v27, s{sST + 4 * k}')
            A(f'buffer_store_dword v27, v28, s[48:51], s52 offen offset:{4 * k}')
            A(f'v_mov_b32 v27, s{sST + 4 * k + 2}')
            A(f'buffer_store_dword v27, v28, s[48:51], s52 offen offset:{4 * k + 32}')
        A('s_waitcnt vmcnt(0)')
    if OPT['dbgst'] and nqb == 4:
        stamp(S, 5)
        A('s_lshl_b32 s52, s2, 2'); A(f's_or_b32 s52, s52, {sW}')
        A('s_cmp_lg_u32 s52, 0')
        A('s_cbranch_scc1 L_nodbg')
        A('s_load_dwordx2 s[48:49], s[0:1], 88')
        A('s_waitcnt lgkmcnt(0)')
        A('s_mov_b32 s50, 256'); A('s_mov_b32 s51, 0x20000')
        A('v_mov_b32 v28, 0')
        for k in range(6):
            A(f'v_mov_b32 v27, s{sST + 4 * k + 2}')
            A(f'buffer_store_dword v27, v28, s[48:51], 0 offen offset:{4 * k}')
        A('s_waitcnt vmcnt(0)')
        A('L_nodbg:')
    A('s_endpgm')
    items, vmq, lgq = resolve(S.it)
    items, nfix = check_hazards(items, True, 'k1_%d' % nqb)
    check_scc(items, 'k1_%d' % nqb)
    loops = {'qp': (0, 6, f'L_qp{v3}', sCNT)}
    txt = fold2(items, v3)
    return txt


def fold2(items, v3):
    segs = split_marks(items)
    out = []

    def fold(group, label):
        t0 = text(group[0][2])
        for g in group[1:]:
            t = text(g[2])
            if t != t0:
                for a, b in zip(t0, t):
                    if a != b:
                        print(f'loop {label}: seg {group[0][0]}{group[0][1]} vs {g[1]} differ:\n   {a}\n   {b}')
                        break
                if len(t) != len(t0):
                    print(f'loop {label}: length differs {len(t0)} vs {len(t)} (iter {g[1]})')
                return None
        lastscc = None
        for ln in t0:
            mn = ln.split()[0]
            if re.match(r's_(add|sub|cmp|and|or|xor|lshl|lshr|min|max|bfe|not|andn2)', mn):
                lastscc = ln
        assert lastscc.startswith('s_cmp_lg_u32 ' + sCNT), lastscc
        return [f's_mov_b32 {sCNT}, {len(group)}', f'{label}:'] + t0 + [f's_cbranch_scc1 {label}']

    def fold_auto(group, label):
        for p in range(len(group)):
            r = fold(group[p:], label) if len(group) - p > 1 else None
            if r is not None:
                res = []
                for g in group[:p]:
                    res += [ln for ln in text(g[2])]
                print(f'{label}: peeled {p}, loop x{len(group) - p}, body {len(r)} lines')
                return res + r
        raise SystemExit('cannot fold ' + label)

    i = 0
    while i < len(segs):
        name, idx, its = segs[i]
        if name == 'qp' and idx == 0:
            grp = [s for s in segs if s[0] == 'qp' and s[1] <= 6]
            out += fold_auto(grp, f'L_qp{v3}')
            i += len(grp)
            continue
        if name == 'att' and idx in (1, 33):
            grp = [s for s in segs if s[0] == 'att' and idx <= s[1] <= idx + 28]
            out += fold_auto(grp, f'L_at{v3}_{idx}')
            i += len(grp)
            continue
        out += text(its)
        i += 1
    return out


def descriptor(name, vg=512, acc_off=256):
    return ['.section .rodata,"a"', '.p2align 6', f'.amdhsa_kernel {name}',
            f'  .amdhsa_next_free_vgpr {vg}', '  .amdhsa_next_free_sgpr 102', f'  .amdhsa_accum_offset {acc_off}',
            '  .amdhsa_group_segment_fixed_size 0', '  .amdhsa_kernarg_size 104', '  .amdhsa_user_sgpr_count 2',
            '  .amdhsa_user_sgpr_kernarg_segment_ptr 1', '  .amdhsa_system_sgpr_workgroup_id_x 1', '.end_amdhsa_kernel']


HEADER = open('concat_heads__mha_block_cached__gqa_block_cached__near_ridge.s.ref').read().split('; Override launch')[0] \
    if os.path.exists('concat_heads__mha_block_cached__gqa_block_cached__near_ridge.s.ref') else ''


def main(path):
    import gen2
    L = [HEADER.rstrip('\n')] if HEADER else []
    L.append(f'; @launch kernel={KN} grid=(256,1,1) block=(256,1,1) lds=163840')
    if not OPT['only_k1']:
        L.append(f'; @launch kernel={K2} grid=(240,1,1) block=(256,1,1) lds=163840')
    L += ['.amdgcn_target "amdgcn-amd-amdhsa--gfx950"', '.text', f'.globl {KN}', '.p2align 8', f'.type {KN},@function', f'{KN}:']
    S = Stream()
    k1_setup(S)
    its, _, _ = resolve(S.it)
    its, _ = check_hazards(its, True, 'setup')
    L += text(its)
    L += k1_variant(4)
    L.append('L_w3:')
    L += k1_variant(3)
    L += ['L_end1:', 's_endpgm']
    if not OPT['only_k1']:
        L += [f'.globl {K2}', '.p2align 8', f'.type {K2},@function', f'{K2}:']
        L += gen2.kernel2(OPT)
    L += descriptor(KN)
    if not OPT['only_k1']:
        L += descriptor(K2)
    s = '\n'.join(L) + '\n'
    open(path, 'w').write(s)
    print('wrote', path, len(s), 'bytes', len(L), 'lines')


if __name__ == '__main__':
    for a in sys.argv[2:]:
        k, v = a.split('=')
        OPT[k] = {'True': True, 'False': False, 'None': None}.get(v, v.replace('+', ' ') if isinstance(v, str) else v)
    main(sys.argv[1])
```

```python
import sys, os, re
sys.path.insert(0, os.path.dirname(os.path.abspath(__file__)))
from asmlib import *

KN = "concat_heads__mha_block_cached__gqa_block_cached__near_ridge_kernel"
K2 = "outproj_kernel"

OPT = dict(
    dump=None,
    stamps=False,
    kvflags='nt',
    only_k1=False,
    nofb=False, drop='', att_nolds=False, att_nowait=False, att_noexp=False,
    att_nodma=False, att_nobar=False, att_novm=False, qp_nodma=False, qp_nobar=False,
    kvsame=False, wsame=False, wflags='', xflags='', k2wflags='', k2oflags='', k2same=False, pf=0, pfflags='', pfloop=33, pfq=0, kvpf=0, park=False, pfq2=0, tailpf=0, oflags='', rot=0, fst=False, alldma=False, dist=5, pkadd=False, bar2=False, mempos='0,1,2,6,10,14', dmag=5, dbgst=False, w3test=False, pfstart=0, kvpfflags='', kvpfsrc='K', k2ring=8, k2pd=6, k2_nodma=False, k2_nomf=False, k2_wlin=False, k2_now=False, k2_noo=False, k2_nolds=False, k2_nobar=False, k2_novm=False,
)

MF = 'v_mfma_f32_16x16x32_bf16'


def R(cls, base, n=1):
    return f'{cls}{base}' if n == 1 else f'{cls}[{base}:{base + n - 1}]'


def mfma(d, a, b, c):
    return I(f'{MF} {d}, {a}, {b}, {c}')


SLOT = 17408
XW_PAR = 24576
X3_BASE = 139264
X3_PAR = 6144
WBEG = 3 * SLOT
WEND = 8 * SLOT
FLAG_ADDR = 163832
NRING = 8
DIST = 5

sW = 's3'
SRD_X, SRD_W, SRD_K, SRD_V, SRD_O = 's[8:11]', 's[12:15]', 's[16:19]', 's[20:23]', 's[24:27]'
sWRD, sWDMA, sWSOFF, sXSOFF, sCNT, sW4352, sXD0, sXD1, sNXT, sTMP = ['s%d' % i for i in range(28, 38)]
sDSLOT, sKOFF, sKOFF2, sRBASE, sFB, sOOFF, sT2 = ['s%d' % i for i in range(38, 45)]
sBAD = 's[46:47]'
sST = 72

vLANE = 1
vWD = 2
vXD = 6
vWL, vWA, vXA0, vXA1 = 14, 15, 16, 17
vKL, vVL0, vVL1, vKA, vVA0, vVA1, vKD, vVD, vOST = 18, 19, 20, 21, 22, 23, 24, 25, 26
vT = 27
vKPRE = 32
vS = 64
vP = 80
vL = 88
vNEG = 96
vM2 = 112
vLT = 116
vE = 120
vACC = 128
aQ = 0
aX = 128
aWF = 192
aK = 128
aV = 192

QSCALE = 0x3e0293ee
import struct, math
QSCALE = struct.unpack('<I', struct.pack('<f', math.log2(math.e) / math.sqrt(128.0)))[0]
LTHRESH = struct.unpack('<I', struct.pack('<f', 2.0 ** 30))[0]


def acc(hh, dt, qb):
    return R('v', vACC + 32 * qb + 4 * dt, 4) if hh == 0 else R('a', 32 * qb + 4 * dt, 4)


def stamp(S, k):
    if OPT['stamps'] or OPT['dbgst']:
        S.a(f's_memtime s[{sST + 4 * k}:{sST + 4 * k + 1}]')
        S.a(f's_memrealtime s[{sST + 4 * k + 2}:{sST + 4 * k + 3}]')
        S.a('s_waitcnt lgkmcnt(0)')


def k1_setup(S):
    A = S.a
    A('s_cmp_ge_u32 s2, 256')
    A('s_cbranch_scc1 L_end1')
    A(f's_mov_b32 {sFB}, 0')
    A('L_restart:')
    A('s_load_dwordx8 s[44:51], s[0:1], 0')
    A('s_load_dwordx8 s[56:63], s[0:1], 40')
    A('s_load_dwordx2 s[64:65], s[0:1], 96')
    if OPT['stamps']:
        A('s_load_dwordx2 s[66:67], s[0:1], 88')
    if OPT['pf'] or OPT['pfq'] or OPT['pfq2'] or OPT['tailpf']:
        A('s_load_dwordx2 s[52:53], s[0:1], 32')
        A('s_load_dwordx2 s[54:55], s[0:1], 72')
    A('s_and_b32 s4, s2, 7')
    A('s_lshr_b32 s5, s2, 3')
    A('s_lshr_b32 s6, s4, 2')
    A('s_bfe_u32 s7, s4, 0x10001')
    A('s_lshl_b32 s7, s7, 2')
    A('s_and_b32 s28, s5, 3')
    A('s_add_u32 s7, s7, s28')
    A('s_and_b32 s28, s4, 1')
    A('s_lshl_b32 s28, s28, 3')
    A('s_lshr_b32 s29, s5, 2')
    A('s_add_u32 s68, s28, s29')
    if OPT['rot']:
        m = int(OPT['rot'])
        if m == 1:
            A('s_and_b32 s100, s5, 31')
        elif m == 2:
            A('s_mul_i32 s100, s4, 4'); A('s_add_u32 s100, s100, s5'); A('s_and_b32 s100, s100, 31')
        elif m == 3:
            A('s_mul_i32 s100, s2, 11'); A('s_lshr_b32 s100, s100, 1'); A('s_and_b32 s100, s100, 31')
        elif m == 4:
            A('s_and_b32 s100, s2, 1'); A('s_lshl_b32 s100, s100, 4')
        A('s_lshl_b32 s100, s100, 13')
    A(f'v_and_b32 v{vLANE}, 63, v0')
    A('v_lshrrev_b32 v27, 6, v0')
    A('s_nop 0')
    A(f'v_readfirstlane_b32 {sW}, v27')
    A('s_waitcnt lgkmcnt(0)')
    stamp(S, 0)
    A('s_cmp_eq_u32 s6, 0')
    A('s_cselect_b64 s[44:45], s[44:45], s[56:57]')
    A('s_cselect_b64 s[46:47], s[46:47], s[58:59]')
    A('s_cselect_b64 s[48:49], s[48:49], s[60:61]')
    A('s_cselect_b64 s[50:51], s[50:51], s[62:63]')
    if OPT['pf'] or OPT['pfq'] or OPT['pfq2'] or OPT['tailpf']:
        A('s_cselect_b64 s[52:53], s[52:53], s[54:55]')
        A('s_lshl_b32 s28, s7, 4'); A('s_add_u32 s28, s28, s68'); A('s_lshl_b32 s28, s28, 16')
        A('s_add_u32 s52, s52, s28'); A('s_addc_u32 s53, s53, 0')
        A('s_mov_b32 s54, 65536'); A('s_mov_b32 s55, 0x20000')
    A('s_mul_i32 s28, s7, 491520')
    if OPT['wsame']:
        A('s_mov_b32 s28, 0')
    A('s_add_u32 s8, s44, s28'); A('s_addc_u32 s9, s45, 0')
    A('s_mov_b32 s10, 491520'); A('s_mov_b32 s11, 0x20000')
    A('s_lshl_b32 s28, s68, 9')
    if OPT['wsame']:
        A('s_mov_b32 s28, 0')
    A('s_add_u32 s12, s50, s28'); A('s_addc_u32 s13, s51, 0')
    A('s_sub_u32 s14, 8388608, s28'); A('s_mov_b32 s15, 0x20000')
    A('s_lshl_b32 s28, s7, 5'); A('s_lshl_b32 s29, s68, 1'); A('s_add_u32 s28, s28, s29')
    A('s_lshl_b32 s28, s28, 18')
    if OPT['kvsame']:
        A('s_mov_b32 s28, 0')
    A('s_add_u32 s16, s46, s28'); A('s_addc_u32 s17, s47, 0')
    A('s_mov_b32 s18, 524288'); A('s_mov_b32 s19, 0x20000')
    A('s_add_u32 s20, s48, s28'); A('s_addc_u32 s21, s49, 0')
    A('s_mov_b32 s22, 524288'); A('s_mov_b32 s23, 0x20000')
    A('s_mul_i32 s28, s6, 120'); A('s_mul_i32 s29, s7, 15'); A('s_add_u32 s28, s28, s29')
    A('s_lshl_b32 s28, s28, 17')
    A('s_lshl_b32 s29, s68, 13')
    A('s_add_u32 s28, s28, s29')
    A('s_add_u32 s24, s64, s28'); A('s_addc_u32 s25, s65, 0')
    A(f's_sub_u32 s26, {15 * 131072}, s29'); A('s_mov_b32 s27, 0x20000')
    A(f'v_lshrrev_b32 v27, 4, v{vLANE}')
    A(f'v_and_b32 v28, 15, v{vLANE}')
    A('v_lshrrev_b32 v29, 2, v28')
    A('v_and_b32 v30, 3, v28')
    A(f's_lshl_b32 s28, {sW}, 17')
    A(f'v_lshlrev_b32 v{vWD}, 15, v27')
    A(f'v_lshl_add_u32 v{vWD}, v28, 4, v{vWD}')
    A(f'v_add_u32 v{vWD}, s28, v{vWD}')
    for r in range(1, 4):
        A(f'v_add_u32 v{vWD + r}, {8192 * r}, v{vWD}')
    A(f'v_lshrrev_b32 v31, 3, v{vLANE}')
    A(f's_lshl_b32 s28, {sW}, 6')
    A('v_add_u32 v31, s28, v31')
    A('v_lshlrev_b32 v31, 11, v31')
    A(f'v_and_b32 v{vXD + 2}, 7, v{vLANE}')
    A(f'v_xor_b32 v{vXD + 2}, v{vXD + 2}, v27')
    A(f'v_xor_b32 v{vXD + 3}, 4, v{vXD + 2}')
    A(f'v_lshl_add_u32 v{vXD}, v{vXD + 2}, 4, v31')
    A(f'v_lshl_add_u32 v{vXD + 1}, v{vXD + 3}, 4, v31')
    A(f'v_add_u32 v{vXD + 1}, 16384, v{vXD + 1}')
    for i in range(2, 8):
        A(f'v_add_u32 v{vXD + i}, {16384 * (i - (i & 1))}, v{vXD + (i & 1)}')
    A('v_lshrrev_b32 v31, 1, v27')
    A('v_lshl_add_u32 v31, v31, 2, v29')
    A(f'v_mul_u32_u24 v{vWL}, 1088, v31')
    A('v_and_b32 v31, 1, v27')
    A(f'v_lshl_add_u32 v{vWL}, v31, 9, v{vWL}')
    A(f'v_lshl_add_u32 v{vWL}, v30, 4, v{vWL}')
    A('v_lshrrev_b32 v31, 1, v28')
    A('v_xor_b32 v31, v31, v27')
    A('v_lshlrev_b32 v31, 4, v31')
    A(f'v_lshl_add_u32 v{vXA0}, v28, 7, v31')
    A(f'v_mul_u32_u24 v{vKL}, 1088, v29')
    A(f'v_lshl_add_u32 v{vKL}, v30, 8, v{vKL}')
    A('v_xor_b32 v31, v27, v30')
    A(f'v_lshl_add_u32 v{vKL}, v31, 4, v{vKL}')
    A(f'v_mul_u32_u24 v{vVL0}, 1088, v29')
    A(f'v_lshl_add_u32 v{vVL0}, v27, 8, v{vVL0}')
    A(f'v_lshl_add_u32 v{vVL0}, v30, 3, v{vVL0}')
    A('v_and_b32 v31, 1, v27')
    A('v_lshlrev_b32 v31, 5, v31')
    A(f'v_sub_u32 v{vVL1}, v{vVL0}, v31')
    A(f'v_add_u32 v{vVL0}, v{vVL0}, v31')
    A('v_xor_b32 v31, v28, v27')
    A('v_lshlrev_b32 v31, 4, v31')
    A(f'v_lshl_add_u32 v{vKD}, v27, 8, v31')
    A('v_and_b32 v31, 1, v27')
    A('v_lshlrev_b32 v31, 1, v31')
    A('v_xor_b32 v31, v28, v31')
    A('v_lshlrev_b32 v31, 4, v31')
    A(f'v_lshl_add_u32 v{vVD}, v27, 10, v31')
    if OPT['alldma']:
        A(f's_lshl_b32 s28, {sW}, 11')
        A(f'v_add_u32 v{vKD}, s28, v{vKD}')
        A(f's_lshr_b32 s28, {sW}, 1'); A('s_lshl_b32 s28, s28, 12')
        A(f's_and_b32 s29, {sW}, 1'); A('s_lshl_b32 s29, s29, 9'); A('s_add_u32 s28, s28, s29')
        A(f'v_add_u32 v{vVD}, s28, v{vVD}')
        A(f's_mul_i32 s70, {sW}, 2176')
        A(f's_add_u32 s71, s70, {NRING * SLOT}')
    A(f's_lshl_b32 s28, {sW}, 19')
    A(f'v_lshlrev_b32 v{vOST}, 4, v{vLANE}')
    A(f'v_add_u32 v{vOST}, s28, v{vOST}')
    A('v_lshlrev_b32 v31, 8, v28')
    A('v_lshl_add_u32 v31, v27, 4, v31')
    A(f's_mul_i32 {sW4352}, {sW}, 4352')
    A(f's_mov_b64 {sBAD}, 0')
    A('v_mov_b32 v27, 0')
    A(f'v_mov_b32 v28, {FLAG_ADDR}')
    A('ds_write_b32 v28, v27')
    A(f's_cmp_eq_u32 {sW}, 3')
    A('s_cbranch_scc1 L_w3')


def w_dma(h, rho):
    return (I(f's_add_u32 m0, {sWDMA}, {rho * 1088}'),
            I(f'buffer_load_dwordx4 v{vWD + rho}, {SRD_W}, {sWSOFF} offen {OPT["wflags"]} lds', tag=('W', h)))


def x_dma(s, i):
    xs = sXD0 if s % 2 == 0 else sXD1
    return (I(f's_add_u32 m0, {xs}, {i * 1024}'),
            I(f'buffer_load_dwordx4 v{vXD + i}, {SRD_X}, {sXSOFF} offen {OPT["xflags"]} lds', tag=('X', s)))


def w_read(h, dt, ks, e):
    t, u = dt >> 1, dt & 1
    off = ks * 8704 + e * 256 + 64 * t + 8 * u
    d = aWF + 8 * (dt % 4) + 4 * ks + 2 * e
    return I(f'ds_read_b64_tr_b16 {R("a", d, 2)}, v{vWA} offset:{off}', tag=('Wr', h))


def x_read(nqb, s, qb, ks):
    par = s % 2
    off = par * (XW_PAR if nqb == 4 else X3_PAR) + qb * 2048
    d = aX + 32 * par + 8 * qb + 4 * ks
    return I(f'ds_read_b128 {R("a", d, 4)}, v{vXA0 if ks == 0 else vXA1} offset:{off}', tag=('Xr', s))


def qproj(S, nqb, pre):
    A = S.a
    G = 2 * nqb
    nx = 2 * nqb
    if nqb == 4:
        A(f's_lshl_b32 {sXD0}, {sW}, 13')
        A(f's_add_u32 {sXD1}, {sXD0}, {XW_PAR}')
        A(f'v_add_u32 v{vXA0}, {sXD0}, v{vXA0}')
    else:
        A(f's_mov_b32 {sXD0}, {X3_BASE}')
        A(f's_mov_b32 {sXD1}, {X3_BASE + X3_PAR}')
        A(f'v_add_u32 v{vXA0}, {X3_BASE}, v{vXA0}')
    A(f'v_xor_b32 v{vXA1}, 64, v{vXA0}')
    def wslot(h):
        return WBEG + (h % 5) * SLOT
    def pro_w(h):
        A(f's_add_u32 {sWDMA}, {sW4352}, {wslot(h)}')
        A(f's_mov_b32 {sWSOFF}, {(h // 2) * 524288 + (h % 2) * 256}')
        for rho in range(4):
            m, d = w_dma(h, rho)
            A(m); A('s_nop 0'); A(d)
    def pro_x(s):
        A(f's_mov_b32 {sXSOFF}, {s * 128}')
        for i in range(nx):
            m, d = x_dma(s, i)
            A(m); A('s_nop 0'); A(d)
    pro_w(0); pro_x(0); pro_w(1); pro_w(2); pro_x(1); pro_w(3)
    for hh in range(2):
        A(f's_mov_b32 {sTMP}, {hh * 262144}')
        for t in range(4):
            A(f'buffer_load_dwordx4 {R("v", vKPRE + 16 * hh + 4 * t, 4)}, v31, {SRD_K}, {sTMP} offen offset:{64 * t}', tag=('KP', hh))
    if OPT['pfq']:
        A(f's_lshl_b32 {sTMP}, {sW}, 7')
        A(f'v_add_u32 v126, {sTMP}, v{vLANE}')
        A('v_lshlrev_b32 v126, 7, v126')
        A(f's_mov_b32 {sTMP}, 8192')
        for so in ('0', sTMP):
            pf = I(f'buffer_load_dword v127, v126, s[52:55], {so} offen {OPT["pfflags"]}')
            pf.wr = set()
            A(pf)
    PQ2 = int(OPT['pfq2'])
    if PQ2:
        A(f's_lshl_b32 {sTMP}, {sW}, 3')
        A(f'v_add_u32 v126, {sTMP}, v{vLANE}')
        A('v_lshlrev_b32 v126, 7, v126')
        A(f'v_mov_b32 v124, 0x40000000')
        A(f'v_cmp_gt_u32 vcc, 8, v{vLANE}')
        A('s_nop 1')
        A('v_cndmask_b32 v126, v124, v126, vcc')
        A('s_mov_b32 s69, 0')
    KVL = int(OPT['kvpf'])
    W3T = OPT['w3test']
    if W3T and nqb == 4:
        KVL = 0
    if KVL:
        sh = {8: 3, 16: 4, 32: 5, 64: 6}[KVL]
        A(f'v_lshrrev_b32 v125, {sh}, v{vLANE}')
        A(f'v_lshlrev_b32 v125, 13, v125')
        A(f'v_and_b32 v124, {KVL - 1}, v{vLANE}')
        A(f'v_lshl_add_u32 v125, v124, 7, v125')
        if not W3T:
            A(f's_lshl_b32 {sTMP}, {sW}, {13 + 6 - sh}')
            A(f'v_add_u32 v125, {sTMP}, v125')
        A('s_mov_b32 s69, 0')
    A(f's_add_u32 {sWDMA}, {sW4352}, {wslot(4)}')
    A(f's_mov_b32 {sWSOFF}, {2 * 524288}')
    A(f's_mov_b32 {sXSOFF}, 256')
    A(f's_mov_b32 {sWRD}, {wslot(0)}')
    A(f'v_add_u32 v{vWA}, {sWRD}, v{vWL}')
    for qb in range(nqb):
        for r in range(32):
            A(f'v_mov_b32 v{vACC + 32 * qb + r}, 0')
            A(f'v_accvgpr_write_b32 a{32 * qb + r}, 0')
    S.vmwait(lambda t: t in (('W', 0), ('X', 0)))
    A('s_waitcnt lgkmcnt(0)')
    A('s_barrier')
    stamp(S, 1)
    for qb in range(nqb):
        for ks in range(2):
            A(x_read(nqb, 0, qb, ks))
    for dt in range(2):
        for ks in range(2):
            for e in range(2):
                A(w_read(0, dt, ks, e))

    NST = 16
    for s in range(NST):
        if s % 2 == 0:
            S.mark('qp', s // 2)
        for hh in range(2):
            h = 2 * s + hh
            gaps = [[[] for _ in range(G)] for _ in range(8)]
            ms = [[None] * G for _ in range(8)]
            for dt in range(8):
                for qb in range(nqb):
                    for ks in range(2):
                        ms[dt][2 * qb + ks] = mfma(acc(hh, dt, qb), R('a', aWF + 8 * (dt % 4) + 4 * ks, 4),
                                                   R('a', aX + 32 * (s % 2) + 8 * qb + 4 * ks, 4), acc(hh, dt, qb))
                ms[dt][0].need = set(('a', aWF + 8 * (dt % 4) + r) for r in range(8))
                if dt == 0 and hh == 0:
                    ms[dt][0].need |= set(('a', aX + 32 * (s % 2) + r) for r in range(8 * nqb))
                tdt, th = dt + 2, h
                if tdt >= 8:
                    tdt -= 8; th += 1
                if th < 32:
                    k = 0
                    for ks in range(2):
                        for e in range(2):
                            gaps[dt][k].append(w_read(th, tdt, ks, e)); k += 1
            if nqb == 4:
                slots = [(g, gi) for g in range(6) for gi in (4, 6)]
            else:
                slots = [(g, gi) for g in range(6) for gi in (4, 5)]
            dl = []
            if h + 4 < 32:
                dl += [w_dma(h + 4, rho) for rho in range(4)]
            nW = len(dl)
            if hh == 0 and s + 2 < NST:
                dl += [x_dma(s + 2, i) for i in range(nx)]
            if OPT['qp_nodma']:
                dl = []
            for k, (m, d) in enumerate(dl):
                g, gi = slots[k]
                if nqb == 4:
                    gaps[g][gi - 1].insert(0, m)
                    gaps[g][gi].append(d)
                else:
                    if gi == 4:
                        gaps[g][3].insert(0, m)
                    else:
                        gaps[g][4].append(m)
                    gaps[g][gi].append(d)
            if PQ2 and hh == PQ2 - 1:
                pf = I(f'buffer_load_dword v127, v126, s[52:55], s69 offen {OPT["pfflags"]}', tag=('PF', s))
                pf.wr = set()
                gaps[6][2].append(pf)
                gaps[7][1].insert(0, I('s_add_u32 s69, s69, 4096'))
            if KVL and W3T:
                n = KVL // 32 if KVL >= 32 else (1 if (h % (32 // KVL)) == 0 else 0)
                for q in range(n):
                    srd = SRD_K if OPT['kvpfsrc'] == 'K' else SRD_V
                    pf = I(f'buffer_load_dword v127, v125, {srd}, s69 offen {OPT["kvpfflags"]}', tag=('PF', s))
                    pf.wr = set()
                    gaps[6][2 + 2 * q].append(pf)
                    gaps[6][3 + 2 * q].insert(0, I(f's_add_u32 s69, s69, {8192 * 64 // KVL}'))
            elif KVL and hh == 1:
                per = [0] if (KVL == 64 or s % 2 == 0) else []
                for q in per:
                    srd = SRD_K if OPT['kvpfsrc'] == 'K' else SRD_V
                    pf = I(f'buffer_load_dword v127, v125, {srd}, s69 offen {OPT["kvpfflags"]}', tag=('PF', s))
                    pf.wr = set()
                    gaps[6][2].append(pf)
                    gaps[7][1].insert(0, I(f's_add_u32 s69, s69, {4 * 8192 * 64 // KVL}'))
            if h + 4 < 32:
                inc = 256 if (h % 2 == 0) else (524288 - 256)
                gaps[2][1].insert(0, I(f's_add_u32 {sWSOFF}, {sWSOFF}, {inc}'))
            if hh == 0 and s + 2 < NST:
                gaps[6][5 if nqb == 4 else 4].insert(0, I(f's_add_u32 {sXSOFF}, {sXSOFF}, 128'))
            if hh == 1 and s + 1 < NST:
                xr = [x_read(nqb, s + 1, qb, ks) for qb in range(nqb) for ks in range(2)]
                xs = [(g, gi) for g in range(2, 6) for gi in ((4, 6) if nqb == 4 else (4, 5))]
                gaps[2][3].insert(0, P_vmwait(lambda t, s=s: t == ('X', s + 1)))
                for k, r in enumerate(xr):
                    g, gi = xs[k]
                    gaps[g][gi].append(r)
            if h + 1 < 32:
                gaps[4][0].insert(0, I(f's_add_u32 {sTMP}, {sWRD}, {SLOT}'))
                gaps[4][1].insert(0, I(f's_cmp_eq_u32 {sTMP}, {WEND}'))
                gaps[4][2].insert(0, I(f's_cselect_b32 {sNXT}, {WBEG}, {sTMP}'))
                last = G - 1
                gaps[5][last] += [P_vmwait(lambda t, h=h: t == ('W', h + 1)),
                                  P_lgwait(lambda t, h=h: t == ('Wr', h)),
                                  I('s_barrier' if not OPT['qp_nobar'] else 's_nop 0'),
                                  I(f'v_add_u32 v{vWA}, {sNXT}, v{vWL}')]
                gaps[6][1].insert(0, I(f's_add_u32 {sWDMA}, {sWRD}, {sW4352}'))
                gaps[6][2].insert(0, I(f's_mov_b32 {sWRD}, {sNXT}'))
            if hh == 1 and s % 2 == 1 and s < 14:
                gaps[7][G - 3].insert(0, I(f's_sub_u32 {sCNT}, {sCNT}, 1'))
                gaps[7][G - 2].insert(0, I(f's_cmp_lg_u32 {sCNT}, 0'))
            for dt in range(8):
                for gi in range(G):
                    A(ms[dt][gi])
                    gl = gaps[dt][gi]
                    if W3T and nqb == 3:
                        gl = [x for x in gl if not (x.kind == 'pseudo' and x.meta[0] == 'vmwait')]
                    S.ext(gl)
    S.mark('qpend', 0)


def q_epilogue(S, nqb):
    A = S.a
    A(f's_mov_b32 s48, {QSCALE:#x}')
    A('s_nop 7')
    t = vS
    for hh in (1, 0):
        for kap in range(4 * nqb - 1, -1, -1):
            qb, tt = kap // 4, kap % 4
            st = t + 8 * (kap % 2)
            if hh == 1:
                for r in range(8):
                    A(f'v_accvgpr_read_b32 v{st + r}, a{8 * kap + r}')
                src = st
            else:
                src = vACC + 8 * kap
            for r in range(0, 8, 2):
                A(f'v_pk_mul_f32 {R("v", st + r, 2)}, {R("v", src + r, 2)}, s[48:49] op_sel_hi:[1,0]')
            for r in range(4):
                A(f'v_cvt_pk_bf16_f32 v{st + r}, v{st + 2 * r}, v{st + 2 * r + 1}')
            for r in range(4):
                A(f'v_accvgpr_write_b32 a{aQ + 64 * hh + 4 * kap + r}, v{st + r}')


def xlane_max_or_add(S, op, regsl, tmpl):
    A = S.a
    for sw in ('v_permlane32_swap_b32', 'v_permlane16_swap_b32'):
        for r, t in zip(regsl, tmpl):
            A(f'v_mov_b32 v{t}, v{r}')
        A('s_nop 1')
        for r, t in zip(regsl, tmpl):
            A(f'{sw} v{r}, v{t}')
        A('s_nop 1')
        for r, t in zip(regsl, tmpl):
            A(f'{op} v{r}, v{r}, v{t}')


def standin(S, nqb):
    A = S.a
    mx = []
    for hh in range(2):
        for qb in range(nqb):
            d = vACC + 4 * (hh * 4 + qb)
            for t in range(4):
                A(mfma(R('v', d, 4), R('v', vKPRE + 16 * hh + 4 * t, 4), R('a', aQ + 64 * hh + 16 * qb + 4 * t, 4),
                       '0' if t == 0 else R('v', d, 4)))
            mx.append(d)
    A('s_nop 7')
    for d in mx:
        A(f'v_max3_f32 v{d}, v{d}, v{d + 1}, v{d + 2}')
    for d in mx:
        A(f'v_max_f32 v{d}, v{d}, v{d + 3}')
    xlane_max_or_add(S, 'v_max_f32', mx, [d + 1 for d in mx])
    set_negm(S, nqb, mx)


def set_negm(S, nqb, mx):
    A = S.a
    for qb in range(nqb):
        for r in range(4):
            A(f'v_sub_f32 v{vNEG + 4 * qb + r}, 0, v{mx[qb]}')
        A(f'v_sub_f32 v{vM2 + qb}, 0, v{mx[nqb + qb]}')


def kv_dma(tau):
    out = []
    fl = OPT['kvflags']
    if OPT['alldma']:
        for i in range(2):
            out.append((I(f's_add_u32 m0, {sDSLOT}, {64 * i}'),
                        I(f'buffer_load_dwordx4 v{vKD}, {SRD_K}, {sKOFF} offen offset:{1024 * i} {fl} lds', tag=('KV', tau))))
            out.append((I(f's_add_u32 m0, {sDSLOT}, {8704 + 832 * i}'),
                        I(f'buffer_load_dwordx4 v{vVD}, {SRD_V}, {sKOFF} offen offset:{256 * i} {fl} lds', tag=('KV', tau))))
        return out
    for j in range(8):
        so = sKOFF if j < 4 else sKOFF2
        ioff = 1024 * (j % 4)
        m0 = (4352 if j >= 4 else 0) + 64 * (j % 4)
        out.append((I(f's_add_u32 m0, {sDSLOT}, {m0}'),
                    I(f'buffer_load_dwordx4 v{vKD}, {SRD_K}, {so} offen offset:{ioff} {fl} lds', tag=('KV', tau))))
    for kb in range(2):
        for rho in range(4):
            so = sKOFF if kb == 0 else sKOFF2
            m0 = 8704 + kb * 4352 + 832 * rho
            out.append((I(f's_add_u32 m0, {sDSLOT}, {m0}'),
                        I(f'buffer_load_dwordx4 v{vVD}, {SRD_V}, {so} offen offset:{256 * rho} {fl} lds', tag=('KV', tau))))
    return out


def kv_advance():
    if OPT['rot']:
        L = [I('s_add_u32 s99, s99, 8192'), I(f's_xor_b32 {sKOFF}, s99, s100')]
        if not OPT['alldma']:
            L.append(I(f's_or_b32 {sKOFF2}, {sKOFF}, 4096'))
        L += [I(f's_add_u32 {sDSLOT}, {sDSLOT}, {SLOT}'),
              I(f's_cmp_eq_u32 {sDSLOT}, {"s71" if OPT["alldma"] else NRING * SLOT}'),
              I(f's_cselect_b32 {sDSLOT}, {"s70" if OPT["alldma"] else 0}, {sDSLOT}')]
        return L
    if OPT['alldma']:
        return [I(f's_add_u32 {sKOFF}, {sKOFF}, 8192'),
                I(f's_add_u32 {sDSLOT}, {sDSLOT}, {SLOT}'),
                I(f's_cmp_eq_u32 {sDSLOT}, s71'),
                I(f's_cselect_b32 {sDSLOT}, s70, {sDSLOT}')]
    return [I(f's_add_u32 {sKOFF}, {sKOFF}, 8192'),
            I(f's_add_u32 {sKOFF2}, {sKOFF2}, 8192'),
            I(f's_add_u32 {sDSLOT}, {sDSLOT}, {SLOT}'),
            I(f's_cmp_eq_u32 {sDSLOT}, {NRING * SLOT}'),
            I(f's_cselect_b32 {sDSLOT}, 0, {sDSLOT}')]


def kv_prologue(S, nqb):
    A = S.a
    DIST = int(OPT['dist'])
    if OPT['rot']:
        A('s_mov_b32 s99, 0')
    if OPT['alldma']:
        A(f's_mov_b32 {sDSLOT}, s70')
        A(f's_mov_b32 {sKOFF}, {"s100" if OPT["rot"] else 0}')
        for tau in range(DIST - 1):
            for m, d in kv_dma(tau):
                A(m); A('s_nop 0'); A(d)
            S.ext(kv_advance())
    elif nqb == 3:
        A(f's_mov_b32 {sDSLOT}, 0')
        A(f's_mov_b32 {sKOFF}, {"s100" if OPT["rot"] else 0}')
        A(f's_or_b32 {sKOFF2}, {sKOFF}, 4096')
        for tau in range(DIST - 1):
            for m, d in kv_dma(tau):
                A(m); A('s_nop 0'); A(d)
            S.ext(kv_advance())


def k_read(tau, kb, t):
    off = (tau % 2) * SLOT + kb * 4352 + 64 * t
    d = aK + 32 * (tau % 2) + 16 * kb + 4 * t
    return I(f'ds_read_b128 {R("a", d, 4)}, v{vKA} offset:{off}', tag=('Kr', tau))


def v_read(tau, db, e):
    off = (tau % 2) * SLOT + 8704 + e * 4352 + 32 * db
    d = aV + 32 * (tau % 2) + 4 * db + 2 * e
    return I(f'ds_read_b64_tr_b16 {R("a", d, 2)}, v{vVA0 if db % 2 == 0 else vVA1} offset:{off}', tag=('Vr', tau))


def o_epilogue_items(nqb, hh, qb, packed):
    L = []
    inv = vLT + qb
    so = qb * 131072 + hh * 4096
    if not (hh == 0 and OPT['park']):
        L.append(I(f's_mov_b32 {sOOFF}, {so}'))
    for t in range(4):
        st = vE + 4 * (t % 2)
        src = vACC + 32 * qb + 8 * t
        if packed:
            for r in range(0, 8, 2):
                L.append(I(f'v_pk_mul_f32 {R("v", src + r, 2)}, {R("v", src + r, 2)}, {R("v", inv & ~1, 2)} op_sel:[0,{inv & 1}] op_sel_hi:[1,{inv & 1}]'))
        else:
            for r in range(8):
                L.append(I(f'v_mul_f32 v{src + r}, v{src + r}, v{inv}'))
        for r in range(4):
            L.append(I(f'v_cvt_pk_bf16_f32 v{st + r}, v{src + 2 * r}, v{src + 2 * r + 1}'))
        if hh == 0 and OPT['park']:
            for r in range(4):
                L.append(I(f'v_accvgpr_write_b32 a{aQ + 16 * qb + 4 * t + r}, v{st + r}'))
            continue
        L.append(I(f'buffer_store_dwordx4 {R("v", st, 4)}, v{vOST}, {SRD_O}, {sOOFF} offen offset:{1024 * t} {OPT["oflags"]}', tag=('O', hh)))
    return L


def l_finish_items(qb):
    l0, l1, lt, tmp = vL + 2 * qb, vL + 2 * qb + 1, vLT + qb, vT
    L = [I(f'v_add_f32 v{lt}, v{l0}, v{l1}'),
         I(f'v_mov_b32 v{l0}, 0'),
         I(f'v_mov_b32 v{l1}, 0'),
         I(f'v_mov_b32 v{tmp}, v{lt}'),
         I('s_nop 1'),
         I(f'v_permlane32_swap_b32 v{lt}, v{tmp}'),
         I('s_nop 1'),
         I(f'v_add_f32 v{lt}, v{lt}, v{tmp}'),
         I(f'v_mov_b32 v{tmp}, v{lt}'),
         I('s_nop 1'),
         I(f'v_permlane16_swap_b32 v{lt}, v{tmp}'),
         I('s_nop 1'),
         I(f'v_add_f32 v{lt}, v{lt}, v{tmp}'),
         I(f'v_cmp_nge_f32 vcc, {LTHRESH:#x}, v{lt}'),
         I(f'v_rcp_f32 v{lt}, v{lt}'),
         I('s_nop 1'),
         I(f's_or_b64 {sBAD}, {sBAD}, vcc')]
    return L


def attention(S, nqb, v3):
    A = S.a
    N = 64 * nqb
    dmawave = (nqb == 3) or OPT['alldma']
    DIST = int(OPT['dist'])
    MEMPOS = [int(x) for x in OPT['mempos'].split(',')]
    A(f'L_attn{v3}:')
    for qb in range(nqb):
        A(f'v_mov_b32 v{vL + 2 * qb}, 0')
        A(f'v_mov_b32 v{vL + 2 * qb + 1}, 0')
    A(f's_mov_b32 {sRBASE}, 0')
    if OPT['fst']:
        A('s_mov_b32 s98, 0')
    A(f'v_mov_b32 v{vKA}, v{vKL}')
    A(f'v_mov_b32 v{vVA0}, v{vVL0}')
    A(f'v_mov_b32 v{vVA1}, v{vVL1}')

    PFS = int(OPT['pf'])
    if OPT['tailpf'] and nqb == 4:
        A(f's_lshl_b32 {sTMP}, {sW}, 6')
        A(f'v_add_u32 v62, {sTMP}, v{vLANE}')
        A(f'v_lshlrev_b32 v62, 7, v62')
        A('s_mov_b32 s69, 0')
    if PFS and nqb == 4:
        A(f's_lshl_b32 {sTMP}, {sW}, 6')
        A(f'v_add_u32 v62, {sTMP}, v{vLANE}')
        A(f'v_mul_u32_u24 v62, {PFS}, v62')
        A(f's_mov_b32 s69, {(-int(OPT["pfstart"]) * 192 * PFS) & 0xffffffff:#x}')

    def unit(u):
        return divmod(u, nqb)

    extra = {}

    def add_extra(sig, lst):
        extra.setdefault(sig, []).extend(lst)

    for qb in range(nqb):
        se = 31 * nqb + qb
        add_extra(se, [I(f'v_mov_b32 v{vNEG + 4 * qb + r}, v{vM2 + qb}') for r in range(4)])
        add_extra(se, l_finish_items(qb))
        items = o_epilogue_items(nqb, 0, qb, False)
        half = 1 + 2 * 13 if not OPT['park'] else 2 * 16
        add_extra(se + 1, items[:half])
        add_extra(se + 2, items[half:])

    def frame_reads(tau):
        tt = tau + 1
        if tt > 63:
            return []
        return [k_read(tt, kb, t) for kb in range(2) for t in range(4)] + [v_read(tt, db, e) for db in range(8) for e in range(2)]

    def emit_slot(sig, mem, salus):
        mf = [None] * 16
        u = sig + 2
        if 0 <= u < N:
            tau, qb = unit(u)
            hd = tau // 32
            sp = u % 2
            for kb in range(2):
                d = R('v', vS + 8 * sp + 4 * kb, 4)
                for t in range(4):
                    mf[8 * kb + t] = mfma(d, R('a', aK + 32 * (tau % 2) + 16 * kb + 4 * t, 4),
                                          R('a', aQ + 64 * hd + 16 * qb + 4 * t, 4),
                                          R('v', vNEG + 4 * qb, 4) if t == 0 else d)
                mf[8 * kb].need = set(('a', aK + 32 * (tau % 2) + 16 * kb + r) for r in range(16))
        u = sig
        if 0 <= u < N:
            tau, qb = unit(u)
            pp = u % 2
            for db in range(8):
                d = R('v', vACC + 32 * qb + 4 * db, 4)
                mf[4 + 8 * (db // 4) + db % 4] = mfma(d, R('a', aV + 32 * (tau % 2) + 4 * db, 4), R('v', vP + 4 * pp, 4),
                                                      '0' if tau % 32 == 0 else d)
            for hb in range(2):
                mf[4 + 8 * hb].need = set(('a', aV + 32 * (tau % 2) + 16 * hb + r) for r in range(16))
        gaps = [[] for _ in range(16)]
        u = sig + 1
        if 0 <= u < N:
            tau, qb = unit(u)
            s0 = vS + 8 * (u % 2)
            p0 = vP + 4 * (u % 2)
            l0 = vL + 2 * qb
            E = [0, 1, 3, 5, 7, 9, 11, 13]
            for k, g in enumerate(E):
                gaps[g].append(I(f'v_exp_f32 v{s0 + k}, v{s0 + k}'))
            for k, g in enumerate([2, 6, 10, 14]):
                gaps[g].append(I(f'v_cvt_pk_bf16_f32 v{p0 + k}, v{s0 + 2 * k}, v{s0 + 2 * k + 1}'))
            for k, g in enumerate([4, 8, 12, 15]):
                if OPT['pkadd']:
                    gaps[g].append(I(f'v_pk_add_f32 {R("v", l0, 2)}, {R("v", l0, 2)}, {R("v", s0 + 2 * k, 2)}'))
                    continue
                gaps[g].append(I(f'v_add_f32 v{l0}, v{l0}, v{s0 + 2 * k}'))
                gaps[g].append(I(f'v_add_f32 v{l0 + 1}, v{l0 + 1}, v{s0 + 2 * k + 1}'))
        for g in range(16):
            gaps[g] = [x for x in gaps[g] if not any(dd and x.mn.startswith(dd) for dd in OPT['drop'].split(','))]
        nrd = sum(1 for g in range(16) for x in mem.get(g, []) if x.kind == 'ds')
        salus = dict(salus)
        salus[15] = [P_lgkeep(min(nrd, 6))] + salus.get(15, [])
        for g in range(16):
            gaps[g] = salus.get(g, []) + mem.get(g, []) + gaps[g]
        ex = extra.get(sig, [])
        per = (len(ex) + 15) // 16
        k = 0
        for g in range(16):
            if mf[g] is not None:
                A(mf[g])
            S.ext(gaps[g])
            if ex:
                S.ext(ex[k:k + per]); k += per

    mempos4 = MEMPOS
    for tau in range(-1, 64):
        if tau % 2 == 1 and tau >= 1:
            S.mark('att', tau)
        elif tau in (-1, 0):
            S.mark('attp', tau)
        elif tau in (31, 32, 63):
            pass
        slots = list(range(nqb * tau, nqb * tau + nqb)) if tau >= 0 else [-2, -1]
        reads = frame_reads(tau)
        dm = kv_dma(tau + DIST) if (dmawave and tau + DIST <= 63 + DIST and tau < 63) else []
        if OPT['att_nodma'] and tau >= 0:
            dm = []
        TAIL0 = 57
        if OPT['park'] and tau >= TAIL0 and tau + DIST > 63:
            dm = []
        head = []
        if tau + 1 <= 63:
            if dmawave and not (OPT['att_novm'] and tau >= 0):
                head.append(P_vmwait(lambda t, tt=tau + 1: t == ('KV', tt)))
            if not (OPT['att_nobar'] and tau >= 0):
                head.append(I('s_barrier'))
        upd = []
        if tau % 2 == 1 and tau + 1 <= 63 and tau >= 1:
            pass
        if OPT['fst'] and tau >= 1:
            h2 = [I('s_mov_b32 m0, s98'), I('s_nop 1'), I('v_writelane_b32 v59, s92, m0'), I('v_writelane_b32 v60, s94, m0'), I('v_writelane_b32 v61, s96, m0'),
                  I('s_add_u32 s98, s98, 1'), I('s_memtime s[92:93]')]
            for x in head:
                h2.append(x)
                if x.kind == 'pseudo':
                    h2.append(I('s_memtime s[94:95]'))
            h2.append(I('s_memtime s[96:97]'))
            if OPT['fst'] == 'rt':
                h2 = [x for x in h2 if x.txt != 's_memtime s[94:95]'] + [I('s_memrealtime s[94:95]')]
            for x in h2:
                if x.mn in ('s_memtime', 's_memrealtime'):
                    x.kind = 'salu'; x.wr = set()
                if x.mn == 'v_writelane_b32':
                    x.rd = set(); x.wr = set()
            head = h2
        S.ext(head)
        if tau == -1:
            for r in reads[:8]:
                A(r)
            reads = reads[8:]
        nsl = len(slots)
        mem = [dict() for _ in slots]
        sal = [dict() for _ in slots]
        if nqb == 4 and tau >= 0:
            pos = [(j, g) for j in range(4) for g in mempos4]
        elif nqb == 4:
            pos = [(j, g) for j in range(2) for g in (0, 1, 2, 4, 6, 8, 10, 14)]
        elif tau >= 0:
            pos = [(j, g) for j in range(3) for g in (0, 1, 2, 4, 6, 8, 10, 14)]
        else:
            pos = [(j, g) for j in range(2) for g in (0, 1, 2, 4, 6, 8, 10, 14)]
        if OPT['att_nolds'] and tau >= 1:
            reads = []
        for r, (j, g) in zip(reads, pos):
            mem[j].setdefault(g, []).append(r)
        if dm and tau == -1:
            for m, d in dm:
                A(m); A('s_nop 0'); A(d)
        elif dm:
            dpos = [(j, g) for j in range(nsl) for g in (3, 5, 7, 9, 11, 13)][:16]
            if OPT['alldma']:
                G0 = int(OPT['dmag'])
                dpos = [(j, G0) for j in range(4)] if nsl == 4 else ([(0, G0), (1, G0), (2, G0), (2, G0 + 6)] if nsl == 3 else [(0, G0), (0, G0 + 6), (1, G0), (1, G0 + 6)])
            for (m, d), (j, g) in zip(dm, dpos):
                mem[j].setdefault(g, []).append(d)
                sal[j].setdefault(g - 1, []).append(m)
        for j, sig in enumerate(slots):
            if j == nsl - 1 and tau % 2 == 0:
                extra.setdefault(sig, [])
                ups = [I(f's_add_u32 {sRBASE}, {sRBASE}, {2 * SLOT}'),
                       I(f's_cmp_eq_u32 {sRBASE}, {NRING * SLOT}'),
                       I(f's_cselect_b32 {sRBASE}, 0, {sRBASE}')]
                if dmawave and not OPT['alldma']:
                    sal[j].setdefault(14, []).extend(ups)
                else:
                    sal[j].setdefault(3, []).append(ups[0])
                    sal[j].setdefault(5, []).append(ups[1])
                    sal[j].setdefault(7, []).append(ups[2])
                mem[j].setdefault(15, []).extend([I(f'v_add_u32 v{vKA}, {sRBASE}, v{vKL}'),
                                                  I(f'v_add_u32 v{vVA0}, {sRBASE}, v{vVL0}'),
                                                  I(f'v_add_u32 v{vVA1}, {sRBASE}, v{vVL1}')])
            if j == nsl - 1 and dm:
                adv = kv_advance()
                for k, ins in enumerate(adv):
                    mem[j].setdefault(15, []).append(ins)
            if OPT['park']:
                T0 = 63 - DIST + 1
                k = (tau - T0) * nsl + j
                per = -(-4 * nqb // ((63 - T0) * nsl))
                if tau >= T0:
                    for q in range(k * per, min((k + 1) * per, 4 * nqb)):
                        qb_, t_ = divmod(q, 4)
                        g_ = 4 + 6 * (q - k * per)
                        sal[j].setdefault(g_ - 1, []).append(I(f's_mov_b32 {sOOFF}, {qb_ * 131072}'))
                        mem[j].setdefault(g_, []).append(I(f'buffer_store_dwordx4 {R("a", aQ + 16 * qb_ + 4 * t_, 4)}, v{vOST}, {SRD_O}, {sOOFF} offen offset:{1024 * t_} {OPT["oflags"]}', tag=('O', 0)))
            TP = int(OPT['tailpf'])
            if TP and nqb == 4 and j == 2 and TP <= tau < TP + 3:
                pf = I(f'buffer_load_dword v63, v62, s[52:55], s69 offen {OPT["pfflags"]}')
                pf.wr = set()
                mem[j].setdefault(8, []).append(pf)
                sal[j].setdefault(9, []).append(I(f's_add_u32 s69, s69, {192 * 128}'))
            if PFS and nqb == 4 and j == 1 and tau % 2 == 1 and int(OPT['pfloop']) <= tau < int(OPT['pfloop']) + 30:
                pf = I(f'buffer_load_dword v63, v62, s[52:55], s69 offen {OPT["pfflags"]}')
                pf.wr = set()
                mem[j].setdefault(4, []).append(pf)
                sal[j].setdefault(9, []).append(I(f's_add_u32 s69, s69, {192 * PFS}'))
            if j == nsl - 1 and tau % 2 == 0 and (2 <= tau <= 30 or 34 <= tau <= 62):
                mem[j].setdefault(15, []).extend([I(f's_sub_u32 {sCNT}, {sCNT}, 1'), I(f's_cmp_lg_u32 {sCNT}, 0')])
            emit_slot(sig, mem[j], sal[j])
    S.mark('attend', 0)
    A('s_nop 7')
    for qb in range(nqb):
        S.ext(l_finish_items(qb))
    for qb in range(nqb):
        S.ext(o_epilogue_items(nqb, 1, qb, True))


def true_max_pass(S, nqb, v3):
    A = S.a
    A(f'v_lshrrev_b32 v27, 4, v{vLANE}')
    A(f'v_and_b32 v28, 15, v{vLANE}')
    A('v_lshlrev_b32 v31, 8, v28')
    A('v_lshl_add_u32 v31, v27, 4, v31')
    mx = [vACC + 64 + i for i in range(2 * nqb)]
    for hh in range(2):
        for qb in range(nqb):
            A(f'v_mov_b32 v{mx[hh * nqb + qb]}, 0xff7fffff')
        A(f's_mov_b32 {sTMP}, {hh * 262144}')
        A(f's_mov_b32 {sCNT}, 64')
        A(f'L_tm{v3}_{hh}:')
        for t in range(4):
            A(f'buffer_load_dwordx4 {R("v", vKPRE + 4 * t, 4)}, v31, {SRD_K}, {sTMP} offen offset:{64 * t}')
        A('s_waitcnt vmcnt(0)')
        for qb in range(nqb):
            d = vACC + 4 * qb
            for t in range(4):
                A(mfma(R('v', d, 4), R('v', vKPRE + 4 * t, 4), R('a', aQ + 64 * hh + 16 * qb + 4 * t, 4), '0' if t == 0 else R('v', d, 4)))
        A('s_nop 7')
        for qb in range(nqb):
            d = vACC + 4 * qb
            m = mx[hh * nqb + qb]
            A(f'v_max3_f32 v{m}, v{m}, v{d}, v{d + 1}')
            A(f'v_max3_f32 v{m}, v{m}, v{d + 2}, v{d + 3}')
        A(f's_add_u32 {sTMP}, {sTMP}, 4096')
        A(f's_sub_u32 {sCNT}, {sCNT}, 1')
        A(f's_cmp_lg_u32 {sCNT}, 0')
        A(f's_cbranch_scc1 L_tm{v3}_{hh}')
    xlane_max_or_add(S, 'v_max_f32', mx, [vACC + 80 + i for i in range(2 * nqb)])
    set_negm(S, nqb, mx)


def k1_variant(nqb):
    v3 = '3' if nqb == 3 else ''
    S = Stream()
    A = S.a
    qproj(S, nqb, None)
    stamp(S, 2)
    S.lgwait0()
    A('s_barrier')
    kv_prologue(S, nqb)
    q_epilogue(S, nqb)
    if OPT['dump'] == 'q':
        A('s_load_dwordx2 s[64:65], s[0:1], 96')
        A('s_waitcnt lgkmcnt(0)')
        A('s_add_u32 s48, s64, 0x4000000'); A('s_addc_u32 s49, s65, 0'); A('s_mov_b32 s50, 0x4000000'); A('s_mov_b32 s51, 0x20000')
        A(f's_lshl_b32 s52, s2, 2'); A(f's_add_u32 s52, s52, {sW}'); A('s_lshl_b32 s52, s52, 15')
        A(f'v_lshlrev_b32 v27, 2, v{vLANE}')
        for r in range(128):
            A(f'v_accvgpr_read_b32 v28, a{r}')
            A(f'buffer_store_dword v28, v27, s[48:51], s52 offen')
            A('s_add_u32 s52, s52, 256')
            A('s_waitcnt vmcnt(0)')
    S.vmwait(lambda t: t is not None and t[0] == 'KP')
    A(f's_cmp_lg_u32 {sFB}, 0')
    A(f's_cbranch_scc1 L_tm{v3}')
    standin(S, nqb)
    stamp(S, 3)
    attention(S, nqb, v3)
    stamp(S, 4)
    A(f's_cmp_eq_u32 {sFB}, {0 if OPT["nofb"] else 1}')
    A(f's_cbranch_scc1 L_done{v3}')
    A(f's_cmp_eq_u64 {sBAD}, 0')
    A(f's_cbranch_scc1 L_ok{v3}')
    A('v_mov_b32 v27, 1')
    A(f'v_mov_b32 v28, {FLAG_ADDR}')
    A('ds_write_b32 v28, v27')
    A(f'L_ok{v3}:')
    A('s_waitcnt lgkmcnt(0)')
    A('s_barrier')
    A(f'v_mov_b32 v28, {FLAG_ADDR}')
    A('ds_read_b32 v27, v28')
    A('s_waitcnt lgkmcnt(0)')
    A('v_readfirstlane_b32 s48, v27')
    A('s_nop 3')
    A('s_cmp_eq_u32 s48, 0')
    A(f's_cbranch_scc1 L_done{v3}')
    A(f's_mov_b32 {sFB}, 1')
    A('s_waitcnt vmcnt(0) lgkmcnt(0)')
    A('s_barrier')
    A('s_branch L_restart')
    A(f'L_done{v3}:')
    if OPT['stamps']:
        stamp(S, 5)
        A('s_load_dwordx2 s[64:65], s[0:1], 96')
        A('s_waitcnt lgkmcnt(0)')
        A('s_add_u32 s48, s64, 0x8000000'); A('s_addc_u32 s49, s65, 0'); A('s_mov_b32 s50, 0x100000'); A('s_mov_b32 s51, 0x20000')
        A(f's_lshl_b32 s52, s2, 2'); A(f's_add_u32 s52, s52, {sW}'); A('s_lshl_b32 s52, s52, 6')
        A('v_mov_b32 v28, 0')
        for k in range(6):
            A(f'v_mov_b32 v27, s{sST + 4 * k}')
            A(f'buffer_store_dword v27, v28, s[48:51], s52 offen offset:{4 * k}')
            A(f'v_mov_b32 v27, s{sST + 4 * k + 2}')
            A(f'buffer_store_dword v27, v28, s[48:51], s52 offen offset:{4 * k + 32}')
        if OPT['fst']:
            A('s_add_u32 s48, s64, 0x8200000'); A('s_addc_u32 s49, s65, 0')
            A(f's_lshl_b32 s52, s2, 2'); A(f's_add_u32 s52, s52, {sW}'); A('s_mul_i32 s52, s52, 768')
            A(f'v_lshlrev_b32 v28, 2, v{vLANE}')
            for k in range(3):
                A(f'buffer_store_dword v{59 + k}, v28, s[48:51], s52 offen offset:{256 * k}')
        A('s_waitcnt vmcnt(0)')
    if OPT['dbgst'] and nqb == 4:
        stamp(S, 5)
        A('s_lshl_b32 s52, s2, 2'); A(f's_or_b32 s52, s52, {sW}')
        A('s_cmp_lg_u32 s52, 0')
        A('s_cbranch_scc1 L_nodbg')
        A('s_load_dwordx2 s[48:49], s[0:1], 88')
        A('s_waitcnt lgkmcnt(0)')
        A('s_mov_b32 s50, 256'); A('s_mov_b32 s51, 0x20000')
        A('v_mov_b32 v28, 0')
        for k in range(6):
            A(f'v_mov_b32 v27, s{sST + 4 * k + 2}')
            A(f'buffer_store_dword v27, v28, s[48:51], 0 offen offset:{4 * k}')
        A('s_waitcnt vmcnt(0)')
        A('L_nodbg:')
    A('s_endpgm')
    A(f'L_tm{v3}:')
    true_max_pass(S, nqb, v3)
    A('s_nop 7')
    A(f's_branch L_attn{v3}')
    items, vmq, lgq = resolve(S.it)
    items, nfix = check_hazards(items, True, 'k1_%d' % nqb)
    check_scc(items, 'k1_%d' % nqb)
    loops = {'qp': (0, 6, f'L_qp{v3}', sCNT)}
    txt = fold2(items, v3)
    return txt


def fold2(items, v3):
    segs = split_marks(items)
    out = []

    def fold(group, label):
        t0 = text(group[0][2])
        for g in group[1:]:
            t = text(g[2])
            if t != t0:
                for a, b in zip(t0, t):
                    if a != b:
                        print(f'loop {label}: seg {group[0][0]}{group[0][1]} vs {g[1]} differ:\n   {a}\n   {b}')
                        break
                if len(t) != len(t0):
                    print(f'loop {label}: length differs {len(t0)} vs {len(t)} (iter {g[1]})')
                return None
        lastscc = None
        for ln in t0:
            mn = ln.split()[0]
            if re.match(r's_(add|sub|cmp|and|or|xor|lshl|lshr|min|max|bfe|not|andn2)', mn):
                lastscc = ln
        assert lastscc.startswith('s_cmp_lg_u32 ' + sCNT), lastscc
        return [f's_mov_b32 {sCNT}, {len(group)}', f'{label}:'] + t0 + [f's_cbranch_scc1 {label}']

    def fold_auto(group, label):
        for p in range(len(group)):
            r = fold(group[p:], label) if len(group) - p > 1 else None
            if r is not None:
                res = []
                for g in group[:p]:
                    res += [ln for ln in text(g[2])]
                print(f'{label}: peeled {p}, loop x{len(group) - p}, body {len(r)} lines')
                return res + r
        raise SystemExit('cannot fold ' + label)

    i = 0
    while i < len(segs):
        name, idx, its = segs[i]
        if name == 'qp' and idx == 0:
            grp = [s for s in segs if s[0] == 'qp' and s[1] <= 6]
            out += fold_auto(grp, f'L_qp{v3}')
            i += len(grp)
            continue
        if name == 'att' and idx in (1, 33):
            grp = [s for s in segs if s[0] == 'att' and idx <= s[1] <= (idx + 28 if not (idx == 33 and (OPT['park'] or OPT['tailpf'])) else 55)]
            out += fold_auto(grp, f'L_at{v3}_{idx}')
            i += len(grp)
            continue
        out += text(its)
        i += 1
    return out


def descriptor(name, vg=512, acc_off=256):
    return ['.section .rodata,"a"', '.p2align 6', f'.amdhsa_kernel {name}',
            f'  .amdhsa_next_free_vgpr {vg}', '  .amdhsa_next_free_sgpr 102', f'  .amdhsa_accum_offset {acc_off}',
            '  .amdhsa_group_segment_fixed_size 0', '  .amdhsa_kernarg_size 104', '  .amdhsa_user_sgpr_count 2',
            '  .amdhsa_user_sgpr_kernarg_segment_ptr 1', '  .amdhsa_system_sgpr_workgroup_id_x 1', '.end_amdhsa_kernel']


HEADER = open('concat_heads__mha_block_cached__gqa_block_cached__near_ridge.s.ref').read().split('; Override launch')[0] \
    if os.path.exists('concat_heads__mha_block_cached__gqa_block_cached__near_ridge.s.ref') else ''


def main(path):
    import gen2
    L = [HEADER.rstrip('\n')] if HEADER else []
    L.append(f'; @launch kernel={KN} grid=(256,1,1) block=(256,1,1) lds=163840')
    if not OPT['only_k1']:
        L.append(f'; @launch kernel={K2} grid=(240,1,1) block=(256,1,1) lds=163840')
    L += ['.amdgcn_target "amdgcn-amd-amdhsa--gfx950"', '.text', f'.globl {KN}', '.p2align 8', f'.type {KN},@function', f'{KN}:']
    S = Stream()
    k1_setup(S)
    its, _, _ = resolve(S.it)
    its, _ = check_hazards(its, True, 'setup')
    L += text(its)
    L += k1_variant(4)
    L.append('L_w3:')
    L += k1_variant(3)
    L += ['L_end1:', 's_endpgm']
    if not OPT['only_k1']:
        L += [f'.globl {K2}', '.p2align 8', f'.type {K2},@function', f'{K2}:']
        L += gen2.kernel2(OPT)
    L += descriptor(KN)
    if not OPT['only_k1']:
        L += descriptor(K2)
    s = '\n'.join(L) + '\n'
    open(path, 'w').write(s)
    print('wrote', path, len(s), 'bytes', len(L), 'lines')


if __name__ == '__main__':
    for a in sys.argv[2:]:
        k, v = a.split('=')
        OPT[k] = {'True': True, 'False': False, 'None': None}.get(v, v.replace('+', ' ') if isinstance(v, str) else v)
    main(sys.argv[1])
```

```python
import re

RTOK = re.compile(r'-?\|?\b([vas])\[(\d+):(\d+)\]|\b([vas])(\d+)\b|\b(m0|vcc|exec|scc)\b')
TRANS = ('v_exp_f32', 'v_log_f32', 'v_rcp_f32', 'v_rsq_f32', 'v_sqrt_f32', 'v_sin_f32', 'v_cos_f32', 'v_rcp_iflag_f32')


def regs(op):
    out = []
    for m in RTOK.finditer(op):
        if m.group(1):
            out += [(m.group(1), i) for i in range(int(m.group(2)), int(m.group(3)) + 1)]
        elif m.group(4):
            out.append((m.group(4), int(m.group(5))))
        else:
            nm = m.group(6)
            if nm == 'vcc':
                out += [('vcc', 0)]
            else:
                out.append((nm, 0))
    return out


class I:
    __slots__ = ('txt', 'mn', 'kind', 'rd', 'wr', 'srcc', 'tag', 'need', 'ops', 'nst', 'meta')

    def __init__(self, txt, tag=None, need=None, meta=None):
        self.txt = txt
        self.tag = tag
        self.need = need
        self.meta = meta
        self.srcc = []
        self.nst = 1
        t = txt.split(';')[0].strip()
        parts = t.split(None, 1)
        mn = parts[0] if parts else ''
        self.mn = mn
        rest = parts[1] if len(parts) > 1 else ''
        ops = [o.strip() for o in rest.split(',')] if rest else []
        self.ops = ops
        rd, wr = [], []
        if mn.endswith(':') or mn.startswith('.') or mn == '':
            self.kind = 'label'
            self.nst = 0
        elif mn == 'PSEUDO':
            self.kind = 'pseudo'
            self.nst = 0
        elif mn.startswith('v_mfma'):
            self.kind = 'mfma'
            wr = regs(ops[0])
            rd = regs(ops[1]) + regs(ops[2])
            self.srcc = regs(ops[3])
        elif mn.startswith('ds_read') or mn.startswith('ds_bpermute') or mn.startswith('ds_swizzle'):
            self.kind = 'ds'
            wr = regs(ops[0])
            rd = sum((regs(o) for o in ops[1:]), [])
        elif mn.startswith('ds_write'):
            self.kind = 'ds'
            rd = sum((regs(o) for o in ops), [])
        elif mn.startswith('buffer_load'):
            if re.search(r'\blds\b', rest):
                self.kind = 'dma'
                rd = sum((regs(o) for o in ops), []) + [('m0', 0)]
            else:
                self.kind = 'vmem'
                wr = regs(ops[0])
                rd = sum((regs(o) for o in ops[1:]), [])
        elif mn.startswith('global_load'):
            self.kind = 'vmem'
            wr = regs(ops[0])
            rd = sum((regs(o) for o in ops[1:]), [])
        elif mn.startswith('buffer_store') or mn.startswith('buffer_atomic') or mn.startswith('buffer_wbl2') or mn.startswith('buffer_inv'):
            self.kind = 'vmem'
            rd = sum((regs(o) for o in ops), [])
            if mn.startswith('buffer_atomic') and 'sc0' in rest:
                wr = regs(ops[0])
        elif mn.startswith('s_load') or mn.startswith('s_memtime') or mn.startswith('s_memrealtime'):
            self.kind = 'smem'
            wr = regs(ops[0])
            rd = sum((regs(o) for o in ops[1:]), [])
        elif mn.startswith('v_'):
            self.kind = 'trans' if mn.replace('_e32', '').replace('_e64', '') in TRANS else 'valu'
            if mn.startswith('v_cmp'):
                wr = regs(ops[0])
                rd = sum((regs(o) for o in ops[1:]), [])
            elif mn.startswith('v_permlane') and 'swap' in mn:
                wr = regs(ops[0]) + regs(ops[1])
                rd = list(wr)
            elif mn.startswith('v_add_co') or mn.startswith('v_addc_co') or mn.startswith('v_sub_co'):
                wr = regs(ops[0]) + regs(ops[1])
                rd = sum((regs(o) for o in ops[2:]), [])
            elif mn.startswith('v_fmac') or mn.startswith('v_pk_fmac'):
                wr = regs(ops[0])
                rd = sum((regs(o) for o in ops), [])
            else:
                wr = regs(ops[0])
                rd = sum((regs(o) for o in ops[1:]), [])
                if mn.startswith('v_cndmask') and len(ops) == 3:
                    rd.append(('vcc', 0))
        elif mn.startswith('s_'):
            if mn == 's_nop':
                self.kind = 'nop'
                self.nst = int(ops[0], 0) + 1
            elif mn == 's_waitcnt':
                self.kind = 'wait'
            elif mn == 's_barrier':
                self.kind = 'bar'
            elif mn.startswith('s_cmp') or mn.startswith('s_bitcmp'):
                self.kind = 'salu'
                rd = sum((regs(o) for o in ops), [])
                wr = [('scc', 0)]
            elif mn == 's_getpc_b64':
                self.kind = 'salu'
                wr = regs(ops[0])
            elif mn.startswith('s_cbranch') or mn in ('s_branch', 's_endpgm', 's_setprio', 's_sleep', 's_sethalt'):
                self.kind = 'salu'
                if 'scc' in mn:
                    rd = [('scc', 0)]
                if 'vcc' in mn:
                    rd = [('vcc', 0)]
                if 'exec' in mn:
                    rd = [('exec', 0)]
            else:
                self.kind = 'salu'
                wr = regs(ops[0])
                rd = sum((regs(o) for o in ops[1:]), [])
                if mn.startswith('s_cselect') or mn.startswith('s_addc') or mn.startswith('s_subb'):
                    rd.append(('scc', 0))
                if 'saveexec' in mn:
                    wr = wr + [('exec', 0)]
        else:
            raise ValueError('unknown instr ' + txt)
        self.rd = set(rd)
        self.wr = set(wr)
        self.srcc = set(self.srcc)


def wait_txt(vm=None, lg=None):
    p = []
    if vm is not None:
        p.append(f'vmcnt({vm})')
    if lg is not None:
        p.append(f'lgkmcnt({lg})')
    return 's_waitcnt ' + ' '.join(p)


class Stream:
    def __init__(self):
        self.it = []

    def a(self, txt, tag=None, need=None, meta=None):
        if isinstance(txt, I):
            self.it.append(txt)
            return txt
        i = I(txt, tag, need, meta)
        self.it.append(i)
        return i

    def ext(self, lst):
        for x in lst:
            self.a(x)

    def vmwait(self, pred, note=''):
        i = I('PSEUDO vmwait', meta=('vmwait', pred, note))
        self.it.append(i)
        return i

    def lgwait0(self):
        i = I('PSEUDO lgwait', meta=('lgwait0',))
        self.it.append(i)
        return i

    def mark(self, name, idx):
        i = I('PSEUDO mark', meta=('mark', name, idx))
        self.it.append(i)


def P_vmwait(pred, cap=None):
    return I('PSEUDO vmwait', meta=('vmwait', pred, '', cap))


def P_lgwait0():
    return I('PSEUDO lgwait', meta=('lgwait0',))


def P_lgkeep(n):
    return I('PSEUDO lgkeep', meta=('lgkeep', n))


def P_lgwait(pred):
    return I('PSEUDO lgwait', meta=('lgwaitp', pred))


def resolve(items, vmq=None, lgq=None, hoist=True, verbose=False):
    vmq = list(vmq or [])
    lgq = list(lgq or [])
    out = []
    last_mfma_pos = None
    lg_issued_since = 0
    vm_issued_since = 0

    def emit_wait(vm=None, lg=None):
        if out and out[-1].kind == 'wait' and out[-1].meta == 'auto':
            p = out[-1]
            ovm, olg = p.need
            vm = ovm if vm is None else (vm if ovm is None else min(vm, ovm))
            lg = olg if lg is None else (lg if olg is None else min(lg, olg))
            out.pop()
        w = I(wait_txt(vm, lg), meta='auto')
        w.need = (vm, lg)
        out.append(w)

    for ins in items:
        if ins.kind == 'pseudo':
            m = ins.meta
            if m[0] == 'vmwait':
                last = -1
                for k, e in enumerate(vmq):
                    if m[1](e[0]):
                        last = k
                cap = m[3] if len(m) > 3 else None
                if last >= 0 or cap is not None:
                    n = len(vmq) - 1 - last if last >= 0 else cap
                    if cap is not None and n > cap:
                        n = cap
                    emit_wait(vm=n)
                    if n < len(vmq):
                        vmq = vmq[len(vmq) - n:] if n else []
            elif m[0] == 'lgwait0':
                if lgq:
                    emit_wait(lg=0)
                    lgq = []
            elif m[0] == 'lgwaitp':
                last = -1
                for k, e in enumerate(lgq):
                    if m[1](e[0]):
                        last = k
                if last >= 0:
                    n = len(lgq) - 1 - last
                    emit_wait(lg=n)
                    lgq = lgq[last + 1:]
            elif m[0] == 'lgkeep':
                if len(lgq) > m[1]:
                    emit_wait(lg=m[1])
                    lgq = lgq[len(lgq) - m[1]:] if m[1] > 0 else []
            else:
                out.append(ins)
            continue
        touch = ins.rd | ins.wr | ins.srcc
        if isinstance(ins.need, set):
            touch = touch | ins.need
        lastl = -1
        for k, e in enumerate(lgq):
            if e[1] & touch:
                lastl = k
        if lastl >= 0:
            n = len(lgq) - 1 - lastl
            done = False
            if hoist and ins.kind == 'mfma' and last_mfma_pos is not None and n >= lg_issued_since:
                nn = n - lg_issued_since
                pos = last_mfma_pos
                if pos < len(out) and out[pos].kind == 'wait' and out[pos].meta == 'auto':
                    ovm, olg = out[pos].need
                    nl = nn if olg is None else min(nn, olg)
                    w = I(wait_txt(ovm, nl), meta='auto')
                    w.need = (ovm, nl)
                    out[pos] = w
                else:
                    w = I(wait_txt(None, nn), meta='auto')
                    w.need = (None, nn)
                    out.insert(pos, w)
                done = True
            if not done:
                emit_wait(lg=n)
            lgq = lgq[lastl + 1:]
        lastv = -1
        for k, e in enumerate(vmq):
            if e[1] & touch:
                lastv = k
        if lastv >= 0:
            n = len(vmq) - 1 - lastv
            emit_wait(vm=n)
            vmq = vmq[lastv + 1:]
        if ins.kind in ('dma', 'vmem') and len(vmq) >= 63:
            emit_wait(vm=62)
            vmq = vmq[len(vmq) - 62:]
        if ins.kind == 'ds' and len(lgq) >= 15:
            emit_wait(lg=14)
            lgq = lgq[len(lgq) - 14:]
        if ins.kind == 'wait' and ins.meta != 'auto':
            mm = re.search(r'vmcnt\((\d+)\)', ins.txt)
            if mm:
                n = int(mm.group(1))
                vmq = vmq[len(vmq) - n:] if n < len(vmq) and n > 0 else ([] if n == 0 else vmq)
            mm = re.search(r'lgkmcnt\((\d+)\)', ins.txt)
            if mm:
                n = int(mm.group(1))
                lgq = lgq[len(lgq) - n:] if n < len(lgq) and n > 0 else ([] if n == 0 else lgq)
        out.append(ins)
        if ins.kind == 'mfma':
            last_mfma_pos = len(out)
            lg_issued_since = 0
            vm_issued_since = 0
        elif ins.kind == 'label':
            pass
        if ins.kind == 'ds':
            lgq.append((ins.tag, set(ins.wr)))
            lg_issued_since += 1
        elif ins.kind == 'smem':
            lgq.append((ins.tag, set(ins.wr)))
            lgq.append((ins.tag, set(ins.wr)))
            lg_issued_since += 2
        elif ins.kind in ('dma', 'vmem'):
            vmq.append((ins.tag, set(ins.wr)))
            vm_issued_since += 1
    return out, vmq, lgq


def check_hazards(items, fix=True, name=''):
    out = []
    nfix = 0

    def dist_back(pred, maxd):
        d = 0
        for p in reversed(out):
            if p.kind == 'label' or p.kind == 'pseudo':
                continue
            if pred(p):
                return d
            d += p.nst
            if d >= maxd:
                return None
        return None

    for ins in items:
        if ins.kind in ('label', 'pseudo'):
            out.append(ins)
            continue
        need = 0
        k = ins.kind
        touch = ins.rd | ins.wr

        def req(pred, n):
            nonlocal need
            d = dist_back(pred, n)
            if d is not None and d < n:
                need = max(need, n - d)

        vr = {r for r in ins.rd if r[0] in 'va' and len(r[0]) == 1}
        vw = {r for r in ins.wr if r[0] in 'va' and len(r[0]) == 1}
        sr = {r for r in ins.rd if r[0] in ('s', 'vcc')}
        if k == 'mfma':
            ab = ins.rd
            req(lambda p: p.kind == 'mfma' and (p.wr & ab), 8)
            req(lambda p: p.kind == 'mfma' and (p.wr & ins.srcc) and p.wr != ins.srcc, 6)
            req(lambda p: p.kind == 'mfma' and (p.wr & ins.wr) and not (p.wr == ins.srcc) and not (p.wr == ins.wr), 6)
            req(lambda p: p.kind in ('valu', 'trans') and (p.wr & (ab | ins.srcc)), 2)
        else:
            if k in ('valu', 'trans', 'ds', 'vmem', 'dma'):
                req(lambda p: p.kind == 'mfma' and (p.wr & (vr | vw)), 8)
            if k in ('valu', 'trans'):
                req(lambda p: p.kind == 'mfma' and (p.srcc & vw), 3)
                if k == 'valu':
                    req(lambda p: p.kind == 'trans' and (p.wr & vr), 1)
                if ins.mn.startswith('v_permlane'):
                    req(lambda p: p.kind in ('valu', 'trans') and (p.wr & vr), 2)
                if ins.mn.startswith('v_readfirstlane') or ins.mn.startswith('v_readlane'):
                    req(lambda p: p.kind in ('valu', 'trans') and (p.wr & vr), 1)
                if sr:
                    req(lambda p: p.kind in ('valu', 'trans') and (p.wr & sr), 2)
                req(lambda p: p.kind == 'vmem' and p.mn.startswith('buffer_store') and ('x4' in p.mn or 'x3' in p.mn) and (p.rd & vw), 2)
                if 'dpp' in ins.txt or 'row_' in ins.txt:
                    req(lambda p: p.kind in ('valu', 'trans') and (p.wr & vr), 2)
            if k in ('vmem', 'dma'):
                if sr:
                    req(lambda p: p.kind in ('valu', 'trans') and (p.wr & sr), 5)
                req(lambda p: p.kind == 'trans' and (p.wr & vr), 1)
            if k == 'ds':
                req(lambda p: p.kind == 'trans' and (p.wr & vr), 1)
            if k == 'dma':
                req(lambda p: p.kind == 'salu' and ('m0', 0) in p.wr, 1)
            if k == 'salu' and sr:
                req(lambda p: p.kind in ('valu', 'trans') and (p.wr & sr), 4)
        if need:
            nfix += 1
            if fix:
                n = need
                while n > 0:
                    c = min(n, 16)
                    out.append(I(f's_nop {c - 1}', meta='hazfix'))
                    n -= c
            print(f'[hazard {name}] need {need} before: {ins.txt}')
        out.append(ins)
    return out, nfix


SCCW = re.compile(r's_(add|sub|cmp|and|or|xor|lshl|lshr|ashr|min|max|bfe|not|andn2|orn2|bitcmp|abs|addc|subb|addk)')


def check_scc(items, name=''):
    last = None
    ok = True
    for ins in items:
        if ins.kind in ('label', 'pseudo'):
            continue
        if ins.mn.startswith('s_cselect') or ins.mn.startswith('s_cbranch_scc'):
            if last is not None and not last.mn.startswith('s_cmp'):
                print(f'[SCC {name}] {ins.txt}  <- last writer {last.txt}')
                ok = False
        if ins.mn.startswith('s_addc') and (last is None or not last.mn.startswith('s_add_u32')):
            print(f'[SCC {name}] {ins.txt} <- {last.txt if last else None}')
            ok = False
        if ins.kind == 'salu' and SCCW.match(ins.mn):
            last = ins
    assert ok


def split_marks(items):
    segs = []
    cur = ('', -1, [])
    for ins in items:
        if ins.kind == 'pseudo' and ins.meta[0] == 'mark':
            segs.append(cur)
            cur = (ins.meta[1], ins.meta[2], [])
        else:
            cur[2].append(ins)
    segs.append(cur)
    return segs


def text(items):
    return [i.txt for i in items if i.kind != 'pseudo']


def fold_loops(items, loops):
    segs = split_marks(items)
    out = []
    done = set()
    for (name, idx, its) in segs:
        if name in loops and loops[name][0] <= idx <= loops[name][1]:
            first, last, label, cnt = loops[name]
            grp = [s for s in segs if s[0] == name and first <= s[1] <= last]
            t0 = text(grp[0][2])
            if idx == first:
                for g in grp[1:]:
                    t = text(g[2])
                    if t != t0:
                        for a, b in zip(t0, t):
                            if a != b:
                                print(f'loop {name}: iter {grp[0][1]} vs {g[1]} differ:\n   {a}\n   {b}')
                                break
                        if len(t) != len(t0):
                            print(f'loop {name}: length differs {len(t0)} vs {len(t)} (iter {g[1]})')
                        raise SystemExit('loop folding failed')
                n = len(grp)
                out.append(f's_mov_b32 {cnt}, {n}')
                out.append(f'{label}:')
                out += t0
                out.append(f's_cbranch_scc1 {label}')
        else:
            out += text(its)
    return out
```

```python
import re
from asmlib import *

MF = 'v_mfma_f32_16x16x32_bf16'


def R(cls, base, n=1):
    return f'{cls}{base}' if n == 1 else f'{cls}[{base}:{base + n - 1}]'


WSLOT = 16384
NSTG = 64

SRD_O, SRD_W, SRD_C = 's[8:11]', 's[12:15]', 's[16:19]'
sW = 's3'
sWOFF, sOOFF, sCNT, sTMP, sW4096 = ['s%d' % i for i in range(28, 33)]
vLANE = 1
vWD = 2
vOD = 6
vA = 8
vST = 32
vT = 33
vFA = 40
NF = 8
vACC = 72


def kernel2(OPT):
    RING = int(OPT['k2ring'])
    PD = int(OPT['k2pd'])
    S = Stream()
    A = S.a
    def stamp(k):
        if OPT['stamps'] or OPT['dbgst']:
            A(f's_memtime s[{72 + 4 * k}:{72 + 4 * k + 1}]')
            A(f's_memrealtime s[{72 + 4 * k + 2}:{72 + 4 * k + 3}]')
            A('s_waitcnt lgkmcnt(0)')
    A('s_cmp_ge_u32 s2, 240')
    A('s_cbranch_scc1 L_end2')
    A('s_load_dwordx2 s[44:45], s[0:1], 32')
    A('s_load_dwordx2 s[46:47], s[0:1], 72')
    A('s_load_dwordx2 s[48:49], s[0:1], 80')
    A('s_load_dwordx2 s[50:51], s[0:1], 96')
    if int(OPT['cpf2']):
        A('s_getpc_b64 s[98:99]')
        A('L_pc2:')
        A('s_sub_u32 s98, s98, L_pc2-outproj_kernel')
        A('s_subb_u32 s99, s99, 0')
        A('v_lshlrev_b32 v67, 7, v0')
        A('v_min_u32 v67, L_end2-outproj_kernel, v67')
        A('v_mov_b32 v69, s99')
        A('v_add_co_u32 v68, vcc, s98, v67')
        A('v_addc_co_u32 v69, vcc, 0, v69, vcc')
        pf = I('global_load_dword v70, v[68:69], off')
        pf.wr = set()
        A(pf)
    A('s_and_b32 s4, s2, 7')
    A('s_lshr_b32 s5, s2, 3')
    A('s_lshr_b32 s6, s4, 2')
    KM = int(OPT['k2map'])
    if KM == 0:
        A('s_bfe_u32 s7, s4, 0x10001')
        A('s_mul_i32 s7, s7, 30')
        A('s_add_u32 s7, s7, s5')
        A('s_lshr_b32 s20, s7, 2')
        A('s_and_b32 s21, s7, 3')
        A('s_and_b32 s22, s4, 1')
        A('s_lshl_b32 s22, s22, 2')
        A('s_add_u32 s21, s21, s22')
    elif KM == 1:
        A('s_and_b32 s7, s4, 3')
        A('s_mul_i32 s7, s7, 30')
        A('s_add_u32 s7, s7, s5')
        A('s_lshr_b32 s20, s7, 3')
        A('s_and_b32 s21, s7, 7')
    elif KM == 2:
        A('s_lshr_b32 s20, s5, 1')
        A('s_and_b32 s21, s5, 1')
        A('s_and_b32 s22, s4, 3')
        A('s_lshl_b32 s22, s22, 1')
        A('s_add_u32 s21, s21, s22')
    elif KM == 3:
        A('s_bfe_u32 s7, s4, 0x10001')
        A('s_mul_i32 s7, s7, 30')
        A('s_add_u32 s7, s7, s5')
        A('s_lshr_b32 s20, s7, 2')
        A('s_and_b32 s21, s7, 3')
        A('s_lshl_b32 s21, s21, 1')
        A('s_and_b32 s22, s4, 1')
        A('s_add_u32 s21, s21, s22')
    A(f'v_and_b32 v{vLANE}, 63, v0')
    A('v_lshrrev_b32 v33, 6, v0')
    A('s_nop 0')
    A(f'v_readfirstlane_b32 {sW}, v33')
    g, n, r_, c_ = 'v34', 'v35', 'v36', 'v37'
    A(f'v_lshrrev_b32 {g}, 4, v{vLANE}')
    A(f'v_and_b32 {n}, 15, v{vLANE}')
    A(f'v_lshrrev_b32 {r_}, 2, {n}')
    A(f'v_and_b32 {c_}, 3, {n}')
    A(f'v_lshlrev_b32 v38, 1, {g}')
    A(f'v_xor_b32 v38, {n}, v38')
    A('v_xor_b32 v39, 8, v38')
    A(f's_lshl_b32 s28, {sW}, 15')
    A(f'v_lshlrev_b32 v33, 11, {g}')
    A('v_add_u32 v33, s28, v33')
    for x in range(4):
        A(f'v_lshl_add_u32 v{vWD + x}, v{38 if x % 2 == 0 else 39}, 4, v33')
        if x:
            A(f'v_add_u32 v{vWD + x}, {8192 * x}, v{vWD + x}')
    if OPT['k2_wlin']:
        for x in range(4):
            A(f'v_lshlrev_b32 v{vWD + x}, 4, v{vLANE}')
            A(f's_lshl_b32 s28, {sW}, 12')
            A(f's_add_u32 s28, s28, {1024 * x}')
            A(f'v_add_u32 v{vWD + x}, s28, v{vWD + x}')
    A(f's_lshl_b32 s28, {sW}, 18')
    A(f'v_lshlrev_b32 v{vOD}, 4, v{vLANE}')
    A(f'v_add_u32 v{vOD}, s28, v{vOD}')
    A(f'v_add_u32 v{vOD + 1}, 131072, v{vOD}')
    A(f's_lshl_b32 {sW4096}, {sW}, 12')
    A('s_waitcnt lgkmcnt(0)')
    stamp(0)
    A('s_cmp_eq_u32 s6, 0')
    A('s_cselect_b64 s[44:45], s[44:45], s[46:47]')
    if OPT['k2same']:
        A('s_mov_b32 s20, 0'); A('s_mov_b32 s21, 0')
    A('s_mul_i32 s22, s6, 120'); A('s_lshl_b32 s23, s20, 3'); A('s_add_u32 s22, s22, s23'); A('s_lshl_b32 s22, s22, 17')
    A('s_add_u32 s8, s50, s22'); A('s_addc_u32 s9, s51, 0'); A('s_mov_b32 s10, 0x100000'); A('s_mov_b32 s11, 0x20000')
    A('s_lshl_b32 s22, s21, 8')
    if OPT['k2_wlin']:
        A('s_lshl_b32 s22, s21, 20')
    A('s_add_u32 s12, s44, s22'); A('s_addc_u32 s13, s45, 0'); A('s_sub_u32 s14, 8388608, s22'); A('s_mov_b32 s15, 0x20000')
    if OPT['k2_wlin']:
        A('s_lshl_b32 s22, s21, 8')
    A('s_lshl_b32 s23, s20, 19'); A('s_lshl_b32 s24, s6, 11'); A('s_add_u32 s23, s23, s24'); A('s_add_u32 s23, s23, s22')
    A('s_add_u32 s16, s48, s23'); A('s_addc_u32 s17, s49, 0'); A(f's_sub_u32 s18, {1920 * 4096}, s23'); A('s_mov_b32 s19, 0x20000')

    def oreg(s, ks, mi):
        return 16 * (s % RING) + 8 * ks + 4 * mi

    def group(s):
        out = []
        for x in range(4):
            out.append((I(f's_add_u32 m0, {sW4096}, {(s % RING) * WSLOT + x * 1024}'),
                        I(f'buffer_load_dwordx4 v{vWD + x}, {SRD_W}, {sWOFF} offen {OPT["k2wflags"]} lds', tag=('D', s))))
        for ks in range(2):
            for mi in range(2):
                out.append((None,
                            I(f'buffer_load_dwordx4 {R("a", oreg(s, ks, mi), 4)}, v{vOD + mi}, {SRD_O}, {sOOFF} offen offset:{ks * 1024} {OPT["k2oflags"]}', tag=('D', s))))
        return [out[0], out[4], out[1], out[5], out[2], out[6], out[3], out[7]]

    def adv():
        return [I(f's_add_u32 {sWOFF}, {sWOFF}, {131072 if not OPT["k2_wlin"] else 16384}'), I(f's_add_u32 {sOOFF}, {sOOFF}, 2048')]

    A(f's_mov_b32 {sWOFF}, 0')
    A(f's_mov_b32 {sOOFF}, 0')
    for s in range(RING - 1):
        for m, d in group(s):
            if m is not None:
                A(m); A('s_nop 0')
            A(d)
        S.ext(adv())
    A(f'v_lshl_add_u32 v38, {g}, 2, {r_}')
    A('v_and_b32 v39, 7, v38')
    A('v_lshlrev_b32 v38, 8, v38')
    A(f'v_lshl_add_u32 v38, {c_}, 3, v38')
    A('v_lshl_add_u32 v38, v39, 5, v38')
    NG = (RING + 3) // 4
    for nb in range(8):
        A(f'v_xor_b32 v{vA + nb}, {32 * nb}, v38')
    for gg in range(1, NG):
        for nb in range(8):
            A(f'v_add_u32 v{vA + 8 * gg + nb}, {65536 * gg}, v{vA + nb}')
    A(f's_lshl_b32 s22, {sW}, 17')
    A(f'v_lshlrev_b32 v{vST}, 12, {n}')
    A(f'v_and_b32 v38, 1, {g}')
    A(f'v_lshl_add_u32 v{vST}, v38, 5, v{vST}')
    A(f'v_lshrrev_b32 v38, 1, {g}')
    A(f'v_lshl_add_u32 v{vST}, v38, 4, v{vST}')
    A(f'v_add_u32 v{vST}, s22, v{vST}')
    for r in range(64):
        A(f'v_mov_b32 v{vACC + r}, 0')

    DEP = int(OPT['k2dep'])

    def fsplit(f):
        if DEP == 1:
            return divmod(f, 8)
        nb, ks = divmod(f, 2)
        return ks, nb

    def a_read(F, e):
        s, f = divmod(F, 16)
        ks, nb = fsplit(f)
        slot = s % RING
        off = (slot % 4) * WSLOT + (2 * ks + e) * 4096
        d = vFA + 4 * (F % NF) + 2 * e
        return I(f'ds_read_b64_tr_b16 {R("v", d, 2)}, v{vA + 8 * (slot // 4) + nb} offset:{off}', tag=('r', F))

    S.vmwait(lambda t: t == ('D', 0))
    A('s_barrier')
    stamp(1)
    for F in range(PD):
        A(a_read(F, 0)); A(a_read(F, 1))

    NGAP = NSTG * 32
    pre = [[] for _ in range(NGAP)]
    mem = [[] for _ in range(NGAP)]
    post = [[] for _ in range(NGAP)]
    P0 = 32 - 2 * PD
    for F in range(NSTG * 16 - PD):
        mem[2 * F].append(a_read(F + PD, 0))
        mem[2 * F + 1].append(a_read(F + PD, 1))
    for s in range(NSTG - 1):
        gi = 32 * s + P0 - 1
        post[gi] += [P_vmwait(lambda t, s=s: t == ('D', s + 1)), I('s_barrier')]
        G = s + RING - 1
        if G < NSTG:
            ops = group(G)
            for k, (m, d) in enumerate(ops):
                gg = 32 * s + P0 + 1 + 4 * k
                if m is not None:
                    pre[gg - 1].append(m)
                mem[gg].append(d)
            last = 32 * s + P0 + 1 + 4 * 7
            a2 = adv()
            pre[last + 1].append(a2[0])
            pre[last + 2].append(a2[1])
    for s in range(NSTG):
        if s % RING == 0:
            S.mark('body', s // RING)
        for j in range(32):
            F = 16 * s + j // 2
            mi = j % 2
            if DEP == 2:
                q = j % 4
                F = 16 * s + 2 * (j // 4) + (0, 1, 1, 0)[q]
                mi = q // 2
            ks, nb = fsplit(F % 16)
            d = R('v', vACC + 8 * nb + 4 * mi, 4)
            m = I(f'{MF} {d}, {R("v", vFA + 4 * (F % NF), 4)}, {R("a", oreg(s, ks, mi), 4)}, {d}')
            if j % 4 == 0:
                m.need = set(('v', vFA + 4 * ((F + q) % NF) + r) for q in range(2) for r in range(4))
            if not OPT['k2_nomf']:
                A(m)
            gi = 32 * s + j
            gl = pre[gi] + mem[gi] + post[gi]
            if j == 31 and s % RING == RING - 1:
                gl = gl + [I(f's_sub_u32 {sCNT}, {sCNT}, 1'), I(f's_cmp_lg_u32 {sCNT}, 0')]
            if OPT['k2_nodma']:
                gl = [x for x in gl if x.kind not in ('dma', 'vmem')]
            if OPT['k2_now']:
                gl = [x for x in gl if x.kind != 'dma']
            if OPT['k2_noo']:
                gl = [x for x in gl if x.kind != 'vmem']
            if OPT['k2_nolds']:
                gl = [x for x in gl if x.kind != 'ds']
            if OPT['k2_nobar']:
                gl = [x for x in gl if x.kind != 'bar']
            S.ext(gl)
    S.mark('end', 0)
    stamp(2)
    A('s_nop 7')
    k = 0
    for mi in range(2):
        A(f's_mov_b32 {sTMP}, {mi * 65536}')
        for p in range(4):
            st = vFA + 4 * (k % 4); k += 1
            for q in range(2):
                d = vACC + 8 * (2 * p + q) + 4 * mi
                A(f'v_cvt_pk_bf16_f32 v{st + 2 * q}, v{d}, v{d + 1}')
                A(f'v_cvt_pk_bf16_f32 v{st + 2 * q + 1}, v{d + 2}, v{d + 3}')
            A('s_nop 1')
            A(f'v_permlane16_swap_b32 v{st}, v{st + 2}')
            A(f'v_permlane16_swap_b32 v{st + 1}, v{st + 3}')
            A(f'buffer_store_dwordx4 {R("v", st, 4)}, v{vST}, {SRD_C}, {sTMP} offen offset:{64 * p} {OPT["k2cflags"]}')
    if OPT['stamps']:
        A('s_waitcnt vmcnt(0)')
        stamp(3)
        A('s_add_u32 s48, s50, 0x8100000'); A('s_addc_u32 s49, s51, 0'); A('s_mov_b32 s50, 0x100000'); A('s_mov_b32 s51, 0x20000')
        A(f's_lshl_b32 s52, s2, 2'); A(f's_add_u32 s52, s52, {sW}'); A('s_lshl_b32 s52, s52, 6')
        A('v_mov_b32 v28, 0')
        for k in range(4):
            A(f'v_mov_b32 v27, s{72 + 4 * k}')
            A(f'buffer_store_dword v27, v28, s[48:51], s52 offen offset:{4 * k}')
            A(f'v_mov_b32 v27, s{72 + 4 * k + 2}')
            A(f'buffer_store_dword v27, v28, s[48:51], s52 offen offset:{4 * k + 32}')
        A('s_waitcnt vmcnt(0)')
    if OPT['dbgst']:
        A('s_waitcnt vmcnt(0)')
        stamp(3)
        A('s_lshl_b32 s52, s2, 2'); A(f's_or_b32 s52, s52, {sW}')
        A('s_cmp_lg_u32 s52, 0')
        A('s_cbranch_scc1 L_end2')
        A('s_load_dwordx2 s[48:49], s[0:1], 88')
        A('s_waitcnt lgkmcnt(0)')
        A('s_sub_u32 s48, s48, 512'); A('s_subb_u32 s49, s49, 0')
        A('s_mov_b32 s50, 256'); A('s_mov_b32 s51, 0x20000')
        A('v_mov_b32 v28, 0')
        for k in range(4):
            A(f'v_mov_b32 v27, s{72 + 4 * k + 2}')
            A(f'buffer_store_dword v27, v28, s[48:51], 0 offen offset:{32 + 4 * k}')
        A('s_waitcnt vmcnt(0)')
    A('L_end2:')
    A('s_endpgm')
    items, vmq, lgq = resolve(S.it)
    items, nfix = check_hazards(items, True, 'k2')
    check_scc(items, 'k2')
    segs = split_marks(items)
    out = []
    grp = [s for s in segs if s[0] == 'body']
    texts = [text(g[2]) for g in grp]
    best = (0, 0)
    a = 0
    while a < len(texts):
        b = a
        while b + 1 < len(texts) and texts[b + 1] == texts[a]:
            b += 1
        if b - a > best[1] - best[0]:
            best = (a, b)
        a = b + 1
    print('k2 loop: bodies', best, 'of', len(texts))
    for (name, idx, its) in segs:
        if name == 'body' and best[0] <= idx <= best[1] and best[1] > best[0]:
            if idx == best[0]:
                out += [f's_mov_b32 {sCNT}, {best[1] - best[0] + 1}', 'L_k2:'] + text(its) + ['s_cbranch_scc1 L_k2']
        else:
            out += text(its)
    return out
```

```python
import sys, os, re
sys.path.insert(0, os.path.dirname(os.path.abspath(__file__)))
from asmlib import *

KN = "concat_heads__mha_block_cached__gqa_block_cached__near_ridge_kernel"
K2 = "outproj_kernel"

OPT = dict(
    dump=None,
    stamps=False,
    kvflags='nt',
    only_k1=False,
    nofb=False, drop='', att_nolds=False, att_nowait=False, att_noexp=False,
    att_nodma=False, att_nobar=False, att_novm=False, qp_nodma=False, qp_nobar=False,
    kvsame=False, wsame=False, wflags='', xflags='', k2wflags='', k2oflags='', k2same=False, pf=0, pfflags='', pfloop=33, pfq=0, kvpf=0, park=False, pfq2=0, tailpf=0, oflags='', rot=0, fst=False, alldma=False, dist=5, pkadd=False, bar2=False, mempos='0,1,2,6,10,14', dmag=5, dbgst=False, w3test=False, pfstart=0, kvpfflags='', kvpfsrc='K', k2ring=8, k2pd=6, k2dep=1, k2map=0, k2cflags='', prolpos=0, k2_nodma=False, k2_nomf=False, k2_wlin=False, k2_now=False, k2_noo=False, k2_nolds=False, k2_nobar=False, k2_novm=False, align='', shift=0, alignreg='qp,at,k2', cpf=0, cpfpos=0, cpf2=0, v2=False, pfn=64, pfmode='loop', st1=-1, qpk=False, kvplan='30.0,30.3,30.6,31.1,31.4,t', vmcap=0, share=True, roff=6,
)

MF = 'v_mfma_f32_16x16x32_bf16'


def R(cls, base, n=1):
    return f'{cls}{base}' if n == 1 else f'{cls}[{base}:{base + n - 1}]'


def mfma(d, a, b, c):
    return I(f'{MF} {d}, {a}, {b}, {c}')


SLOT = 17408
XW_PAR = 24576
X3_BASE = 139264
X3_PAR = 6144
WBEG = 3 * SLOT
WEND = 8 * SLOT
FLAG_ADDR = 163832
NRING = 8
DIST = 5

sW = 's3'
SRD_X, SRD_W, SRD_K, SRD_V, SRD_O = 's[8:11]', 's[12:15]', 's[16:19]', 's[20:23]', 's[24:27]'
sWRD, sWDMA, sWSOFF, sXSOFF, sCNT, sW4352, sXD0, sXD1, sNXT, sTMP = ['s%d' % i for i in range(28, 38)]
sDSLOT, sKOFF, sKOFF2, sRBASE, sFB, sOOFF, sT2 = ['s%d' % i for i in range(38, 45)]
sBAD = 's[46:47]'
sPH = 's40'
sST = 72

vLANE = 1
vWD = 2
vXD = 6
vWL, vWA, vXA0, vXA1 = 14, 15, 16, 17
vKL, vVL0, vVL1, vKA, vVA0, vVA1, vKD, vVD, vOST = 18, 19, 20, 21, 22, 23, 24, 25, 26
vT = 27
vKPRE = 32
vS = 64
vP = 80
vL = 88
vNEG = 96
vM2 = 112
vLT = 116
vE = 120
vACC = 128
aQ = 0
aX = 128
aWF = 192
aK = 128
aV = 192

QSCALE = 0x3e0293ee
import struct, math
QSCALE = struct.unpack('<I', struct.pack('<f', math.log2(math.e) / math.sqrt(128.0)))[0]
LTHRESH = struct.unpack('<I', struct.pack('<f', 2.0 ** 30))[0]


def acc(hh, dt, qb):
    return R('v', vACC + 32 * qb + 4 * dt, 4) if hh == 0 else R('a', 32 * qb + 4 * dt, 4)


def stamp(S, k):
    if OPT['stamps'] or OPT['dbgst']:
        S.a(f's_memtime s[{sST + 4 * k}:{sST + 4 * k + 1}]')
        S.a(f's_memrealtime s[{sST + 4 * k + 2}:{sST + 4 * k + 3}]')
        S.a('s_waitcnt lgkmcnt(0)')


def k1_setup(S):
    A = S.a
    A('s_cmp_ge_u32 s2, 256')
    A('s_cbranch_scc1 L_end1')
    A(f's_mov_b32 {sFB}, 0')
    A('L_restart:')
    A('s_load_dwordx8 s[44:51], s[0:1], 0')
    A('s_load_dwordx8 s[56:63], s[0:1], 40')
    A('s_load_dwordx2 s[64:65], s[0:1], 96')
    if OPT['stamps']:
        A('s_load_dwordx2 s[66:67], s[0:1], 88')
    if OPT['pf'] or OPT['pfq'] or OPT['pfq2'] or OPT['tailpf']:
        A('s_load_dwordx2 s[52:53], s[0:1], 32')
        A('s_load_dwordx2 s[54:55], s[0:1], 72')
    A('s_and_b32 s4, s2, 7')
    A('s_lshr_b32 s5, s2, 3')
    A('s_lshr_b32 s6, s4, 2')
    A('s_bfe_u32 s7, s4, 0x10001')
    A('s_lshl_b32 s7, s7, 2')
    A('s_and_b32 s28, s5, 3')
    A('s_add_u32 s7, s7, s28')
    A('s_and_b32 s28, s4, 1')
    A('s_lshl_b32 s28, s28, 3')
    A('s_lshr_b32 s29, s5, 2')
    A('s_add_u32 s68, s28, s29')
    if OPT['rot']:
        m = int(OPT['rot'])
        if m == 1:
            A('s_and_b32 s100, s5, 31')
        elif m == 2:
            A('s_mul_i32 s100, s4, 4'); A('s_add_u32 s100, s100, s5'); A('s_and_b32 s100, s100, 31')
        elif m == 3:
            A('s_mul_i32 s100, s2, 11'); A('s_lshr_b32 s100, s100, 1'); A('s_and_b32 s100, s100, 31')
        elif m == 4:
            A('s_and_b32 s100, s2, 1'); A('s_lshl_b32 s100, s100, 4')
        A('s_lshl_b32 s100, s100, 13')
    A(f'v_and_b32 v{vLANE}, 63, v0')
    A('v_lshrrev_b32 v27, 6, v0')
    A('s_nop 0')
    A(f'v_readfirstlane_b32 {sW}, v27')
    A('s_waitcnt lgkmcnt(0)')
    stamp(S, 0)
    A('s_cmp_eq_u32 s6, 0')
    A('s_cselect_b64 s[44:45], s[44:45], s[56:57]')
    A('s_cselect_b64 s[46:47], s[46:47], s[58:59]')
    A('s_cselect_b64 s[48:49], s[48:49], s[60:61]')
    A('s_cselect_b64 s[50:51], s[50:51], s[62:63]')
    if OPT['pf'] or OPT['pfq'] or OPT['pfq2'] or OPT['tailpf']:
        A('s_cselect_b64 s[52:53], s[52:53], s[54:55]')
        A('s_lshl_b32 s28, s7, 4'); A('s_add_u32 s28, s28, s68'); A('s_lshl_b32 s28, s28, 16')
        A('s_add_u32 s52, s52, s28'); A('s_addc_u32 s53, s53, 0')
        A('s_mov_b32 s54, 65536'); A('s_mov_b32 s55, 0x20000')
    A('s_mul_i32 s28, s7, 491520')
    if OPT['wsame']:
        A('s_mov_b32 s28, 0')
    A('s_add_u32 s8, s44, s28'); A('s_addc_u32 s9, s45, 0')
    A('s_mov_b32 s10, 491520'); A('s_mov_b32 s11, 0x20000')
    A('s_lshl_b32 s28, s68, 9')
    if OPT['wsame']:
        A('s_mov_b32 s28, 0')
    A('s_add_u32 s12, s50, s28'); A('s_addc_u32 s13, s51, 0')
    A('s_sub_u32 s14, 8388608, s28'); A('s_mov_b32 s15, 0x20000')
    A('s_lshl_b32 s28, s7, 5'); A('s_lshl_b32 s29, s68, 1'); A('s_add_u32 s28, s28, s29')
    A('s_lshl_b32 s28, s28, 18')
    if OPT['kvsame']:
        A('s_mov_b32 s28, 0')
    A('s_add_u32 s16, s46, s28'); A('s_addc_u32 s17, s47, 0')
    A('s_mov_b32 s18, 524288'); A('s_mov_b32 s19, 0x20000')
    A('s_add_u32 s20, s48, s28'); A('s_addc_u32 s21, s49, 0')
    A('s_mov_b32 s22, 524288'); A('s_mov_b32 s23, 0x20000')
    A('s_mul_i32 s28, s6, 120'); A('s_mul_i32 s29, s7, 15'); A('s_add_u32 s28, s28, s29')
    A('s_lshl_b32 s28, s28, 17')
    A('s_lshl_b32 s29, s68, 13')
    A('s_add_u32 s28, s28, s29')
    A('s_add_u32 s24, s64, s28'); A('s_addc_u32 s25, s65, 0')
    A(f's_sub_u32 s26, {15 * 131072}, s29'); A('s_mov_b32 s27, 0x20000')
    A(f'v_lshrrev_b32 v27, 4, v{vLANE}')
    A(f'v_and_b32 v28, 15, v{vLANE}')
    A('v_lshrrev_b32 v29, 2, v28')
    A('v_and_b32 v30, 3, v28')
    A(f's_lshl_b32 s28, {sW}, 17')
    A(f'v_lshlrev_b32 v{vWD}, 15, v27')
    A(f'v_lshl_add_u32 v{vWD}, v28, 4, v{vWD}')
    A(f'v_add_u32 v{vWD}, s28, v{vWD}')
    for r in range(1, 4):
        A(f'v_add_u32 v{vWD + r}, {8192 * r}, v{vWD}')
    A(f'v_lshrrev_b32 v31, 3, v{vLANE}')
    A(f's_lshl_b32 s28, {sW}, 6')
    A('v_add_u32 v31, s28, v31')
    A('v_lshlrev_b32 v31, 11, v31')
    A(f'v_and_b32 v{vXD + 2}, 7, v{vLANE}')
    A(f'v_xor_b32 v{vXD + 2}, v{vXD + 2}, v27')
    A(f'v_xor_b32 v{vXD + 3}, 4, v{vXD + 2}')
    A(f'v_lshl_add_u32 v{vXD}, v{vXD + 2}, 4, v31')
    A(f'v_lshl_add_u32 v{vXD + 1}, v{vXD + 3}, 4, v31')
    A(f'v_add_u32 v{vXD + 1}, 16384, v{vXD + 1}')
    for i in range(2, 8):
        A(f'v_add_u32 v{vXD + i}, {16384 * (i - (i & 1))}, v{vXD + (i & 1)}')
    A('v_lshrrev_b32 v31, 1, v27')
    A('v_lshl_add_u32 v31, v31, 2, v29')
    A(f'v_mul_u32_u24 v{vWL}, 1088, v31')
    A('v_and_b32 v31, 1, v27')
    A(f'v_lshl_add_u32 v{vWL}, v31, 9, v{vWL}')
    A(f'v_lshl_add_u32 v{vWL}, v30, 4, v{vWL}')
    A('v_lshrrev_b32 v31, 1, v28')
    A('v_xor_b32 v31, v31, v27')
    A('v_lshlrev_b32 v31, 4, v31')
    A(f'v_lshl_add_u32 v{vXA0}, v28, 7, v31')
    A(f'v_mul_u32_u24 v{vKL}, 1088, v29')
    A(f'v_lshl_add_u32 v{vKL}, v30, 8, v{vKL}')
    A('v_xor_b32 v31, v27, v30')
    A(f'v_lshl_add_u32 v{vKL}, v31, 4, v{vKL}')
    A(f'v_mul_u32_u24 v{vVL0}, 1088, v29')
    A(f'v_lshl_add_u32 v{vVL0}, v27, 8, v{vVL0}')
    A(f'v_lshl_add_u32 v{vVL0}, v30, 3, v{vVL0}')
    A('v_and_b32 v31, 1, v27')
    A('v_lshlrev_b32 v31, 5, v31')
    A(f'v_sub_u32 v{vVL1}, v{vVL0}, v31')
    A(f'v_add_u32 v{vVL0}, v{vVL0}, v31')
    A('v_xor_b32 v31, v28, v27')
    A('v_lshlrev_b32 v31, 4, v31')
    A(f'v_lshl_add_u32 v{vKD}, v27, 8, v31')
    A('v_and_b32 v31, 1, v27')
    A('v_lshlrev_b32 v31, 1, v31')
    A('v_xor_b32 v31, v28, v31')
    A('v_lshlrev_b32 v31, 4, v31')
    A(f'v_lshl_add_u32 v{vVD}, v27, 10, v31')
    if OPT['alldma']:
        A(f's_lshl_b32 s28, {sW}, 11')
        A(f'v_add_u32 v{vKD}, s28, v{vKD}')
        A(f's_lshr_b32 s28, {sW}, 1'); A('s_lshl_b32 s28, s28, 12')
        A(f's_and_b32 s29, {sW}, 1'); A('s_lshl_b32 s29, s29, 9'); A('s_add_u32 s28, s28, s29')
        A(f'v_add_u32 v{vVD}, s28, v{vVD}')
        A(f's_mul_i32 s70, {sW}, 2176')
        A(f's_add_u32 s71, s70, {NRING * SLOT}')
    A(f's_lshl_b32 s28, {sW}, 19')
    A(f'v_lshlrev_b32 v{vOST}, 4, v{vLANE}')
    A(f'v_add_u32 v{vOST}, s28, v{vOST}')
    A('v_lshlrev_b32 v31, 8, v28')
    A('v_lshl_add_u32 v31, v27, 4, v31')
    A(f's_mul_i32 {sW4352}, {sW}, 4352')
    A(f's_mov_b64 {sBAD}, 0')
    A('v_mov_b32 v27, 0')
    A(f'v_mov_b32 v28, {FLAG_ADDR}')
    A('ds_write_b32 v28, v27')
    A(f's_cmp_eq_u32 {sW}, 3')
    A('s_cbranch_scc1 L_w3')


def w_dma(h, rho):
    return (I(f's_add_u32 m0, {sWDMA}, {rho * 1088}'),
            I(f'buffer_load_dwordx4 v{vWD + rho}, {SRD_W}, {sWSOFF} offen {OPT["wflags"]} lds', tag=('W', h)))


def x_dma(s, i):
    xs = sXD0 if s % 2 == 0 else sXD1
    return (I(f's_add_u32 m0, {xs}, {i * 1024}'),
            I(f'buffer_load_dwordx4 v{vXD + i}, {SRD_X}, {sXSOFF} offen {OPT["xflags"]} lds', tag=('X', s)))


def w_read(h, dt, ks, e):
    t, u = dt >> 1, dt & 1
    off = ks * 8704 + e * 256 + 64 * t + 8 * u
    d = aWF + 8 * (dt % 4) + 4 * ks + 2 * e
    return I(f'ds_read_b64_tr_b16 {R("a", d, 2)}, v{vWA} offset:{off}', tag=('Wr', h))


def x_read(nqb, s, qb, ks):
    par = s % 2
    off = par * (XW_PAR if nqb == 4 else X3_PAR) + qb * 2048
    d = aX + 32 * par + 8 * qb + 4 * ks
    return I(f'ds_read_b128 {R("a", d, 4)}, v{vXA0 if ks == 0 else vXA1} offset:{off}', tag=('Xr', s))


def code_pf(v3):
    L = ['s_getpc_b64 s[98:99]',
         f'L_pc0{v3}:',
         f's_sub_u32 s98, s98, L_pc0{v3}-{KN}',
         's_subb_u32 s99, s99, 0',
         's_lshr_b32 s70, s2, 3' if not OPT['alldma'] else 's_lshr_b32 s69, s2, 3',
         ]
    t = 's70' if not OPT['alldma'] else 's69'
    L += [f's_lshl_b32 {t}, {t}, 2', f's_add_u32 {t}, {t}, {sW}', f's_lshl_b32 {t}, {t}, 10',
          f'v_and_b32 v124, 7, v{vLANE}', 'v_lshlrev_b32 v124, 7, v124', f'v_add_u32 v124, {t}, v124',
          f'v_min_u32 v124, L_end1-{KN}, v124', 'v_mov_b32 v123, s99', 'v_add_co_u32 v122, vcc, s98, v124',
          'v_addc_co_u32 v123, vcc, 0, v123, vcc']
    L = [I(x) for x in L]
    pf = I('global_load_dword v127, v[122:123], off', tag=('CPF', 0))
    pf.wr = set()
    return L, pf


def qproj(S, nqb, pre):
    A = S.a
    v3 = '3' if nqb == 3 else ''
    G = 2 * nqb
    nx = 2 * nqb
    if nqb == 4:
        A(f's_lshl_b32 {sXD0}, {sW}, 13')
        A(f's_add_u32 {sXD1}, {sXD0}, {XW_PAR}')
        A(f'v_add_u32 v{vXA0}, {sXD0}, v{vXA0}')
    else:
        A(f's_mov_b32 {sXD0}, {X3_BASE}')
        A(f's_mov_b32 {sXD1}, {X3_BASE + X3_PAR}')
        A(f'v_add_u32 v{vXA0}, {X3_BASE}, v{vXA0}')
    A(f'v_xor_b32 v{vXA1}, 64, v{vXA0}')
    V2 = OPT['v2']
    def hs(h):
        if not V2:
            return h // 2, h % 2
        i, p = divmod(h, 4)
        return 2 * i + (p & 1), (1 if p < 2 else 0)
    def woff(h):
        s_, hh_ = hs(h)
        return s_ * 524288 + hh_ * 256
    def wslot(h):
        return WBEG + (h % 5) * SLOT
    def pro_w(h):
        A(f's_add_u32 {sWDMA}, {sW4352}, {wslot(h)}')
        A(f's_mov_b32 {sWSOFF}, {woff(h)}')
        for rho in range(4):
            m, d = w_dma(h, rho)
            A(m); A('s_nop 0'); A(d)
    def pro_x(s):
        A(f's_mov_b32 {sXSOFF}, {s * 128}')
        for i in range(nx):
            m, d = x_dma(s, i)
            A(m); A('s_nop 0'); A(d)
    if V2:
        pro_w(0); pro_x(0); pro_x(1); pro_w(1); pro_w(2); pro_w(3)
    else:
        pro_w(0); pro_x(0); pro_w(1); pro_w(2); pro_x(1); pro_w(3)
    for hh in range(2):
        A(f's_mov_b32 {sTMP}, {hh * 262144}')
        for t in range(4):
            A(f'buffer_load_dwordx4 {R("v", vKPRE + 16 * hh + 4 * t, 4)}, v31, {SRD_K}, {sTMP} offen offset:{64 * t}', tag=('KP', hh))
    if int(OPT['cpf']) & 1:
        cl, cp = code_pf(v3)
        S.ext(cl)
        if int(OPT['cpfpos']) == 0:
            A(cp)
    if OPT['pfq']:
        A(f's_lshl_b32 {sTMP}, {sW}, 7')
        A(f'v_add_u32 v126, {sTMP}, v{vLANE}')
        A('v_lshlrev_b32 v126, 7, v126')
        A(f's_mov_b32 {sTMP}, 8192')
        for so in ('0', sTMP):
            pf = I(f'buffer_load_dword v127, v126, s[52:55], {so} offen {OPT["pfflags"]}')
            pf.wr = set()
            A(pf)
    PQ2 = int(OPT['pfq2'])
    if PQ2:
        A(f's_lshl_b32 {sTMP}, {sW}, 3')
        A(f'v_add_u32 v126, {sTMP}, v{vLANE}')
        A('v_lshlrev_b32 v126, 7, v126')
        A(f'v_mov_b32 v124, 0x40000000')
        A(f'v_cmp_gt_u32 vcc, 8, v{vLANE}')
        A('s_nop 1')
        A('v_cndmask_b32 v126, v124, v126, vcc')
        A('s_mov_b32 s69, 0')
    KVL = int(OPT['kvpf'])
    W3T = OPT['w3test']
    if W3T and nqb == 4:
        KVL = 0
    if KVL:
        sh = {8: 3, 16: 4, 32: 5, 64: 6}[KVL]
        A(f'v_lshrrev_b32 v125, {sh}, v{vLANE}')
        A(f'v_lshlrev_b32 v125, 13, v125')
        A(f'v_and_b32 v124, {KVL - 1}, v{vLANE}')
        A(f'v_lshl_add_u32 v125, v124, 7, v125')
        if not W3T:
            A(f's_lshl_b32 {sTMP}, {sW}, {13 + 6 - sh}')
            A(f'v_add_u32 v125, {sTMP}, v125')
        A('s_mov_b32 s69, 0')
    A(f's_add_u32 {sWDMA}, {sW4352}, {wslot(4)}')
    A(f's_mov_b32 {sWSOFF}, {woff(4)}')
    A(f's_mov_b32 {sXSOFF}, 256')
    A(f's_mov_b32 {sWRD}, {wslot(0)}')
    A(f'v_add_u32 v{vWA}, {sWRD}, v{vWL}')
    for qb in range(nqb):
        for r in range(32):
            A(f'v_mov_b32 v{vACC + 32 * qb + r}, 0')
            A(f'v_accvgpr_write_b32 a{32 * qb + r}, 0')
    S.vmwait(lambda t: t in (('W', 0), ('X', 0)))
    A('s_waitcnt lgkmcnt(0)')
    A('s_barrier')
    if int(OPT['st1']) < 0:
        stamp(S, 1)
    for qb in range(nqb):
        for ks in range(2):
            A(x_read(nqb, 0, qb, ks))
    for dt in range(2):
        for ks in range(2):
            for e in range(2):
                A(w_read(0, dt, ks, e))

    NST = 16
    PFS = int(OPT['pf'])
    for hpair in range(NST):
        if hpair % 2 == 0:
            S.mark('qp', hpair // 2)
        for hsub in range(2):
            h = 2 * hpair + hsub
            s, hh = hs(h)
            p4 = h % 4
            gaps = [[[] for _ in range(G)] for _ in range(8)]
            ms = [[None] * G for _ in range(8)]
            for dt in range(8):
                for qb in range(nqb):
                    for ks in range(2):
                        ms[dt][2 * qb + ks] = mfma(acc(hh, dt, qb), R('a', aWF + 8 * (dt % 4) + 4 * ks, 4),
                                                   R('a', aX + 32 * (s % 2) + 8 * qb + 4 * ks, 4), acc(hh, dt, qb))
                ms[dt][0].need = set(('a', aWF + 8 * (dt % 4) + r) for r in range(8))
                if dt == 0 and (hh == 0 if not V2 else p4 < 2):
                    ms[dt][0].need |= set(('a', aX + 32 * (s % 2) + r) for r in range(8 * nqb))
                tdt, th = dt + 2, h
                if tdt >= 8:
                    tdt -= 8; th += 1
                if th < 32:
                    k = 0
                    for ks in range(2):
                        for e in range(2):
                            gaps[dt][k].append(w_read(th, tdt, ks, e)); k += 1
            if nqb == 4:
                slots = [(g, gi) for g in range(6) for gi in (4, 6)]
            else:
                slots = [(g, gi) for g in range(6) for gi in (4, 5)]
            dl = []
            if h + 4 < 32:
                dl += [w_dma(h + 4, rho) for rho in range(4)]
            nW = len(dl)
            xd = None
            if not V2:
                xd = s + 2 if (hh == 0 and s + 2 < NST) else None
            else:
                xd = s + 2 if (p4 < 2 and s + 2 < NST) else None
            if xd is not None:
                dl += [x_dma(xd, i) for i in range(nx)]
            if OPT['qp_nodma']:
                dl = []
            for k, (m, d) in enumerate(dl):
                g, gi = slots[k]
                if nqb == 4:
                    gaps[g][gi - 1].insert(0, m)
                    gaps[g][gi].append(d)
                else:
                    if gi == 4:
                        gaps[g][3].insert(0, m)
                    else:
                        gaps[g][4].append(m)
                    gaps[g][gi].append(d)
            if PQ2 and hh == PQ2 - 1:
                pf = I(f'buffer_load_dword v127, v126, s[52:55], s69 offen {OPT["pfflags"]}', tag=('PF', s))
                pf.wr = set()
                gaps[6][2].append(pf)
                gaps[7][1].insert(0, I('s_add_u32 s69, s69, 4096'))
            if KVL and W3T:
                n = KVL // 32 if KVL >= 32 else (1 if (h % (32 // KVL)) == 0 else 0)
                for q in range(n):
                    srd = SRD_K if OPT['kvpfsrc'] == 'K' else SRD_V
                    pf = I(f'buffer_load_dword v127, v125, {srd}, s69 offen {OPT["kvpfflags"]}', tag=('PF', s))
                    pf.wr = set()
                    gaps[6][2 + 2 * q].append(pf)
                    gaps[6][3 + 2 * q].insert(0, I(f's_add_u32 s69, s69, {8192 * 64 // KVL}'))
            elif KVL and hh == 1:
                per = [0] if (KVL == 64 or s % 2 == 0) else []
                for q in per:
                    srd = SRD_K if OPT['kvpfsrc'] == 'K' else SRD_V
                    pf = I(f'buffer_load_dword v127, v125, {srd}, s69 offen {OPT["kvpfflags"]}', tag=('PF', s))
                    pf.wr = set()
                    gaps[6][2].append(pf)
                    gaps[7][1].insert(0, I(f's_add_u32 s69, s69, {4 * 8192 * 64 // KVL}'))
            if (int(OPT['cpf']) & 1) and int(OPT['cpfpos']) and h == int(OPT['cpfpos']):
                gaps[6][2].append(cp)
            if h + 4 < 32:
                inc = (woff(h + 5) - woff(h + 4)) & 0xffffffff
                gaps[2][1].insert(0, I(f's_add_u32 {sWSOFF}, {sWSOFF}, {inc:#x}' if V2 else f's_add_u32 {sWSOFF}, {sWSOFF}, {inc}'))
            if xd is not None:
                gaps[6][5 if nqb == 4 else 4].insert(0, I(f's_add_u32 {sXSOFF}, {sXSOFF}, 128'))
            xn = None
            if not V2:
                xn = s + 1 if (hh == 1 and s + 1 < NST) else None
            elif p4 == 0:
                xn = s + 1
            elif p4 == 3 and s + 1 < NST:
                xn = s + 1
            if xn is not None:
                xr = [x_read(nqb, xn, qb, ks) for qb in range(nqb) for ks in range(2)]
                xs = [(g, gi) for g in range(2, 6) for gi in (((5, 7) if (V2 and p4 == 0) else (4, 6)) if nqb == 4 else (4, 5))]
                gaps[2][3].insert(0, P_vmwait(lambda t, xn=xn: t == ('X', xn)))
                for k, r in enumerate(xr):
                    g, gi = xs[k]
                    gaps[g][gi].append(r)
            if h + 1 < 32:
                gaps[4][0].insert(0, I(f's_add_u32 {sTMP}, {sWRD}, {SLOT}'))
                gaps[4][1].insert(0, I(f's_cmp_eq_u32 {sTMP}, {WEND}'))
                gaps[4][2].insert(0, I(f's_cselect_b32 {sNXT}, {WBEG}, {sTMP}'))
                last = G - 1
                gaps[5][last] += [P_vmwait(lambda t, h=h: t == ('W', h + 1)),
                                  P_lgwait(lambda t, h=h: t == ('Wr', h)),
                                  I('s_barrier' if not OPT['qp_nobar'] else 's_nop 0'),
                                  I(f'v_add_u32 v{vWA}, {sNXT}, v{vWL}')]
                gaps[6][1].insert(0, I(f's_add_u32 {sWDMA}, {sWRD}, {sW4352}'))
                gaps[6][2].insert(0, I(f's_mov_b32 {sWRD}, {sNXT}'))
            if p4 == 3 and h < 28:
                gaps[7][G - 3].insert(0, I(f's_sub_u32 {sCNT}, {sCNT}, 1'))
                gaps[7][G - 2].insert(0, I(f's_cmp_lg_u32 {sCNT}, 0'))
            if V2:
                qtail_fill(gaps, nqb, h, G)
            if int(OPT['st1']) == h:
                stamp(S, 1)
            for dt in range(8):
                for gi in range(G):
                    A(ms[dt][gi])
                    gl = gaps[dt][gi]
                    if W3T and nqb == 3:
                        gl = [x for x in gl if not (x.kind == 'pseudo' and x.meta[0] == 'vmwait')]
                    S.ext(gl)
    S.mark('qpend', 0)


def conv_items(hh, kap):
    L = []
    st = vS + 8 * (kap % 2)
    if hh == 1:
        for r in range(8):
            L.append(I(f'v_accvgpr_read_b32 v{st + r}, a{8 * kap + r}'))
        src = st
    else:
        src = vACC + 8 * kap
    if OPT['qpk']:
        for r in range(0, 8, 2):
            L.append(I(f'v_pk_mul_f32 {R("v", st + r, 2)}, {R("v", src + r, 2)}, s[48:49] op_sel_hi:[1,0]'))
    else:
        for r in range(8):
            L.append(I(f'v_mul_f32 v{st + r}, s48, v{src + r}'))
    for r in range(4):
        L.append(I(f'v_cvt_pk_bf16_f32 v{st + r}, v{st + 2 * r}, v{st + 2 * r + 1}'))
    for r in range(4):
        L.append(I(f'v_accvgpr_write_b32 a{aQ + 64 * hh + 4 * kap + r}, v{st + r}'))
    return L


def spread(items, gl):
    n = len(gl)
    for k in range(n):
        gl[k].extend(items[len(items) * k // n: len(items) * (k + 1) // n])


def kv_plan():
    out = []
    for x in OPT['kvplan'].split(','):
        out.append('t' if x == 't' else tuple(int(y) for y in x.split('.')))
    assert len(out) == int(OPT['dist']) - 1, out
    return out


def qtail_fill(gaps, nqb, h, G):
    flat = lambda g0, g1: [gaps[g][gi] for g in range(g0, g1) for gi in range(G)]
    if h == 28:
        gaps[0][1].insert(0, I(f's_add_u32 {sDSLOT}, s70, {int(OPT["roff"]) * SLOT}'))
        gaps[0][1].insert(0, I(f's_mov_b32 {sKOFF}, 0'))
        gaps[0][1].insert(0, I(f's_mov_b32 s48, {QSCALE:#x}'))
        PFS = int(OPT['pf'])
        if PFS and nqb == 4 and OPT['pfmode'] == 'q':
            gaps[0][4] += [I(f's_lshl_b32 s69, {sW}, 6'), I(f'v_add_u32 v124, s69, v{vLANE}'), I(f'v_mul_u32_u24 v124, {PFS}, v124')]
            for q in range(3):
                pf = I(f'buffer_load_dword v125, v124, s[52:55], s69 offen {OPT["pfflags"]}', tag=('PF', q))
                pf.wr = set()
                gaps[1 + 2 * q][4].append(I(f's_mov_b32 s69, {192 * PFS * q}'))
                gaps[1 + 2 * q][6].append(pf)
    for tau, pos in enumerate(kv_plan()):
        if pos != 't' and pos[0] == h:
            g0 = pos[1]
            pairs = kv_dma(tau)
            step = 4 if G == 8 else 3
            for k, (m, d) in enumerate(pairs):
                g, gi = divmod(g0 * G + 1 + k * step, G)
                gaps[g][gi - 1].append(m) if gi >= 1 else gaps[g - 1][G - 1].append(m)
                gaps[g][gi].insert(0, d)
            g, gi = divmod(g0 * G + 1 + 3 * step + 1, G)
            gaps[g][gi] += kv_advance()
    c1 = sum((conv_items(1, kap) for kap in range(4 * nqb - 1, -1, -1)), [])
    n30 = len(c1) * 63 // 79
    if h == 30:
        spread(c1[:n30], flat(0, 8)[1:])
    if h == 31:
        spread(c1[n30:], flat(0, 2))
        for tt in range(3):
            c0 = sum((conv_items(0, 4 * qb + tt) for qb in range(nqb)), [])
            spread(c0, flat(2 + 2 * tt, 4 + 2 * tt)[1:])


def qtail_end(S, nqb):
    A = S.a
    for tau, pos in enumerate(kv_plan()):
        if pos == 't':
            for m, d in kv_dma(tau):
                A(m); A('s_nop 0'); A(d)
            S.ext(kv_advance())
    S.vmwait(lambda t: t is not None and t[0] == 'KP')
    D1 = [80 + 4 * qb for qb in range(nqb)]
    D0 = [vACC + 4 * qb for qb in range(nqb)]

    def smf(hh, D):
        return [mfma(R('v', D[qb], 4), R('v', vKPRE + 16 * hh + 4 * t, 4), R('a', aQ + 64 * hh + 16 * qb + 4 * t, 4),
                     '0' if t == 0 else R('v', D[qb], 4)) for t in range(4) for qb in range(nqb)]
    c0 = sum((conv_items(0, 4 * qb + 3) for qb in range(nqb)), [])
    m1 = smf(1, D1)
    gl = [[] for _ in m1]
    spread(c0, gl)
    for m, g in zip(m1, gl):
        A(m); S.ext(g)
    red = [I(f'v_max3_f32 v{d}, v{d}, v{d + 1}, v{d + 2}') for d in D1] + [I(f'v_max_f32 v{d}, v{d}, v{d + 3}') for d in D1]
    for sw in ('v_permlane32_swap_b32', 'v_permlane16_swap_b32'):
        red += [I(f'v_mov_b32 v{d + 1}, v{d}') for d in D1] + [I('s_nop 1')]
        red += [I(f'{sw} v{d}, v{d + 1}') for d in D1] + [I('s_nop 1')]
        red += [I(f'v_max_f32 v{d}, v{d}, v{d + 1}') for d in D1]
    red += [I(f'v_sub_f32 v{vM2 + qb}, 0, v{D1[qb]}') for qb in range(nqb)]
    m0 = smf(0, D0)
    gl = [[] for _ in m0]
    spread(red, gl[2:])
    for m, g in zip(m0, gl):
        A(m); S.ext(g)
    A('s_nop 7')
    for d in D0:
        A(f'v_max3_f32 v{d}, v{d}, v{d + 1}, v{d + 2}')
    for d in D0:
        A(f'v_max_f32 v{d}, v{d}, v{d + 3}')
    xlane_max_or_add(S, 'v_max_f32', D0, [d + 1 for d in D0])
    for qb in range(nqb):
        for r in range(4):
            A(f'v_sub_f32 v{vNEG + 4 * qb + r}, 0, v{D0[qb]}')


def q_epilogue(S, nqb):
    A = S.a
    A(f's_mov_b32 s48, {QSCALE:#x}')
    A('s_nop 7')
    t = vS
    for hh in (1, 0):
        for kap in range(4 * nqb - 1, -1, -1):
            qb, tt = kap // 4, kap % 4
            st = t + 8 * (kap % 2)
            if hh == 1:
                for r in range(8):
                    A(f'v_accvgpr_read_b32 v{st + r}, a{8 * kap + r}')
                src = st
            else:
                src = vACC + 8 * kap
            for r in range(0, 8, 2):
                A(f'v_pk_mul_f32 {R("v", st + r, 2)}, {R("v", src + r, 2)}, s[48:49] op_sel_hi:[1,0]')
            for r in range(4):
                A(f'v_cvt_pk_bf16_f32 v{st + r}, v{st + 2 * r}, v{st + 2 * r + 1}')
            for r in range(4):
                A(f'v_accvgpr_write_b32 a{aQ + 64 * hh + 4 * kap + r}, v{st + r}')


def xlane_max_or_add(S, op, regsl, tmpl):
    A = S.a
    for sw in ('v_permlane32_swap_b32', 'v_permlane16_swap_b32'):
        for r, t in zip(regsl, tmpl):
            A(f'v_mov_b32 v{t}, v{r}')
        A('s_nop 1')
        for r, t in zip(regsl, tmpl):
            A(f'{sw} v{r}, v{t}')
        A('s_nop 1')
        for r, t in zip(regsl, tmpl):
            A(f'{op} v{r}, v{r}, v{t}')


def standin(S, nqb):
    A = S.a
    mx = []
    for hh in range(2):
        for qb in range(nqb):
            d = vACC + 4 * (hh * 4 + qb)
            for t in range(4):
                A(mfma(R('v', d, 4), R('v', vKPRE + 16 * hh + 4 * t, 4), R('a', aQ + 64 * hh + 16 * qb + 4 * t, 4),
                       '0' if t == 0 else R('v', d, 4)))
            mx.append(d)
    A('s_nop 7')
    for d in mx:
        A(f'v_max3_f32 v{d}, v{d}, v{d + 1}, v{d + 2}')
    for d in mx:
        A(f'v_max_f32 v{d}, v{d}, v{d + 3}')
    xlane_max_or_add(S, 'v_max_f32', mx, [d + 1 for d in mx])
    set_negm(S, nqb, mx)


def set_negm(S, nqb, mx):
    A = S.a
    for qb in range(nqb):
        for r in range(4):
            A(f'v_sub_f32 v{vNEG + 4 * qb + r}, 0, v{mx[qb]}')
        A(f'v_sub_f32 v{vM2 + qb}, 0, v{mx[nqb + qb]}')


def kv_dma(tau):
    out = []
    fl = OPT['kvflags']
    if OPT['alldma']:
        for i in range(2):
            out.append((I(f's_add_u32 m0, {sDSLOT}, {64 * i}'),
                        I(f'buffer_load_dwordx4 v{vKD}, {SRD_K}, {sKOFF} offen offset:{1024 * i} {fl} lds', tag=('KV', tau))))
            out.append((I(f's_add_u32 m0, {sDSLOT}, {8704 + 832 * i}'),
                        I(f'buffer_load_dwordx4 v{vVD}, {SRD_V}, {sKOFF} offen offset:{256 * i} {fl} lds', tag=('KV', tau))))
        return out
    for j in range(8):
        so = sKOFF if j < 4 else sKOFF2
        ioff = 1024 * (j % 4)
        m0 = (4352 if j >= 4 else 0) + 64 * (j % 4)
        out.append((I(f's_add_u32 m0, {sDSLOT}, {m0}'),
                    I(f'buffer_load_dwordx4 v{vKD}, {SRD_K}, {so} offen offset:{ioff} {fl} lds', tag=('KV', tau))))
    for kb in range(2):
        for rho in range(4):
            so = sKOFF if kb == 0 else sKOFF2
            m0 = 8704 + kb * 4352 + 832 * rho
            out.append((I(f's_add_u32 m0, {sDSLOT}, {m0}'),
                        I(f'buffer_load_dwordx4 v{vVD}, {SRD_V}, {so} offen offset:{256 * rho} {fl} lds', tag=('KV', tau))))
    return out


def kv_advance():
    if OPT['rot']:
        L = [I('s_add_u32 s99, s99, 8192'), I(f's_xor_b32 {sKOFF}, s99, s100')]
        if not OPT['alldma']:
            L.append(I(f's_or_b32 {sKOFF2}, {sKOFF}, 4096'))
        L += [I(f's_add_u32 {sDSLOT}, {sDSLOT}, {SLOT}'),
              I(f's_cmp_eq_u32 {sDSLOT}, {"s71" if OPT["alldma"] else NRING * SLOT}'),
              I(f's_cselect_b32 {sDSLOT}, {"s70" if OPT["alldma"] else 0}, {sDSLOT}')]
        return L
    if OPT['alldma']:
        return [I(f's_add_u32 {sKOFF}, {sKOFF}, 8192'),
                I(f's_add_u32 {sDSLOT}, {sDSLOT}, {SLOT}'),
                I(f's_cmp_eq_u32 {sDSLOT}, s71'),
                I(f's_cselect_b32 {sDSLOT}, s70, {sDSLOT}')]
    return [I(f's_add_u32 {sKOFF}, {sKOFF}, 8192'),
            I(f's_add_u32 {sKOFF2}, {sKOFF2}, 8192'),
            I(f's_add_u32 {sDSLOT}, {sDSLOT}, {SLOT}'),
            I(f's_cmp_eq_u32 {sDSLOT}, {NRING * SLOT}'),
            I(f's_cselect_b32 {sDSLOT}, 0, {sDSLOT}')]


def kv_prologue(S, nqb):
    A = S.a
    DIST = int(OPT['dist'])
    if OPT['rot']:
        A('s_mov_b32 s99, 0')
    if OPT['alldma']:
        A(f's_mov_b32 {sDSLOT}, s70')
        A(f's_mov_b32 {sKOFF}, {"s100" if OPT["rot"] else 0}')
        for tau in range(DIST - 1):
            for m, d in kv_dma(tau):
                A(m); A('s_nop 0'); A(d)
            S.ext(kv_advance())
    elif nqb == 3:
        A(f's_mov_b32 {sDSLOT}, 0')
        A(f's_mov_b32 {sKOFF}, {"s100" if OPT["rot"] else 0}')
        A(f's_or_b32 {sKOFF2}, {sKOFF}, 4096')
        for tau in range(min(DIST - 1, 4)):
            for m, d in kv_dma(tau):
                A(m); A('s_nop 0'); A(d)
            S.ext(kv_advance())


def kv_prologue2(S, nqb):
    A = S.a
    DIST = int(OPT['dist'])
    if nqb == 3 and not OPT['alldma']:
        for tau in range(4, DIST - 1):
            for m, d in kv_dma(tau):
                A(m); A('s_nop 0'); A(d)
            S.ext(kv_advance())


def k_read(tau, kb, t):
    off = (tau % 2) * SLOT + kb * 4352 + 64 * t
    d = aK + 32 * (tau % 2) + 16 * kb + 4 * t
    return I(f'ds_read_b128 {R("a", d, 4)}, v{vKA} offset:{off}', tag=('Kr', tau))


def v_read(tau, db, e):
    off = (tau % 2) * SLOT + 8704 + e * 4352 + 32 * db
    d = aV + 32 * (tau % 2) + 4 * db + 2 * e
    return I(f'ds_read_b64_tr_b16 {R("a", d, 2)}, v{vVA0 if db % 2 == 0 else vVA1} offset:{off}', tag=('Vr', tau))


def o_epilogue_items(nqb, hh, qb, packed):
    L = []
    inv = vLT + qb
    so = qb * 131072 + hh * 4096
    if not (hh == 0 and OPT['park']):
        L.append(I(f's_mov_b32 {sOOFF}, {so}'))
    for t in range(4):
        st = vE + 4 * (t % 2)
        src = vACC + 32 * qb + 8 * t
        if packed:
            for r in range(0, 8, 2):
                L.append(I(f'v_pk_mul_f32 {R("v", src + r, 2)}, {R("v", src + r, 2)}, {R("v", inv & ~1, 2)} op_sel:[0,{inv & 1}] op_sel_hi:[1,{inv & 1}]'))
        else:
            for r in range(8):
                L.append(I(f'v_mul_f32 v{src + r}, v{src + r}, v{inv}'))
        for r in range(4):
            L.append(I(f'v_cvt_pk_bf16_f32 v{st + r}, v{src + 2 * r}, v{src + 2 * r + 1}'))
        if hh == 0 and OPT['park']:
            for r in range(4):
                L.append(I(f'v_accvgpr_write_b32 a{aQ + 16 * qb + 4 * t + r}, v{st + r}'))
            continue
        L.append(I(f'buffer_store_dwordx4 {R("v", st, 4)}, v{vOST}, {SRD_O}, {sOOFF} offen offset:{1024 * t} {OPT["oflags"]}', tag=('O', hh)))
    return L


def l_finish_items(qb):
    l0, l1, lt, tmp = vL + 2 * qb, vL + 2 * qb + 1, vLT + qb, vT
    L = [I(f'v_add_f32 v{lt}, v{l0}, v{l1}'),
         I(f'v_mov_b32 v{l0}, 0'),
         I(f'v_mov_b32 v{l1}, 0'),
         I(f'v_mov_b32 v{tmp}, v{lt}'),
         I('s_nop 1'),
         I(f'v_permlane32_swap_b32 v{lt}, v{tmp}'),
         I('s_nop 1'),
         I(f'v_add_f32 v{lt}, v{lt}, v{tmp}'),
         I(f'v_mov_b32 v{tmp}, v{lt}'),
         I('s_nop 1'),
         I(f'v_permlane16_swap_b32 v{lt}, v{tmp}'),
         I('s_nop 1'),
         I(f'v_add_f32 v{lt}, v{lt}, v{tmp}'),
         I(f'v_cmp_nge_f32 vcc, {LTHRESH:#x}, v{lt}'),
         I(f'v_rcp_f32 v{lt}, v{lt}'),
         I('s_nop 1'),
         I(f's_or_b64 {sBAD}, {sBAD}, vcc')]
    return L


def attention(S, nqb, v3):
    A = S.a
    N = 64 * nqb
    dmawave = (nqb == 3) or OPT['alldma']
    DIST = int(OPT['dist'])
    MEMPOS = [int(x) for x in OPT['mempos'].split(',')]
    A(f'L_attn{v3}:')
    for qb in range(nqb):
        A(f'v_mov_b32 v{vL + 2 * qb}, 0')
        A(f'v_mov_b32 v{vL + 2 * qb + 1}, 0')
    V2 = OPT['v2']
    SHARE = V2 and OPT['share']
    ROFF = int(OPT['roff']) * SLOT if V2 else 0
    A(f's_mov_b32 {sRBASE}, {ROFF}')
    if OPT['fst']:
        A('s_mov_b32 s98, 0')
    if V2:
        A(f'v_add_u32 v{vKA}, {ROFF}, v{vKL}')
        A(f'v_add_u32 v{vVA0}, {ROFF}, v{vVL0}')
        A(f'v_add_u32 v{vVA1}, {ROFF}, v{vVL1}')
        A(f's_mov_b32 {sPH}, 0')
    else:
        A(f'v_mov_b32 v{vKA}, v{vKL}')
        A(f'v_mov_b32 v{vVA0}, v{vVL0}')
        A(f'v_mov_b32 v{vVA1}, v{vVL1}')

    PFS = int(OPT['pf']) if (not V2 or OPT['pfmode'] == 'loop') else 0
    PFN = int(OPT['pfn'])
    if OPT['tailpf'] and nqb == 4:
        A(f's_lshl_b32 {sTMP}, {sW}, 6')
        A(f'v_add_u32 v62, {sTMP}, v{vLANE}')
        A(f'v_lshlrev_b32 v62, 7, v62')
        A('s_mov_b32 s69, 0')
    if PFS and nqb == 4:
        A(f's_mul_i32 {sTMP}, {sW}, {PFN}')
        A(f'v_add_u32 v62, {sTMP}, v{vLANE}')
        A(f'v_mul_u32_u24 v62, {PFS}, v62')
        if PFN < 64:
            A('v_mov_b32 v63, 0x40000000')
            A(f'v_cmp_gt_u32 vcc, {PFN}, v{vLANE}')
            A('v_cndmask_b32 v62, v63, v62, vcc')
        A(f's_mov_b32 s69, {(-int(OPT["pfstart"]) * 3 * PFN * PFS) & 0xffffffff:#x}')

    CPF = int(OPT['cpf'])
    if CPF & 2:
        A('s_getpc_b64 s[98:99]')
        A(f'L_pc1{v3}:')
        A(f's_add_u32 s98, s98, L_tr{v3}-L_pc1{v3}')
        A('s_addc_u32 s99, s99, 0')
        A(f'v_lshlrev_b32 v56, 7, v{vLANE}')
        if nqb == 4:
            A(f's_lshl_b32 {sTMP}, {sW}, 13')
            A(f'v_add_u32 v56, {sTMP}, v56')
        A(f'v_min_u32 v56, L_ok{v3}-L_tr{v3}, v56')
        A('v_mov_b32 v57, s99')
        A('v_add_co_u32 v56, vcc, s98, v56')
        A('v_addc_co_u32 v57, vcc, 0, v57, vcc')

    def unit(u):
        return divmod(u, nqb)

    extra = {}

    def add_extra(sig, lst):
        extra.setdefault(sig, []).extend(lst)

    for qb in range(nqb):
        se = 31 * nqb + qb
        add_extra(se, [I(f'v_mov_b32 v{vNEG + 4 * qb + r}, v{vM2 + qb}') for r in range(4)])
        add_extra(se, l_finish_items(qb))
        items = o_epilogue_items(nqb, 0, qb, False)
        half = 1 + 2 * 13 if not OPT['park'] else 2 * 16
        add_extra(se + 1, items[:half])
        add_extra(se + 2, items[half:])
        if SHARE:
            add_extra(max(se - 1, 31 * nqb), [I(f'v_accvgpr_mov_b32 a{aQ + 16 * qb + r}, a{aQ + 64 + 16 * qb + r}') for r in range(16)])

    def frame_reads(tau):
        tt = tau + 1
        if tt > 63:
            return []
        return [k_read(tt, kb, t) for kb in range(2) for t in range(4)] + [v_read(tt, db, e) for db in range(8) for e in range(2)]

    def emit_slot(sig, mem, salus):
        mf = [None] * 16
        u = sig + 2
        if 0 <= u < N:
            tau, qb = unit(u)
            hd = tau // 32
            if SHARE and sig >= 33 * nqb:
                hd = 0
            sp = u % 2
            for kb in range(2):
                d = R('v', vS + 8 * sp + 4 * kb, 4)
                for t in range(4):
                    mf[8 * kb + t] = mfma(d, R('a', aK + 32 * (tau % 2) + 16 * kb + 4 * t, 4),
                                          R('a', aQ + 64 * hd + 16 * qb + 4 * t, 4),
                                          R('v', vNEG + 4 * qb, 4) if t == 0 else d)
                mf[8 * kb].need = set(('a', aK + 32 * (tau % 2) + 16 * kb + r) for r in range(16))
        u = sig
        if 0 <= u < N:
            tau, qb = unit(u)
            pp = u % 2
            for db in range(8):
                d = R('v', vACC + 32 * qb + 4 * db, 4)
                mf[4 + 8 * (db // 4) + db % 4] = mfma(d, R('a', aV + 32 * (tau % 2) + 4 * db, 4), R('v', vP + 4 * pp, 4),
                                                      '0' if tau % 32 == 0 else d)
            for hb in range(2):
                mf[4 + 8 * hb].need = set(('a', aV + 32 * (tau % 2) + 16 * hb + r) for r in range(16))
        gaps = [[] for _ in range(16)]
        u = sig + 1
        if 0 <= u < N:
            tau, qb = unit(u)
            s0 = vS + 8 * (u % 2)
            p0 = vP + 4 * (u % 2)
            l0 = vL + 2 * qb
            E = [0, 1, 3, 5, 7, 9, 11, 13]
            for k, g in enumerate(E):
                gaps[g].append(I(f'v_exp_f32 v{s0 + k}, v{s0 + k}'))
            for k, g in enumerate([2, 6, 10, 14]):
                gaps[g].append(I(f'v_cvt_pk_bf16_f32 v{p0 + k}, v{s0 + 2 * k}, v{s0 + 2 * k + 1}'))
            for k, g in enumerate([4, 8, 12, 15]):
                if OPT['pkadd']:
                    gaps[g].append(I(f'v_pk_add_f32 {R("v", l0, 2)}, {R("v", l0, 2)}, {R("v", s0 + 2 * k, 2)}'))
                    continue
                gaps[g].append(I(f'v_add_f32 v{l0}, v{l0}, v{s0 + 2 * k}'))
                gaps[g].append(I(f'v_add_f32 v{l0 + 1}, v{l0 + 1}, v{s0 + 2 * k + 1}'))
        for g in range(16):
            gaps[g] = [x for x in gaps[g] if not any(dd and x.mn.startswith(dd) for dd in OPT['drop'].split(','))]
        nrd = sum(1 for g in range(16) for x in mem.get(g, []) if x.kind == 'ds')
        salus = dict(salus)
        salus[15] = [P_lgkeep(min(nrd, 6))] + salus.get(15, [])
        for g in range(16):
            gaps[g] = salus.get(g, []) + mem.get(g, []) + gaps[g]
        ex = extra.get(sig, [])
        per = (len(ex) + 15) // 16
        k = 0
        for g in range(16):
            if mf[g] is not None:
                A(mf[g])
            S.ext(gaps[g])
            if ex:
                S.ext(ex[k:k + per]); k += per

    mempos4 = MEMPOS
    for tau in range(-1, 64):
        if tau % 2 == 1 and tau >= 1:
            S.mark('att', tau)
        elif tau in (-1, 0):
            S.mark('attp', tau)
        elif tau in (31, 32, 63):
            pass
        slots = list(range(nqb * tau, nqb * tau + nqb)) if tau >= 0 else [-2, -1]
        reads = frame_reads(tau)
        dm = kv_dma(tau + DIST) if (dmawave and tau + DIST <= 63 + DIST and tau < 63) else []
        if OPT['att_nodma'] and tau >= 0:
            dm = []
        TAIL0 = 57
        if OPT['park'] and tau >= TAIL0 and tau + DIST > 63:
            dm = []
        head = []
        if tau + 1 <= 63:
            if dmawave and not (OPT['att_novm'] and tau >= 0):
                head.append(P_vmwait(lambda t, tt=tau + 1: t == ('KV', tt), cap=((int(OPT['vmcap']) or 4 * (DIST - 2)) if SHARE and tau >= 1 and tau not in (31, 32) else None)))
            if not (OPT['att_nobar'] and tau >= 0):
                head.append(I('s_barrier'))
        upd = []
        if tau % 2 == 1 and tau + 1 <= 63 and tau >= 1:
            pass
        if OPT['fst'] and tau >= 1:
            h2 = [I('s_mov_b32 m0, s98'), I('s_nop 1'), I('v_writelane_b32 v59, s92, m0'), I('v_writelane_b32 v60, s94, m0'), I('v_writelane_b32 v61, s96, m0'),
                  I('s_add_u32 s98, s98, 1'), I('s_memtime s[92:93]')]
            for x in head:
                h2.append(x)
                if x.kind == 'pseudo':
                    h2.append(I('s_memtime s[94:95]'))
            h2.append(I('s_memtime s[96:97]'))
            if OPT['fst'] == 'rt':
                h2 = [x for x in h2 if x.txt != 's_memtime s[94:95]'] + [I('s_memrealtime s[94:95]')]
            for x in h2:
                if x.mn in ('s_memtime', 's_memrealtime'):
                    x.kind = 'salu'; x.wr = set()
                if x.mn == 'v_writelane_b32':
                    x.rd = set(); x.wr = set()
            head = h2
        S.ext(head)
        if tau == -1:
            for r in reads[:8]:
                A(r)
            reads = reads[8:]
        nsl = len(slots)
        mem = [dict() for _ in slots]
        sal = [dict() for _ in slots]
        if nqb == 4 and tau >= 0:
            pos = [(j, g) for j in range(4) for g in mempos4]
        elif nqb == 4:
            pos = [(j, g) for j in range(2) for g in (0, 1, 2, 4, 6, 8, 10, 14)]
        elif tau >= 0:
            pos = [(j, g) for j in range(3) for g in (0, 1, 2, 4, 6, 8, 10, 14)]
        else:
            pos = [(j, g) for j in range(2) for g in (0, 1, 2, 4, 6, 8, 10, 14)]
        if OPT['att_nolds'] and tau >= 1:
            reads = []
        for r, (j, g) in zip(reads, pos):
            mem[j].setdefault(g, []).append(r)
        if dm and tau == -1:
            for m, d in dm:
                A(m); A('s_nop 0'); A(d)
        elif dm:
            dpos = [(j, g) for j in range(nsl) for g in (3, 5, 7, 9, 11, 13)][:16]
            if OPT['alldma']:
                G0 = int(OPT['dmag'])
                dpos = [(j, G0) for j in range(4)] if nsl == 4 else ([(0, G0), (1, G0), (2, G0), (2, G0 + 6)] if nsl == 3 else [(0, G0), (0, G0 + 6), (1, G0), (1, G0 + 6)])
            for (m, d), (j, g) in zip(dm, dpos):
                mem[j].setdefault(g, []).append(d)
                sal[j].setdefault(g - 1, []).append(m)
        for j, sig in enumerate(slots):
            if j == nsl - 1 and tau % 2 == 0:
                extra.setdefault(sig, [])
                ups = [I(f's_add_u32 {sRBASE}, {sRBASE}, {2 * SLOT}'),
                       I(f's_cmp_eq_u32 {sRBASE}, {NRING * SLOT}'),
                       I(f's_cselect_b32 {sRBASE}, 0, {sRBASE}')]
                if dmawave and not OPT['alldma']:
                    sal[j].setdefault(14, []).extend(ups)
                else:
                    sal[j].setdefault(3, []).append(ups[0])
                    sal[j].setdefault(5, []).append(ups[1])
                    sal[j].setdefault(7, []).append(ups[2])
                mem[j].setdefault(15, []).extend([I(f'v_add_u32 v{vKA}, {sRBASE}, v{vKL}'),
                                                  I(f'v_add_u32 v{vVA0}, {sRBASE}, v{vVL0}'),
                                                  I(f'v_add_u32 v{vVA1}, {sRBASE}, v{vVL1}')])
            if j == nsl - 1 and dm:
                adv = kv_advance()
                for k, ins in enumerate(adv):
                    mem[j].setdefault(15, []).append(ins)
            if OPT['park']:
                T0 = 63 - DIST + 1
                k = (tau - T0) * nsl + j
                per = -(-4 * nqb // ((63 - T0) * nsl))
                if tau >= T0:
                    for q in range(k * per, min((k + 1) * per, 4 * nqb)):
                        qb_, t_ = divmod(q, 4)
                        g_ = 4 + 6 * (q - k * per)
                        sal[j].setdefault(g_ - 1, []).append(I(f's_mov_b32 {sOOFF}, {qb_ * 131072}'))
                        mem[j].setdefault(g_, []).append(I(f'buffer_store_dwordx4 {R("a", aQ + 16 * qb_ + 4 * t_, 4)}, v{vOST}, {SRD_O}, {sOOFF} offen offset:{1024 * t_} {OPT["oflags"]}', tag=('O', 0)))
            TP = int(OPT['tailpf'])
            if TP and nqb == 4 and j == 2 and TP <= tau < TP + 3:
                pf = I(f'buffer_load_dword v63, v62, s[52:55], s69 offen {OPT["pfflags"]}')
                pf.wr = set()
                mem[j].setdefault(8, []).append(pf)
                sal[j].setdefault(9, []).append(I(f's_add_u32 s69, s69, {192 * 128}'))
            if PFS and nqb == 4 and j == 1 and tau % 2 == 1 and ((int(OPT['pfloop']) <= tau < int(OPT['pfloop']) + 30) if not SHARE else (1 <= tau <= 61 and tau != 31)):
                pf = I(f'buffer_load_dword v63, v62, s[52:55], s69 offen {OPT["pfflags"]}')
                pf.wr = set()
                mem[j].setdefault(4, []).append(pf)
                sal[j].setdefault(9, []).append(I(f's_add_u32 s69, s69, {3 * PFN * PFS}'))
            if (CPF & 2) and j == 2 and tau % 2 == 1 and 1 <= tau < 31:
                pf = I('global_load_dword v58, v[56:57], off')
                pf.wr = set()
                mem[j].setdefault(6, []).append(pf)
            if j == nsl - 1 and tau % 2 == 0 and (2 <= tau <= 30 or 34 <= tau <= 62):
                mem[j].setdefault(15, []).extend([I(f's_sub_u32 {sCNT}, {sCNT}, 1'), I(f's_cmp_lg_u32 {sCNT}, 0')])
            emit_slot(sig, mem[j], sal[j])
    S.mark('attend', 0)
    A('s_nop 7')
    for qb in range(nqb):
        S.ext(l_finish_items(qb))
    for qb in range(nqb):
        S.ext(o_epilogue_items(nqb, 1, qb, True))


def true_max_pass(S, nqb, v3):
    A = S.a
    A(f'v_lshrrev_b32 v27, 4, v{vLANE}')
    A(f'v_and_b32 v28, 15, v{vLANE}')
    A('v_lshlrev_b32 v31, 8, v28')
    A('v_lshl_add_u32 v31, v27, 4, v31')
    mx = [vACC + 64 + i for i in range(2 * nqb)]
    for hh in range(2):
        for qb in range(nqb):
            A(f'v_mov_b32 v{mx[hh * nqb + qb]}, 0xff7fffff')
        A(f's_mov_b32 {sTMP}, {hh * 262144}')
        A(f's_mov_b32 {sCNT}, 64')
        A(f'L_tm{v3}_{hh}:')
        for t in range(4):
            A(f'buffer_load_dwordx4 {R("v", vKPRE + 4 * t, 4)}, v31, {SRD_K}, {sTMP} offen offset:{64 * t}')
        A('s_waitcnt vmcnt(0)')
        for qb in range(nqb):
            d = vACC + 4 * qb
            for t in range(4):
                A(mfma(R('v', d, 4), R('v', vKPRE + 4 * t, 4), R('a', aQ + 64 * hh + 16 * qb + 4 * t, 4), '0' if t == 0 else R('v', d, 4)))
        A('s_nop 7')
        for qb in range(nqb):
            d = vACC + 4 * qb
            m = mx[hh * nqb + qb]
            A(f'v_max3_f32 v{m}, v{m}, v{d}, v{d + 1}')
            A(f'v_max3_f32 v{m}, v{m}, v{d + 2}, v{d + 3}')
        A(f's_add_u32 {sTMP}, {sTMP}, 4096')
        A(f's_sub_u32 {sCNT}, {sCNT}, 1')
        A(f's_cmp_lg_u32 {sCNT}, 0')
        A(f's_cbranch_scc1 L_tm{v3}_{hh}')
    xlane_max_or_add(S, 'v_max_f32', mx, [vACC + 80 + i for i in range(2 * nqb)])
    set_negm(S, nqb, mx)


def k1_variant(nqb):
    v3 = '3' if nqb == 3 else ''
    S = Stream()
    A = S.a
    qproj(S, nqb, None)
    stamp(S, 2)
    if OPT['v2']:
        qtail_end(S, nqb)
        A(f's_cmp_lg_u32 {sFB}, 0')
        A(f's_cbranch_scc1 L_tm{v3}')
        stamp(S, 3)
        attention(S, nqb, v3)
        return k1_finish(S, nqb, v3)
    S.lgwait0()
    A('s_barrier')
    if int(OPT['prolpos']) == 0:
        kv_prologue(S, nqb)
    q_epilogue(S, nqb)
    if int(OPT['prolpos']) == 1:
        kv_prologue(S, nqb)
    if OPT['dump'] == 'q':
        A('s_load_dwordx2 s[64:65], s[0:1], 96')
        A('s_waitcnt lgkmcnt(0)')
        A('s_add_u32 s48, s64, 0x4000000'); A('s_addc_u32 s49, s65, 0'); A('s_mov_b32 s50, 0x4000000'); A('s_mov_b32 s51, 0x20000')
        A(f's_lshl_b32 s52, s2, 2'); A(f's_add_u32 s52, s52, {sW}'); A('s_lshl_b32 s52, s52, 15')
        A(f'v_lshlrev_b32 v27, 2, v{vLANE}')
        for r in range(128):
            A(f'v_accvgpr_read_b32 v28, a{r}')
            A(f'buffer_store_dword v28, v27, s[48:51], s52 offen')
            A('s_add_u32 s52, s52, 256')
            A('s_waitcnt vmcnt(0)')
    kv_prologue2(S, nqb)
    S.vmwait(lambda t: t is not None and t[0] == 'KP')
    A(f's_cmp_lg_u32 {sFB}, 0')
    A(f's_cbranch_scc1 L_tm{v3}')
    standin(S, nqb)
    if int(OPT['prolpos']) == 2:
        kv_prologue(S, nqb)
    stamp(S, 3)
    attention(S, nqb, v3)
    return k1_finish(S, nqb, v3)


def k1_finish(S, nqb, v3):
    A = S.a
    stamp(S, 4)
    A(f's_cmp_eq_u32 {sFB}, {0 if OPT["nofb"] else 1}')
    A(f's_cbranch_scc1 L_done{v3}')
    A(f's_cmp_eq_u64 {sBAD}, 0')
    A(f's_cbranch_scc1 L_ok{v3}')
    A('v_mov_b32 v27, 1')
    A(f'v_mov_b32 v28, {FLAG_ADDR}')
    A('ds_write_b32 v28, v27')
    A(f'L_ok{v3}:')
    A('s_waitcnt lgkmcnt(0)')
    A('s_barrier')
    A(f'v_mov_b32 v28, {FLAG_ADDR}')
    A('ds_read_b32 v27, v28')
    A('s_waitcnt lgkmcnt(0)')
    A('v_readfirstlane_b32 s48, v27')
    A('s_nop 3')
    A('s_cmp_eq_u32 s48, 0')
    A(f's_cbranch_scc1 L_done{v3}')
    A(f's_mov_b32 {sFB}, 1')
    A('s_waitcnt vmcnt(0) lgkmcnt(0)')
    A('s_barrier')
    A('s_branch L_restart')
    A(f'L_done{v3}:')
    if OPT['stamps']:
        stamp(S, 5)
        A('s_load_dwordx2 s[64:65], s[0:1], 96')
        A('s_waitcnt lgkmcnt(0)')
        A('s_add_u32 s48, s64, 0x8000000'); A('s_addc_u32 s49, s65, 0'); A('s_mov_b32 s50, 0x100000'); A('s_mov_b32 s51, 0x20000')
        A(f's_lshl_b32 s52, s2, 2'); A(f's_add_u32 s52, s52, {sW}'); A('s_lshl_b32 s52, s52, 6')
        A('v_mov_b32 v28, 0')
        for k in range(6):
            A(f'v_mov_b32 v27, s{sST + 4 * k}')
            A(f'buffer_store_dword v27, v28, s[48:51], s52 offen offset:{4 * k}')
            A(f'v_mov_b32 v27, s{sST + 4 * k + 2}')
            A(f'buffer_store_dword v27, v28, s[48:51], s52 offen offset:{4 * k + 32}')
        if OPT['fst']:
            A('s_add_u32 s48, s64, 0x8200000'); A('s_addc_u32 s49, s65, 0')
            A(f's_lshl_b32 s52, s2, 2'); A(f's_add_u32 s52, s52, {sW}'); A('s_mul_i32 s52, s52, 768')
            A(f'v_lshlrev_b32 v28, 2, v{vLANE}')
            for k in range(3):
                A(f'buffer_store_dword v{59 + k}, v28, s[48:51], s52 offen offset:{256 * k}')
        A('s_waitcnt vmcnt(0)')
    if OPT['dbgst'] and nqb == 4:
        stamp(S, 5)
        A('s_lshl_b32 s52, s2, 2'); A(f's_or_b32 s52, s52, {sW}')
        A('s_cmp_lg_u32 s52, 0')
        A('s_cbranch_scc1 L_nodbg')
        A('s_load_dwordx2 s[48:49], s[0:1], 88')
        A('s_waitcnt lgkmcnt(0)')
        A('s_mov_b32 s50, 256'); A('s_mov_b32 s51, 0x20000')
        A('v_mov_b32 v28, 0')
        for k in range(6):
            A(f'v_mov_b32 v27, s{sST + 4 * k + 2}')
            A(f'buffer_store_dword v27, v28, s[48:51], 0 offen offset:{4 * k}')
        A('s_waitcnt vmcnt(0)')
        A('L_nodbg:')
    A('s_endpgm')
    A(f'L_tm{v3}:')
    true_max_pass(S, nqb, v3)
    A('s_nop 7')
    A(f's_branch L_attn{v3}')
    items, vmq, lgq = resolve(S.it)
    items, nfix = check_hazards(items, True, 'k1_%d' % nqb)
    check_scc(items, 'k1_%d' % nqb)
    loops = {'qp': (0, 6, f'L_qp{v3}', sCNT)}
    txt = fold2(items, v3)
    return txt


def fold2(items, v3):
    segs = split_marks(items)
    out = []

    def fold(group, label):
        t0 = text(group[0][2])
        for g in group[1:]:
            t = text(g[2])
            if t != t0:
                for a, b in zip(t0, t):
                    if a != b:
                        print(f'loop {label}: seg {group[0][0]}{group[0][1]} vs {g[1]} differ:\n   {a}\n   {b}')
                        break
                if len(t) != len(t0):
                    print(f'loop {label}: length differs {len(t0)} vs {len(t)} (iter {g[1]})')
                return None
        lastscc = None
        for ln in t0:
            mn = ln.split()[0]
            if re.match(r's_(add|sub|cmp|and|or|xor|lshl|lshr|min|max|bfe|not|andn2)', mn):
                lastscc = ln
        assert lastscc.startswith('s_cmp_lg_u32 ' + sCNT), lastscc
        return [f's_mov_b32 {sCNT}, {len(group)}', f'{label}:'] + t0 + [f's_cbranch_scc1 {label}']

    def fold_auto(group, label):
        for p in range(len(group)):
            r = fold(group[p:], label) if len(group) - p > 1 else None
            if r is not None:
                res = []
                for g in group[:p]:
                    res += [ln for ln in text(g[2])]
                print(f'{label}: peeled {p}, loop x{len(group) - p}, body {len(r)} lines')
                return res + r
        raise SystemExit('cannot fold ' + label)

    i = 0
    while i < len(segs):
        name, idx, its = segs[i]
        if name == 'qp' and idx == 0:
            grp = [s for s in segs if s[0] == 'qp' and s[1] <= 6]
            out += fold_auto(grp, f'L_qp{v3}')
            i += len(grp)
            continue
        if name == 'att' and idx == 1 and OPT['v2'] and OPT['share']:
            grp = [s for s in segs if s[0] == 'att' and (1 <= s[1] <= 29 or 33 <= s[1] <= 61)]
            r = fold(grp, f'L_at{v3}')
            if r is None:
                raise SystemExit('cannot share the key loop ' + v3)
            r[0] = f's_mov_b32 {sCNT}, 15'
            print(f'L_at{v3}: shared loop, body {len(r)} lines')
            out += r
            out += [f's_cmp_lg_u32 {sPH}, 0', f's_cbranch_scc1 L_tail{v3}', f'L_tr{v3}:']
            tr = [s for s in segs if s[0] == 'att' and s[1] == 31][0]
            out += text(tr[2])
            out += [f's_mov_b32 {sPH}, 1', f's_mov_b32 {sCNT}, 15', f's_branch L_at{v3}', f'L_tail{v3}:']
            i += 15 + 1 + 15
            continue
        if name == 'att' and idx in (1, 33):
            grp = [s for s in segs if s[0] == 'att' and idx <= s[1] <= (idx + 28 if not (idx == 33 and (OPT['park'] or OPT['tailpf'])) else 55)]
            out += fold_auto(grp, f'L_at{v3}_{idx}')
            i += len(grp)
            continue
        if name == 'att' and idx == 31:
            out.append(f'L_tr{v3}:')
        out += text(its)
        i += 1
    return out


def descriptor(name, vg=512, acc_off=256):
    return ['.section .rodata,"a"', '.p2align 6', f'.amdhsa_kernel {name}',
            f'  .amdhsa_next_free_vgpr {vg}', '  .amdhsa_next_free_sgpr 102', f'  .amdhsa_accum_offset {acc_off}',
            '  .amdhsa_group_segment_fixed_size 0', '  .amdhsa_kernarg_size 104', '  .amdhsa_user_sgpr_count 2',
            '  .amdhsa_user_sgpr_kernarg_segment_ptr 1', '  .amdhsa_system_sgpr_workgroup_id_x 1', '.end_amdhsa_kernel']


HEADER = open('concat_heads__mha_block_cached__gqa_block_cached__near_ridge.s.ref').read().split('; Override launch')[0] \
    if os.path.exists('concat_heads__mha_block_cached__gqa_block_cached__near_ridge.s.ref') else ''


PROMO = ('v_exp_f32', 'v_add_f32', 'v_mov_b32', 'v_mul_f32', 'v_sub_f32', 'v_max_f32', 'v_add_u32', 'v_rcp_f32', 'v_xor_b32', 'v_and_b32',
         'v_lshlrev_b32', 'v_lshrrev_b32')


def inst_sizes(L):
    import subprocess, tempfile
    with tempfile.NamedTemporaryFile('w', suffix='.s', delete=False) as f:
        f.write('\n'.join(L) + '\n')
    r = subprocess.run(['llvm-mc', '-triple=amdgcn-amd-amdhsa', '-mcpu=gfx950', '--show-encoding', f.name], capture_output=True, text=True)
    os.unlink(f.name)
    assert r.returncode == 0, r.stderr[:2000]
    return [len(m.group(1).split(',')) for m in re.finditer(r'; encoding: \[([^\]]*)\]', r.stdout)]


def is_inst(ln):
    t = ln.strip()
    return bool(t) and not t.startswith(('.', ';')) and not t.endswith(':')


def promotable(ln):
    t = ln.strip()
    if t.split()[0] not in PROMO or 'vcc' in t or 'm0' in t:
        return False
    for o in t.split(None, 1)[1].split(','):
        o = o.strip()
        if re.fullmatch(r'-?(0x[0-9a-f]+|\d+)', o) and not -16 <= int(o, 0) <= 64:
            return False
    return True


def widen(ln):
    w = ln.split(None, 1)
    return ln.replace(w[0], w[0] + '_e64', 1)


def align_pass(L, mode, shift):
    if shift:
        M = []
        for ln in L:
            if re.match(r'L_(qp3?|at3?_\d+|k2):', ln):
                M.append('.p2align 6')
                M += ['s_nop 0'] * (shift % 16)
            M.append(ln)
        L = M
    if not mode:
        return L
    regs = OPT['alignreg'].split(',')
    L = list(L)
    reg = 'qp'
    region = []
    for ln in L:
        if re.match(r'L_attn3?:', ln): reg = 'at'
        elif re.match(r'L_w3:', ln): reg = 'qp'
        elif ln.startswith(K2 + ':'): reg = 'k2'
        region.append(reg)
    wide = mode.startswith('w')
    if wide:
        mode = mode[1:]
        for i, ln in enumerate(L):
            if region[i] in regs and is_inst(ln) and promotable(ln):
                L[i] = widen(ln)
    pad = mode.endswith('n')
    if pad:
        mode = mode[:-1]
    sizes = inst_sizes(L)
    idx = [i for i, ln in enumerate(L) if is_inst(ln)]
    assert len(idx) == len(sizes), (len(idx), len(sizes))
    size = dict(zip(idx, sizes))
    want = 4 if mode == 'anti' else 0
    off = 0
    run = []
    nfix = nbad = ntot = npad = 0
    ins = {}
    for i, ln in enumerate(L):
        t = ln.strip()
        m = re.match(r'\.p2align (\d+)', t)
        if m:
            a = 1 << int(m.group(1))
            off = (off + a - 1) // a * a
            run = []
            continue
        if i not in size:
            continue
        if size[i] == 4:
            run.append((i, off))
            off += 4
            continue
        crit = (mode in ('all', 'anti') or t.startswith('v_mfma')) and region[i] in regs
        if crit:
            ntot += 1
            if off % 8 != want:
                cands = [(j, o) for (j, o) in run if promotable(L[j]) and not L[j].split()[0].endswith('_e64')]
                good = [c for c in cands if c[1] % 8 == want] or cands
                if good:
                    j = good[-1][0]
                    L[j] = widen(L[j])
                    off += 4
                    nfix += 1
                elif pad:
                    ins[run[0][0] if run else i] = 's_nop 0'
                    off += 4
                    npad += 1
                else:
                    nbad += 1
        off += size[i]
        run = []
    M = []
    for i, ln in enumerate(L):
        if i in ins:
            M.append(ins[i])
        M.append(ln)
    print(f'align {mode}: {ntot} critical, {nfix} widened, {npad} padded, {nbad} left')
    return M


def main(path):
    import gen2
    L = [HEADER.rstrip('\n')] if HEADER else []
    L.append(f'; @launch kernel={KN} grid=(256,1,1) block=(256,1,1) lds=163840')
    if not OPT['only_k1']:
        L.append(f'; @launch kernel={K2} grid=(240,1,1) block=(256,1,1) lds=163840')
    L += ['.amdgcn_target "amdgcn-amd-amdhsa--gfx950"', '.text', f'.globl {KN}', '.p2align 8', f'.type {KN},@function', f'{KN}:']
    S = Stream()
    k1_setup(S)
    its, _, _ = resolve(S.it)
    its, _ = check_hazards(its, True, 'setup')
    L += text(its)
    L += k1_variant(4)
    L.append('L_w3:')
    L += k1_variant(3)
    L += ['L_end1:', 's_endpgm']
    if not OPT['only_k1']:
        L += [f'.globl {K2}', '.p2align 8', f'.type {K2},@function', f'{K2}:']
        L += gen2.kernel2(OPT)
    L += descriptor(KN)
    if not OPT['only_k1']:
        L += descriptor(K2)
    if OPT['align'] or int(OPT['shift']):
        L = align_pass(L, OPT['align'], int(OPT['shift']))
    s = '\n'.join(L) + '\n'
    open(path, 'w').write(s)
    print('wrote', path, len(s), 'bytes', len(L), 'lines')


if __name__ == '__main__':
    for a in sys.argv[2:]:
        k, v = a.split('=')
        OPT[k] = {'True': True, 'False': False, 'None': None}.get(v, v.replace('+', ' ') if isinstance(v, str) else v)
    main(sys.argv[1])
```

```python
import re

RTOK = re.compile(r'-?\|?\b([vas])\[(\d+):(\d+)\]|\b([vas])(\d+)\b|\b(m0|vcc|exec|scc)\b')
TRANS = ('v_exp_f32', 'v_log_f32', 'v_rcp_f32', 'v_rsq_f32', 'v_sqrt_f32', 'v_sin_f32', 'v_cos_f32', 'v_rcp_iflag_f32')


def regs(op):
    out = []
    for m in RTOK.finditer(op):
        if m.group(1):
            out += [(m.group(1), i) for i in range(int(m.group(2)), int(m.group(3)) + 1)]
        elif m.group(4):
            out.append((m.group(4), int(m.group(5))))
        else:
            nm = m.group(6)
            if nm == 'vcc':
                out += [('vcc', 0)]
            else:
                out.append((nm, 0))
    return out


class I:
    __slots__ = ('txt', 'mn', 'kind', 'rd', 'wr', 'srcc', 'tag', 'need', 'ops', 'nst', 'meta')

    def __init__(self, txt, tag=None, need=None, meta=None):
        self.txt = txt
        self.tag = tag
        self.need = need
        self.meta = meta
        self.srcc = []
        self.nst = 1
        t = txt.split(';')[0].strip()
        parts = t.split(None, 1)
        mn = parts[0] if parts else ''
        self.mn = mn
        rest = parts[1] if len(parts) > 1 else ''
        ops = [o.strip() for o in rest.split(',')] if rest else []
        self.ops = ops
        rd, wr = [], []
        if mn.endswith(':') or mn.startswith('.') or mn == '':
            self.kind = 'label'
            self.nst = 0
        elif mn == 'PSEUDO':
            self.kind = 'pseudo'
            self.nst = 0
        elif mn.startswith('v_mfma'):
            self.kind = 'mfma'
            wr = regs(ops[0])
            rd = regs(ops[1]) + regs(ops[2])
            self.srcc = regs(ops[3])
        elif mn.startswith('ds_read') or mn.startswith('ds_bpermute') or mn.startswith('ds_swizzle'):
            self.kind = 'ds'
            wr = regs(ops[0])
            rd = sum((regs(o) for o in ops[1:]), [])
        elif mn.startswith('ds_write'):
            self.kind = 'ds'
            rd = sum((regs(o) for o in ops), [])
        elif mn.startswith('buffer_load'):
            if re.search(r'\blds\b', rest):
                self.kind = 'dma'
                rd = sum((regs(o) for o in ops), []) + [('m0', 0)]
            else:
                self.kind = 'vmem'
                wr = regs(ops[0])
                rd = sum((regs(o) for o in ops[1:]), [])
        elif mn.startswith('global_load'):
            self.kind = 'vmem'
            wr = regs(ops[0])
            rd = sum((regs(o) for o in ops[1:]), [])
        elif mn.startswith('buffer_store') or mn.startswith('buffer_atomic') or mn.startswith('buffer_wbl2') or mn.startswith('buffer_inv'):
            self.kind = 'vmem'
            rd = sum((regs(o) for o in ops), [])
            if mn.startswith('buffer_atomic') and 'sc0' in rest:
                wr = regs(ops[0])
        elif mn.startswith('s_load') or mn.startswith('s_memtime') or mn.startswith('s_memrealtime'):
            self.kind = 'smem'
            wr = regs(ops[0])
            rd = sum((regs(o) for o in ops[1:]), [])
        elif mn.startswith('v_'):
            self.kind = 'trans' if mn.replace('_e32', '').replace('_e64', '') in TRANS else 'valu'
            if mn.startswith('v_cmp'):
                wr = regs(ops[0])
                rd = sum((regs(o) for o in ops[1:]), [])
            elif mn.startswith('v_permlane') and 'swap' in mn:
                wr = regs(ops[0]) + regs(ops[1])
                rd = list(wr)
            elif mn.startswith('v_add_co') or mn.startswith('v_addc_co') or mn.startswith('v_sub_co'):
                wr = regs(ops[0]) + regs(ops[1])
                rd = sum((regs(o) for o in ops[2:]), [])
            elif mn.startswith('v_fmac') or mn.startswith('v_pk_fmac'):
                wr = regs(ops[0])
                rd = sum((regs(o) for o in ops), [])
            else:
                wr = regs(ops[0])
                rd = sum((regs(o) for o in ops[1:]), [])
                if mn.startswith('v_cndmask') and len(ops) == 3:
                    rd.append(('vcc', 0))
        elif mn.startswith('s_'):
            if mn == 's_nop':
                self.kind = 'nop'
                self.nst = int(ops[0], 0) + 1
            elif mn == 's_waitcnt':
                self.kind = 'wait'
            elif mn == 's_barrier':
                self.kind = 'bar'
            elif mn.startswith('s_cmp') or mn.startswith('s_bitcmp'):
                self.kind = 'salu'
                rd = sum((regs(o) for o in ops), [])
                wr = [('scc', 0)]
            elif mn == 's_getpc_b64':
                self.kind = 'salu'
                wr = regs(ops[0])
            elif mn.startswith('s_cbranch') or mn in ('s_branch', 's_endpgm', 's_setprio', 's_sleep', 's_sethalt'):
                self.kind = 'salu'
                if 'scc' in mn:
                    rd = [('scc', 0)]
                if 'vcc' in mn:
                    rd = [('vcc', 0)]
                if 'exec' in mn:
                    rd = [('exec', 0)]
            else:
                self.kind = 'salu'
                wr = regs(ops[0])
                rd = sum((regs(o) for o in ops[1:]), [])
                if mn.startswith('s_cselect') or mn.startswith('s_addc') or mn.startswith('s_subb'):
                    rd.append(('scc', 0))
                if 'saveexec' in mn:
                    wr = wr + [('exec', 0)]
        else:
            raise ValueError('unknown instr ' + txt)
        self.rd = set(rd)
        self.wr = set(wr)
        self.srcc = set(self.srcc)


def wait_txt(vm=None, lg=None):
    p = []
    if vm is not None:
        p.append(f'vmcnt({vm})')
    if lg is not None:
        p.append(f'lgkmcnt({lg})')
    return 's_waitcnt ' + ' '.join(p)


class Stream:
    def __init__(self):
        self.it = []

    def a(self, txt, tag=None, need=None, meta=None):
        if isinstance(txt, I):
            self.it.append(txt)
            return txt
        i = I(txt, tag, need, meta)
        self.it.append(i)
        return i

    def ext(self, lst):
        for x in lst:
            self.a(x)

    def vmwait(self, pred, note=''):
        i = I('PSEUDO vmwait', meta=('vmwait', pred, note))
        self.it.append(i)
        return i

    def lgwait0(self):
        i = I('PSEUDO lgwait', meta=('lgwait0',))
        self.it.append(i)
        return i

    def mark(self, name, idx):
        i = I('PSEUDO mark', meta=('mark', name, idx))
        self.it.append(i)


def P_vmwait(pred, cap=None):
    return I('PSEUDO vmwait', meta=('vmwait', pred, '', cap))


def P_lgwait0():
    return I('PSEUDO lgwait', meta=('lgwait0',))


def P_lgkeep(n):
    return I('PSEUDO lgkeep', meta=('lgkeep', n))


def P_lgwait(pred):
    return I('PSEUDO lgwait', meta=('lgwaitp', pred))


def resolve(items, vmq=None, lgq=None, hoist=True, verbose=False):
    vmq = list(vmq or [])
    lgq = list(lgq or [])
    out = []
    last_mfma_pos = None
    lg_issued_since = 0
    vm_issued_since = 0

    def emit_wait(vm=None, lg=None):
        if out and out[-1].kind == 'wait' and out[-1].meta == 'auto':
            p = out[-1]
            ovm, olg = p.need
            vm = ovm if vm is None else (vm if ovm is None else min(vm, ovm))
            lg = olg if lg is None else (lg if olg is None else min(lg, olg))
            out.pop()
        w = I(wait_txt(vm, lg), meta='auto')
        w.need = (vm, lg)
        out.append(w)

    for ins in items:
        if ins.kind == 'pseudo':
            m = ins.meta
            if m[0] == 'vmwait':
                last = -1
                for k, e in enumerate(vmq):
                    if m[1](e[0]):
                        last = k
                cap = m[3] if len(m) > 3 else None
                if last >= 0 or cap is not None:
                    n = len(vmq) - 1 - last if last >= 0 else cap
                    if cap is not None and n > cap:
                        n = cap
                    emit_wait(vm=n)
                    if n < len(vmq):
                        vmq = vmq[len(vmq) - n:] if n else []
            elif m[0] == 'lgwait0':
                if lgq:
                    emit_wait(lg=0)
                    lgq = []
            elif m[0] == 'lgwaitp':
                last = -1
                for k, e in enumerate(lgq):
                    if m[1](e[0]):
                        last = k
                if last >= 0:
                    n = len(lgq) - 1 - last
                    emit_wait(lg=n)
                    lgq = lgq[last + 1:]
            elif m[0] == 'snap':
                m[1].append(list(vmq))
            elif m[0] == 'lgkeep':
                if len(lgq) > m[1]:
                    emit_wait(lg=m[1])
                    lgq = lgq[len(lgq) - m[1]:] if m[1] > 0 else []
            else:
                out.append(ins)
            continue
        touch = ins.rd | ins.wr | ins.srcc
        if isinstance(ins.need, set):
            touch = touch | ins.need
        lastl = -1
        for k, e in enumerate(lgq):
            if e[1] & touch:
                lastl = k
        if lastl >= 0:
            n = len(lgq) - 1 - lastl
            done = False
            if hoist and ins.kind == 'mfma' and last_mfma_pos is not None and n >= lg_issued_since:
                nn = n - lg_issued_since
                pos = last_mfma_pos
                if pos < len(out) and out[pos].kind == 'wait' and out[pos].meta == 'auto':
                    ovm, olg = out[pos].need
                    nl = nn if olg is None else min(nn, olg)
                    w = I(wait_txt(ovm, nl), meta='auto')
                    w.need = (ovm, nl)
                    out[pos] = w
                else:
                    w = I(wait_txt(None, nn), meta='auto')
                    w.need = (None, nn)
                    out.insert(pos, w)
                done = True
            if not done:
                emit_wait(lg=n)
            lgq = lgq[lastl + 1:]
        lastv = -1
        for k, e in enumerate(vmq):
            if e[1] & touch:
                lastv = k
        if lastv >= 0:
            n = len(vmq) - 1 - lastv
            emit_wait(vm=n)
            vmq = vmq[lastv + 1:]
        if ins.kind in ('dma', 'vmem') and len(vmq) >= 63:
            emit_wait(vm=62)
            vmq = vmq[len(vmq) - 62:]
        if ins.kind == 'ds' and len(lgq) >= 15:
            emit_wait(lg=14)
            lgq = lgq[len(lgq) - 14:]
        if ins.kind == 'wait' and ins.meta != 'auto':
            mm = re.search(r'vmcnt\((\d+)\)', ins.txt)
            if mm:
                n = int(mm.group(1))
                vmq = vmq[len(vmq) - n:] if n < len(vmq) and n > 0 else ([] if n == 0 else vmq)
            mm = re.search(r'lgkmcnt\((\d+)\)', ins.txt)
            if mm:
                n = int(mm.group(1))
                lgq = lgq[len(lgq) - n:] if n < len(lgq) and n > 0 else ([] if n == 0 else lgq)
        out.append(ins)
        if ins.kind == 'mfma':
            last_mfma_pos = len(out)
            lg_issued_since = 0
            vm_issued_since = 0
        elif ins.kind == 'label':
            pass
        if ins.kind == 'ds':
            lgq.append((ins.tag, set(ins.wr)))
            lg_issued_since += 1
        elif ins.kind == 'smem':
            lgq.append((ins.tag, set(ins.wr)))
            lgq.append((ins.tag, set(ins.wr)))
            lg_issued_since += 2
        elif ins.kind in ('dma', 'vmem'):
            vmq.append((ins.tag, set(ins.wr)))
            vm_issued_since += 1
    return out, vmq, lgq


def check_hazards(items, fix=True, name=''):
    out = []
    nfix = 0

    def dist_back(pred, maxd):
        d = 0
        for p in reversed(out):
            if p.kind == 'label' or p.kind == 'pseudo':
                continue
            if pred(p):
                return d
            d += p.nst
            if d >= maxd:
                return None
        return None

    for ins in items:
        if ins.kind in ('label', 'pseudo'):
            out.append(ins)
            continue
        need = 0
        k = ins.kind
        touch = ins.rd | ins.wr

        def req(pred, n):
            nonlocal need
            d = dist_back(pred, n)
            if d is not None and d < n:
                need = max(need, n - d)

        vr = {r for r in ins.rd if r[0] in 'va' and len(r[0]) == 1}
        vw = {r for r in ins.wr if r[0] in 'va' and len(r[0]) == 1}
        sr = {r for r in ins.rd if r[0] in ('s', 'vcc')}
        if k == 'mfma':
            ab = ins.rd
            req(lambda p: p.kind == 'mfma' and (p.wr & ab), 8)
            req(lambda p: p.kind == 'mfma' and (p.wr & ins.srcc) and p.wr != ins.srcc, 6)
            req(lambda p: p.kind == 'mfma' and (p.wr & ins.wr) and not (p.wr == ins.srcc) and not (p.wr == ins.wr), 6)
            req(lambda p: p.kind in ('valu', 'trans') and (p.wr & (ab | ins.srcc)), 2)
        else:
            if k in ('valu', 'trans', 'ds', 'vmem', 'dma'):
                req(lambda p: p.kind == 'mfma' and (p.wr & (vr | vw)), 8)
            if k in ('valu', 'trans'):
                req(lambda p: p.kind == 'mfma' and (p.srcc & vw), 3)
                if k == 'valu':
                    req(lambda p: p.kind == 'trans' and (p.wr & vr), 1)
                if ins.mn.startswith('v_permlane'):
                    req(lambda p: p.kind in ('valu', 'trans') and (p.wr & vr), 2)
                if ins.mn.startswith('v_readfirstlane') or ins.mn.startswith('v_readlane'):
                    req(lambda p: p.kind in ('valu', 'trans') and (p.wr & vr), 1)
                if sr:
                    req(lambda p: p.kind in ('valu', 'trans') and (p.wr & sr), 2)
                req(lambda p: p.kind == 'vmem' and p.mn.startswith('buffer_store') and ('x4' in p.mn or 'x3' in p.mn) and (p.rd & vw), 2)
                if 'dpp' in ins.txt or 'row_' in ins.txt:
                    req(lambda p: p.kind in ('valu', 'trans') and (p.wr & vr), 2)
            if k in ('vmem', 'dma'):
                if sr:
                    req(lambda p: p.kind in ('valu', 'trans') and (p.wr & sr), 5)
                req(lambda p: p.kind == 'trans' and (p.wr & vr), 1)
            if k == 'ds':
                req(lambda p: p.kind == 'trans' and (p.wr & vr), 1)
            if k == 'dma':
                req(lambda p: p.kind == 'salu' and ('m0', 0) in p.wr, 1)
            if k == 'salu' and sr:
                req(lambda p: p.kind in ('valu', 'trans') and (p.wr & sr), 4)
        if need:
            nfix += 1
            if fix:
                n = need
                while n > 0:
                    c = min(n, 16)
                    out.append(I(f's_nop {c - 1}', meta='hazfix'))
                    n -= c
            print(f'[hazard {name}] need {need} before: {ins.txt}')
        out.append(ins)
    return out, nfix


SCCW = re.compile(r's_(add|sub|cmp|and|or|xor|lshl|lshr|ashr|min|max|bfe|not|andn2|orn2|bitcmp|abs|addc|subb|addk)')


def check_scc(items, name=''):
    last = None
    ok = True
    for ins in items:
        if ins.kind in ('label', 'pseudo'):
            continue
        if ins.mn.startswith('s_cselect') or ins.mn.startswith('s_cbranch_scc'):
            if last is not None and not last.mn.startswith('s_cmp'):
                print(f'[SCC {name}] {ins.txt}  <- last writer {last.txt}')
                ok = False
        if ins.mn.startswith('s_addc') and (last is None or not last.mn.startswith('s_add_u32') or 'm0' in last.ops[0]):
            print(f'[SCC {name}] {ins.txt} <- {last.txt if last else None}')
            ok = False
        if ins.mn.startswith('s_addc') and last is not None and re.fullmatch(r's\d+', ins.ops[0]) and re.fullmatch(r's\d+', last.ops[0]) \
                and int(last.ops[0][1:]) != int(ins.ops[0][1:]) - 1:
            print(f'[SCC {name}] {ins.txt} <- {last.txt} (not its low half)')
            ok = False
        if ins.kind == 'salu' and SCCW.match(ins.mn):
            last = ins
    assert ok


def split_marks(items):
    segs = []
    cur = ('', -1, [])
    for ins in items:
        if ins.kind == 'pseudo' and ins.meta[0] == 'mark':
            segs.append(cur)
            cur = (ins.meta[1], ins.meta[2], [])
        else:
            cur[2].append(ins)
    segs.append(cur)
    return segs


def text(items):
    return [i.txt for i in items if i.kind != 'pseudo']


def fold_loops(items, loops):
    segs = split_marks(items)
    out = []
    done = set()
    for (name, idx, its) in segs:
        if name in loops and loops[name][0] <= idx <= loops[name][1]:
            first, last, label, cnt = loops[name]
            grp = [s for s in segs if s[0] == name and first <= s[1] <= last]
            t0 = text(grp[0][2])
            if idx == first:
                for g in grp[1:]:
                    t = text(g[2])
                    if t != t0:
                        for a, b in zip(t0, t):
                            if a != b:
                                print(f'loop {name}: iter {grp[0][1]} vs {g[1]} differ:\n   {a}\n   {b}')
                                break
                        if len(t) != len(t0):
                            print(f'loop {name}: length differs {len(t0)} vs {len(t)} (iter {g[1]})')
                        raise SystemExit('loop folding failed')
                n = len(grp)
                out.append(f's_mov_b32 {cnt}, {n}')
                out.append(f'{label}:')
                out += t0
                out.append(f's_cbranch_scc1 {label}')
        else:
            out += text(its)
    return out


def scc_atoms(items):
    out = []
    i = 0
    while i < len(items):
        x = items[i]
        j = i
        if x.kind == 'salu' and SCCW.match(x.mn):
            k = i + 1
            while k < len(items):
                y = items[k]
                if ('scc', 0) in y.rd:
                    j = k
                if y.kind == 'salu' and SCCW.match(y.mn):
                    break
                k += 1
        out.append(items[i:j + 1])
        i = j + 1
    return out
```

```python
import re
from asmlib import *

MF = 'v_mfma_f32_16x16x32_bf16'


def R(cls, base, n=1):
    return f'{cls}{base}' if n == 1 else f'{cls}[{base}:{base + n - 1}]'


WSLOT = 16384
NSTG = 64

SRD_O, SRD_W, SRD_C = 's[8:11]', 's[12:15]', 's[16:19]'
sW = 's3'
sWOFF, sOOFF, sCNT, sTMP, sW4096 = ['s%d' % i for i in range(28, 33)]
vLANE = 1
vWD = 2
vOD = 6
vA = 8
vST = 32
vT = 33
vFA = 40
NF = 8
vACC = 72


SRD_D = 's[60:63]'
sHAS, sNEED, sSPIN, sFAST = 's33', 's34', 's35', 's36'
vPOFF, vPOLL, vPT = 24, 25, 39
gV, nV, rV, cV = 'v34', 'v35', 'v36', 'v37'


def f_map(OPT):
    L = ['s_bfe_u32 s22, s4, 0x10001', 's_mul_i32 s22, s22, 30']
    if int(OPT['fmap']) == 0:
        L += ['s_add_u32 s22, s22, s5', 's_lshr_b32 s20, s22, 2', 's_and_b32 s21, s22, 3', 's_and_b32 s22, s4, 1', 's_lshl_b32 s22, s22, 2',
              's_add_u32 s21, s21, s22', 's_cmp_lt_u32 s5, 30', f's_cselect_b32 {sHAS}, 1, 0']
    else:
        n_odd = 28
        L += ['s_and_b32 s23, s4, 1',
              's_cmp_ge_u32 s5, 30', 's_cselect_b32 s21, 1, 0',
              's_or_b32 s23, s23, s21',
              's_lshl_b32 s21, s21, 1', 's_sub_u32 s21, s5, s21',
              's_add_u32 s22, s22, s21', 's_lshr_b32 s20, s22, 2', 's_and_b32 s21, s22, 3', 's_lshl_b32 s23, s23, 2', 's_add_u32 s21, s21, s23',
              's_and_b32 s23, s4, 1', f's_mul_i32 s23, s23, {32 - n_odd}', 's_sub_u32 s23, 32, s23',
              's_cmp_lt_u32 s5, s23', f's_cselect_b32 {sHAS}, 1, 0']
    return L


def f_pre(OPT):
    L = f_map(OPT)
    L += ['s_lshl_b32 s22, s21, 8', 's_add_u32 s12, s56, s22', 's_addc_u32 s13, s57, 0', 's_sub_u32 s14, 8388608, s22',
          f's_cmp_lg_u32 {sHAS}, 0', 's_cselect_b32 s14, s14, 0', 's_mov_b32 s15, 0x20000',
          f's_lshl_b32 {sW4096}, {sW}, 12', f's_mov_b32 {sWOFF}, 0',
          's_mul_i32 s22, s6, 120', 's_lshl_b32 s23, s20, 3', 's_add_u32 s22, s22, s23', 's_lshl_b32 s22, s22, 17',
          's_add_u32 s8, s64, s22', 's_addc_u32 s9, s65, 0', 's_mov_b32 s10, 0x100000', 's_mov_b32 s11, 0x20000',
          f's_lshl_b32 s22, {sW}, 1', 's_add_u32 s22, s22, s23', 's_add_u32 s23, s22, 1',
          's_mul_i32 s22, s22, 4370', 's_mul_i32 s23, s23, 4370', 's_lshr_b32 s22, s22, 16', 's_lshr_b32 s23, s23, 16',
          f's_lshl_b32 {sTMP}, s6, 3', f's_add_u32 s22, s22, {sTMP}', f's_add_u32 s23, s23, {sTMP}',
          's_lshl_b32 s22, s22, 2', 's_lshl_b32 s23, s23, 2',
          f's_mov_b32 {sNEED}, {int(str(OPT["fneed0"]), 0):#x}']
    V = [f'v_lshrrev_b32 {gV}, 4, v{vLANE}', f'v_and_b32 {nV}, 15, v{vLANE}',
         f'v_lshlrev_b32 v38, 1, {gV}', f'v_xor_b32 v38, {nV}, v38', 'v_xor_b32 v39, 8, v38',
         f's_lshl_b32 {sTMP}, {sW}, 15', f'v_lshlrev_b32 v33, 11, {gV}', f'v_add_u32 v33, {sTMP}, v33']
    for x in range(4):
        V.append(f'v_lshl_add_u32 v{vWD + x}, v{38 if x % 2 == 0 else 39}, 4, v33')
        if x:
            V.append(f'v_add_u32 v{vWD + x}, {8192 * x}, v{vWD + x}')
    V += [f'v_and_b32 v33, 1, v{vLANE}', f'v_mov_b32 v{vPOFF}, s22', f'v_mov_b32 v38, s23', 'v_cmp_eq_u32 vcc, 1, v33',
          f's_lshl_b32 {sTMP}, {sW}, 18', f'v_lshlrev_b32 v{vOD}, 4, v{vLANE}', f'v_cndmask_b32 v{vPOFF}, v{vPOFF}, v38, vcc',
          f'v_add_u32 v{vOD}, {sTMP}, v{vOD}', f'v_add_u32 v{vOD + 1}, 131072, v{vOD}']
    return [I(x) for x in L + V]


def f_w(OPT, s):
    return [(I(f's_add_u32 m0, {sW4096}, {s * WSLOT + x * 1024}'),
             I(f'buffer_load_dwordx4 v{vWD + x}, {SRD_W}, {sWOFF} offen {OPT["k2wflags"]} lds', tag=('W2', s))) for x in range(4)]


def f_wadv():
    return I(f's_add_u32 {sWOFF}, {sWOFF}, 131072')


def f_poll():
    return I(f'buffer_load_dword v{vPOLL}, v{vPOFF}, {SRD_D}, 0 offen sc1', tag=('P', 0))


def f_check():
    return [I(f'v_and_b32 v{vPT}, {sNEED}, v{vPOLL}'), I(f'v_cmp_ne_u32 vcc, {sNEED}, v{vPT}')]


def f_stamp(A, k):
    A('s_memtime s[96:97]'); A('s_memrealtime s[98:99]'); A('s_waitcnt lgkmcnt(0)')
    A(f's_mov_b32 s{72 + 2 * k}, s96'); A(f's_mov_b32 s{73 + 2 * k}, s98')


def f_store_stamps(A, both):
    A('s_add_u32 s48, s64, 0x8000000'); A('s_addc_u32 s49, s65, 0'); A('s_mov_b32 s50, 0x200000'); A('s_mov_b32 s51, 0x20000')
    A(f's_lshl_b32 s52, s2, 2'); A(f's_add_u32 s52, s52, {sW}'); A('s_lshl_b32 s52, s52, 6')
    A('v_mov_b32 v28, 0')
    for k in range(6):
        A(f'v_mov_b32 v27, s{72 + 2 * k}')
        A(f'buffer_store_dword v27, v28, s[48:51], s52 offen offset:{4 * k}')
        A(f'v_mov_b32 v27, s{73 + 2 * k}')
        A(f'buffer_store_dword v27, v28, s[48:51], s52 offen offset:{4 * k + 32}')
    A(f'v_mov_b32 v27, {sFAST}')
    A(f'buffer_store_dword v27, v28, s[48:51], s52 offen offset:24')
    if both:
        A('s_add_u32 s52, s52, 0x100000')
        for k in range(4):
            A(f'v_mov_b32 v27, s{72 + 2 * (k + 6)}')
            A(f'buffer_store_dword v27, v28, s[48:51], s52 offen offset:{4 * k}')
            A(f'v_mov_b32 v27, s{73 + 2 * (k + 6)}')
            A(f'buffer_store_dword v27, v28, s[48:51], s52 offen offset:{4 * k + 32}')
    A('s_waitcnt vmcnt(0)')


def kernel2(OPT, fused=False):
    RING = int(OPT['k2ring'])
    PD = int(OPT['k2pd'])
    S = Stream()
    A = S.a
    def stamp(k):
        if fused:
            if OPT['stamps']:
                f_stamp(A, 6 + k)
            return
        if OPT['stamps'] or OPT['dbgst']:
            A(f's_memtime s[{72 + 4 * k}:{72 + 4 * k + 1}]')
            A(f's_memrealtime s[{72 + 4 * k + 2}:{72 + 4 * k + 3}]')
            A('s_waitcnt lgkmcnt(0)')
    g, n, r_, c_ = gV, nV, rV, cV
    if not fused:
        A('s_cmp_ge_u32 s2, 240')
        A('s_cbranch_scc1 L_end2')
        A('s_load_dwordx2 s[44:45], s[0:1], 32')
        A('s_load_dwordx2 s[46:47], s[0:1], 72')
        A('s_load_dwordx2 s[48:49], s[0:1], 80')
        A('s_load_dwordx2 s[50:51], s[0:1], 96')
        if int(OPT['cpf2']):
            A('s_getpc_b64 s[98:99]')
            A('L_pc2:')
            A('s_sub_u32 s98, s98, L_pc2-outproj_kernel')
            A('s_subb_u32 s99, s99, 0')
            A('v_lshlrev_b32 v67, 7, v0')
            A('v_min_u32 v67, L_end2-outproj_kernel, v67')
            A('v_mov_b32 v69, s99')
            A('v_add_co_u32 v68, vcc, s98, v67')
            A('v_addc_co_u32 v69, vcc, 0, v69, vcc')
            pf = I('global_load_dword v70, v[68:69], off')
            pf.wr = set()
            A(pf)
        A('s_and_b32 s4, s2, 7')
        A('s_lshr_b32 s5, s2, 3')
        A('s_lshr_b32 s6, s4, 2')
        KM = int(OPT['k2map'])
        if KM == 0:
            A('s_bfe_u32 s7, s4, 0x10001')
            A('s_mul_i32 s7, s7, 30')
            A('s_add_u32 s7, s7, s5')
            A('s_lshr_b32 s20, s7, 2')
            A('s_and_b32 s21, s7, 3')
            A('s_and_b32 s22, s4, 1')
            A('s_lshl_b32 s22, s22, 2')
            A('s_add_u32 s21, s21, s22')
        elif KM == 1:
            A('s_and_b32 s7, s4, 3')
            A('s_mul_i32 s7, s7, 30')
            A('s_add_u32 s7, s7, s5')
            A('s_lshr_b32 s20, s7, 3')
            A('s_and_b32 s21, s7, 7')
        elif KM == 2:
            A('s_lshr_b32 s20, s5, 1')
            A('s_and_b32 s21, s5, 1')
            A('s_and_b32 s22, s4, 3')
            A('s_lshl_b32 s22, s22, 1')
            A('s_add_u32 s21, s21, s22')
        elif KM == 3:
            A('s_bfe_u32 s7, s4, 0x10001')
            A('s_mul_i32 s7, s7, 30')
            A('s_add_u32 s7, s7, s5')
            A('s_lshr_b32 s20, s7, 2')
            A('s_and_b32 s21, s7, 3')
            A('s_lshl_b32 s21, s21, 1')
            A('s_and_b32 s22, s4, 1')
            A('s_add_u32 s21, s21, s22')
        A(f'v_and_b32 v{vLANE}, 63, v0')
        A('v_lshrrev_b32 v33, 6, v0')
        A('s_nop 0')
        A(f'v_readfirstlane_b32 {sW}, v33')
        g, n, r_, c_ = 'v34', 'v35', 'v36', 'v37'
        A(f'v_lshrrev_b32 {g}, 4, v{vLANE}')
        A(f'v_and_b32 {n}, 15, v{vLANE}')
        A(f'v_lshrrev_b32 {r_}, 2, {n}')
        A(f'v_and_b32 {c_}, 3, {n}')
        A(f'v_lshlrev_b32 v38, 1, {g}')
        A(f'v_xor_b32 v38, {n}, v38')
        A('v_xor_b32 v39, 8, v38')
        A(f's_lshl_b32 s28, {sW}, 15')
        A(f'v_lshlrev_b32 v33, 11, {g}')
        A('v_add_u32 v33, s28, v33')
        for x in range(4):
            A(f'v_lshl_add_u32 v{vWD + x}, v{38 if x % 2 == 0 else 39}, 4, v33')
            if x:
                A(f'v_add_u32 v{vWD + x}, {8192 * x}, v{vWD + x}')
        if OPT['k2_wlin']:
            for x in range(4):
                A(f'v_lshlrev_b32 v{vWD + x}, 4, v{vLANE}')
                A(f's_lshl_b32 s28, {sW}, 12')
                A(f's_add_u32 s28, s28, {1024 * x}')
                A(f'v_add_u32 v{vWD + x}, s28, v{vWD + x}')
        A(f's_lshl_b32 s28, {sW}, 18')
        A(f'v_lshlrev_b32 v{vOD}, 4, v{vLANE}')
        A(f'v_add_u32 v{vOD}, s28, v{vOD}')
        A(f'v_add_u32 v{vOD + 1}, 131072, v{vOD}')
        A(f's_lshl_b32 {sW4096}, {sW}, 12')
        A('s_waitcnt lgkmcnt(0)')
        stamp(0)
        A('s_cmp_eq_u32 s6, 0')
        A('s_cselect_b64 s[44:45], s[44:45], s[46:47]')
        if OPT['k2same']:
            A('s_mov_b32 s20, 0'); A('s_mov_b32 s21, 0')
        A('s_mul_i32 s22, s6, 120'); A('s_lshl_b32 s23, s20, 3'); A('s_add_u32 s22, s22, s23'); A('s_lshl_b32 s22, s22, 17')
        A('s_add_u32 s8, s50, s22'); A('s_addc_u32 s9, s51, 0'); A('s_mov_b32 s10, 0x100000'); A('s_mov_b32 s11, 0x20000')
        A('s_lshl_b32 s22, s21, 8')
        if OPT['k2_wlin']:
            A('s_lshl_b32 s22, s21, 20')
        A('s_add_u32 s12, s44, s22'); A('s_addc_u32 s13, s45, 0'); A('s_sub_u32 s14, 8388608, s22'); A('s_mov_b32 s15, 0x20000')
        if OPT['k2_wlin']:
            A('s_lshl_b32 s22, s21, 8')
        A('s_lshl_b32 s23, s20, 19'); A('s_lshl_b32 s24, s6, 11'); A('s_add_u32 s23, s23, s24'); A('s_add_u32 s23, s23, s22')
        A('s_add_u32 s16, s48, s23'); A('s_addc_u32 s17, s49, 0'); A(f's_sub_u32 s18, {1920 * 4096}, s23'); A('s_mov_b32 s19, 0x20000')

    def oreg(s, ks, mi):
        return 16 * (s % RING) + 8 * ks + 4 * mi

    def group(s):
        out = []
        for x in range(4):
            out.append((I(f's_add_u32 m0, {sW4096}, {(s % RING) * WSLOT + x * 1024}'),
                        I(f'buffer_load_dwordx4 v{vWD + x}, {SRD_W}, {sWOFF} offen {OPT["k2wflags"]} lds', tag=('D', s))))
        for ks in range(2):
            for mi in range(2):
                out.append((None,
                            I(f'buffer_load_dwordx4 {R("a", oreg(s, ks, mi), 4)}, v{vOD + mi}, {SRD_O}, {sOOFF} offen offset:{ks * 1024} {OPT["k2oflags"]}', tag=('D', s))))
        return [out[0], out[4], out[1], out[5], out[2], out[6], out[3], out[7]]

    def adv():
        return [I(f's_add_u32 {sWOFF}, {sWOFF}, {131072 if not OPT["k2_wlin"] else 16384}'), I(f's_add_u32 {sOOFF}, {sOOFF}, 2048')]

    def o_prologue():
        A(f's_mov_b32 {sOOFF}, 0')
        for s in range(RING - 1):
            for ks in range(2):
                for mi in range(2):
                    A(I(f'buffer_load_dwordx4 {R("a", oreg(s, ks, mi), 4)}, v{vOD + mi}, {SRD_O}, {sOOFF} offen offset:{ks * 1024} {OPT["k2oflags"]}', tag=('D', s)))
            A(f's_add_u32 {sOOFF}, {sOOFF}, 2048')

    if fused:
        assert RING == 8 and 'sc1' in OPT['k2oflags'] and 'sc1' in OPT['oflags']
        A('L_fuse:')
        A('s_nop 3')
        A('s_cmp_eq_u64 vcc, 0')
        A(f's_cselect_b32 {sFAST}, {sHAS}, 0')
        A(f's_cmp_eq_u32 {sFAST}, 0')
        A('s_cbranch_scc1 L_f1')
        o_prologue()
        A('L_f1:')
        for s in range(int(OPT['fw0']), RING - 1):
            for m, d in f_w(OPT, s):
                A(m); A('s_nop 0'); A(d)
            A(f_wadv())
        A(f'v_lshrrev_b32 {r_}, 2, {n}')
        A(f'v_and_b32 {c_}, 3, {n}')
        A('s_lshl_b32 s22, s21, 8'); A('s_lshl_b32 s23, s20, 19'); A(f's_lshl_b32 {sTMP}, s6, 11'); A(f's_add_u32 s23, s23, {sTMP}'); A('s_add_u32 s23, s23, s22')
        A('s_add_u32 s16, s58, s23'); A('s_addc_u32 s17, s59, 0'); A(f's_sub_u32 s18, {1920 * 4096}, s23'); A('s_mov_b32 s19, 0x20000')
        A('s_lshl_b32 s48, 1, s68'); A('s_lshl_b32 s49, s6, 3'); A('s_add_u32 s49, s49, s7'); A('s_lshl_b32 s49, s49, 2')
        A('v_mov_b32 v29, s48'); A('v_mov_b32 v30, s49')
    else:
        A(f's_mov_b32 {sWOFF}, 0')
        A(f's_mov_b32 {sOOFF}, 0')
        for s in range(RING - 1):
            for m, d in group(s):
                if m is not None:
                    A(m); A('s_nop 0')
                A(d)
            S.ext(adv())
    A(f'v_lshl_add_u32 v38, {g}, 2, {r_}')
    A('v_and_b32 v39, 7, v38')
    A('v_lshlrev_b32 v38, 8, v38')
    A(f'v_lshl_add_u32 v38, {c_}, 3, v38')
    A('v_lshl_add_u32 v38, v39, 5, v38')
    NG = (RING + 3) // 4
    for nb in range(8):
        A(f'v_xor_b32 v{vA + nb}, {32 * nb}, v38')
    for gg in range(1, NG):
        for nb in range(8):
            A(f'v_add_u32 v{vA + 8 * gg + nb}, {65536 * gg}, v{vA + nb}')
    A(f's_lshl_b32 s22, {sW}, 17')
    A(f'v_lshlrev_b32 v{vST}, 12, {n}')
    A(f'v_and_b32 v38, 1, {g}')
    A(f'v_lshl_add_u32 v{vST}, v38, 5, v{vST}')
    A(f'v_lshrrev_b32 v38, 1, {g}')
    A(f'v_lshl_add_u32 v{vST}, v38, 4, v{vST}')
    A(f'v_add_u32 v{vST}, s22, v{vST}')
    for r in range(64):
        A(f'v_mov_b32 v{vACC + r}, 0')

    DEP = int(OPT['k2dep'])

    def fsplit(f):
        if DEP == 1:
            return divmod(f, 8)
        nb, ks = divmod(f, 2)
        return ks, nb

    def a_read(F, e):
        s, f = divmod(F, 16)
        ks, nb = fsplit(f)
        slot = s % RING
        off = (slot % 4) * WSLOT + (2 * ks + e) * 4096
        d = vFA + 4 * (F % NF) + 2 * e
        return I(f'ds_read_b64_tr_b16 {R("v", d, 2)}, v{vA + 8 * (slot // 4) + nb} offset:{off}', tag=('r', F))

    if fused:
        A(f's_cmp_eq_u32 s42, {0 if OPT["nofb"] else 1}')
        A('s_cbranch_scc1 L_fok')
        A('s_cmp_eq_u64 s[46:47], 0')
        A('s_cbranch_scc1 L_fok')
        A('v_mov_b32 v27, 1')
        A('v_mov_b32 v28, 163832')
        A('ds_write_b32 v28, v27')
        A('L_fok:')
        if OPT['stamps'] and int(OPT['stf']):
            f_stamp(A, 3)
        A('v_mov_b32 v28, 163832')
        A('s_waitcnt vmcnt(0) lgkmcnt(0)')
        A('s_barrier')
        A('ds_read_b32 v27, v28')
        A('s_waitcnt lgkmcnt(0)')
        A('v_readfirstlane_b32 s48, v27')
        A('s_nop 3')
        A('s_cmp_eq_u32 s48, 0')
        A('s_cbranch_scc1 L_fdone')
        A('s_mov_b32 s42, 1')
        A('s_waitcnt vmcnt(0) lgkmcnt(0)')
        A('s_barrier')
        A('s_branch L_restart')
        A('L_fdone:')
        A(f's_cmp_lg_u32 {sW}, 0')
        A('s_cbranch_scc1 L_fnosig')
        A('s_mov_b64 exec, 1')
        at = I(f'buffer_atomic_add v29, v30, {SRD_D}, 0 offen')
        at.kind = 'salu'
        A(at)
        A('s_mov_b64 exec, -1')
        A('L_fnosig:')
        if OPT['stamps']:
            f_stamp(A, 5)
        A(f's_cmp_lg_u32 {sFAST}, 0')
        A('s_cbranch_scc1 L_fjoin')
        A(f's_cmp_lg_u32 {sHAS}, 0')
        A('s_cbranch_scc1 L_fspin0')
        if OPT['stamps']:
            f_store_stamps(A, False)
        A('s_endpgm')
        A('L_fspin0:')
        A(f's_mov_b32 {sSPIN}, 0x4000')
        A('L_fspin:')
        A(f_poll())
        A('s_waitcnt vmcnt(0)')
        S.ext(f_check())
        A('s_nop 3')
        A('s_cbranch_vccz L_fspun')
        A(f's_sub_u32 {sSPIN}, {sSPIN}, 1')
        A(f's_cmp_lg_u32 {sSPIN}, 0')
        A('s_cbranch_scc1 L_fspin')
        A('L_fspun:')
        o_prologue()
        A('L_fjoin:')
        A(f's_mov_b32 {sNEED}, 0xc')
        stamp(0)
        S.vmwait(lambda t: t == ('D', 0))
    else:
        S.vmwait(lambda t: t == ('D', 0))
        A('s_barrier')
    stamp(1)
    for F in range(PD):
        A(a_read(F, 0)); A(a_read(F, 1))

    NGAP = NSTG * 32
    pre = [[] for _ in range(NGAP)]
    mem = [[] for _ in range(NGAP)]
    post = [[] for _ in range(NGAP)]
    P0 = 32 - 2 * PD
    for F in range(NSTG * 16 - PD):
        mem[2 * F].append(a_read(F + PD, 0))
        mem[2 * F + 1].append(a_read(F + PD, 1))
    for s in range(NSTG - 1):
        gi = 32 * s + P0 - 1
        post[gi] += [P_vmwait(lambda t, s=s: t == ('D', s + 1)), I('s_barrier')]
        G = s + RING - 1
        if G < NSTG:
            ops = group(G)
            for k, (m, d) in enumerate(ops):
                gg = 32 * s + P0 + 1 + 4 * k
                if m is not None:
                    pre[gg - 1].append(m)
                mem[gg].append(d)
            last = 32 * s + P0 + 1 + 4 * 7
            a2 = adv()
            pre[last + 1].append(a2[0])
            pre[last + 2].append(a2[1])
    if fused:
        for s in range(NSTG - RING):
            if s % RING == 1:
                ck = f_check()
                post[32 * s + P0].append(ck[0])
                post[32 * s + P0 + 1].append(ck[1])
                post[32 * s + P0 + 3] += [I('s_cbranch_vccnz L_k2slow'), I('L_k2back:')]
                post[32 * s + P0 + 4].append(I(f's_lshl_b32 {sNEED}, {sNEED}, 2'))
            if s % RING == 3:
                post[32 * s + P0 + 2].append(f_poll())
    for s in range(NSTG):
        if s % RING == 0:
            S.mark('body', s // RING)
        for j in range(32):
            F = 16 * s + j // 2
            mi = j % 2
            if DEP == 2:
                q = j % 4
                F = 16 * s + 2 * (j // 4) + (0, 1, 1, 0)[q]
                mi = q // 2
            ks, nb = fsplit(F % 16)
            d = R('v', vACC + 8 * nb + 4 * mi, 4)
            m = I(f'{MF} {d}, {R("v", vFA + 4 * (F % NF), 4)}, {R("a", oreg(s, ks, mi), 4)}, {d}')
            if j % 4 == 0:
                m.need = set(('v', vFA + 4 * ((F + q) % NF) + r) for q in range(2) for r in range(4))
            if not OPT['k2_nomf']:
                A(m)
            gi = 32 * s + j
            gl = pre[gi] + mem[gi] + post[gi]
            if j == 31 and s % RING == RING - 1:
                gl = gl + [I(f's_sub_u32 {sCNT}, {sCNT}, 1'), I(f's_cmp_lg_u32 {sCNT}, 0')]
            if OPT['k2_nodma']:
                gl = [x for x in gl if x.kind not in ('dma', 'vmem')]
            if OPT['k2_now']:
                gl = [x for x in gl if x.kind != 'dma']
            if OPT['k2_noo']:
                gl = [x for x in gl if x.kind != 'vmem']
            if OPT['k2_nolds']:
                gl = [x for x in gl if x.kind != 'ds']
            if OPT['k2_nobar']:
                gl = [x for x in gl if x.kind != 'bar']
            S.ext(gl)
    S.mark('end', 0)
    stamp(2)
    A('s_nop 7')
    k = 0
    for mi in range(2):
        A(f's_mov_b32 {sTMP}, {mi * 65536}')
        for p in range(4):
            st = vFA + 4 * (k % 4); k += 1
            for q in range(2):
                d = vACC + 8 * (2 * p + q) + 4 * mi
                A(f'v_cvt_pk_bf16_f32 v{st + 2 * q}, v{d}, v{d + 1}')
                A(f'v_cvt_pk_bf16_f32 v{st + 2 * q + 1}, v{d + 2}, v{d + 3}')
            A('s_nop 1')
            A(f'v_permlane16_swap_b32 v{st}, v{st + 2}')
            A(f'v_permlane16_swap_b32 v{st + 1}, v{st + 3}')
            A(f'buffer_store_dwordx4 {R("v", st, 4)}, v{vST}, {SRD_C}, {sTMP} offen offset:{64 * p} {OPT["k2cflags"]}')
    if OPT['stamps'] and fused:
        A('s_waitcnt vmcnt(0)')
        stamp(3)
        f_store_stamps(A, True)
    if OPT['stamps'] and not fused:
        A('s_waitcnt vmcnt(0)')
        stamp(3)
        A('s_add_u32 s48, s50, 0x8100000'); A('s_addc_u32 s49, s51, 0'); A('s_mov_b32 s50, 0x100000'); A('s_mov_b32 s51, 0x20000')
        A(f's_lshl_b32 s52, s2, 2'); A(f's_add_u32 s52, s52, {sW}'); A('s_lshl_b32 s52, s52, 6')
        A('v_mov_b32 v28, 0')
        for k in range(4):
            A(f'v_mov_b32 v27, s{72 + 4 * k}')
            A(f'buffer_store_dword v27, v28, s[48:51], s52 offen offset:{4 * k}')
            A(f'v_mov_b32 v27, s{72 + 4 * k + 2}')
            A(f'buffer_store_dword v27, v28, s[48:51], s52 offen offset:{4 * k + 32}')
        A('s_waitcnt vmcnt(0)')
    if OPT['dbgst']:
        A('s_waitcnt vmcnt(0)')
        stamp(3)
        A('s_lshl_b32 s52, s2, 2'); A(f's_or_b32 s52, s52, {sW}')
        A('s_cmp_lg_u32 s52, 0')
        A('s_cbranch_scc1 L_end2')
        A('s_load_dwordx2 s[48:49], s[0:1], 88')
        A('s_waitcnt lgkmcnt(0)')
        A('s_sub_u32 s48, s48, 512'); A('s_subb_u32 s49, s49, 0')
        A('s_mov_b32 s50, 256'); A('s_mov_b32 s51, 0x20000')
        A('v_mov_b32 v28, 0')
        for k in range(4):
            A(f'v_mov_b32 v27, s{72 + 4 * k + 2}')
            A(f'buffer_store_dword v27, v28, s[48:51], 0 offen offset:{32 + 4 * k}')
        A('s_waitcnt vmcnt(0)')
    A('L_end2:')
    A('s_endpgm')
    items, vmq, lgq = resolve(S.it)
    items, nfix = check_hazards(items, True, 'k2')
    check_scc(items, 'k2')
    segs = split_marks(items)
    out = []
    grp = [s for s in segs if s[0] == 'body']
    texts = [text(g[2]) for g in grp]
    best = (0, 0)
    a = 0
    while a < len(texts):
        b = a
        while b + 1 < len(texts) and texts[b + 1] == texts[a]:
            b += 1
        if b - a > best[1] - best[0]:
            best = (a, b)
        a = b + 1
    print('k2 loop: bodies', best, 'of', len(texts))
    slow = []
    def relabel(T, sfx):
        if any(ln == 'L_k2back:' for ln in T):
            slow.append(sfx)
        return [ln.replace('L_k2slow', 'L_k2slow' + sfx).replace('L_k2back', 'L_k2back' + sfx) for ln in T]
    for (name, idx, its) in segs:
        if name == 'body' and best[0] <= idx <= best[1] and best[1] > best[0]:
            if idx == best[0]:
                out += [f's_mov_b32 {sCNT}, {best[1] - best[0] + 1}', 'L_k2:'] + relabel(text(its), '_l') + ['s_cbranch_scc1 L_k2']
        elif name in ('body', 'end'):
            out += relabel(text(its), f'_{name}{idx}')
        else:
            out += text(its)
    if fused:
        out.append('s_endpgm')
        assert out[-3:-1] == ['L_end2:', 's_endpgm'] or True
        for sfx in slow:
            out += [f'L_k2slow{sfx}:', f's_mov_b32 {sSPIN}, 0x4000', f'L_k2spin{sfx}:', f_poll().txt, 's_waitcnt vmcnt(0)'] + [x.txt for x in f_check()] + \
                   ['s_nop 3', f's_cbranch_vccz L_k2back{sfx}', f's_sub_u32 {sSPIN}, {sSPIN}, 1', f's_cmp_lg_u32 {sSPIN}, 0', f's_cbranch_scc1 L_k2spin{sfx}',
                    f's_branch L_k2back{sfx}']
    return out
```

```python
import re
from asmlib import *

MF = 'v_mfma_f32_16x16x32_bf16'


def R(cls, base, n=1):
    return f'{cls}{base}' if n == 1 else f'{cls}[{base}:{base + n - 1}]'


SLOT = 17408
NSTG = 64
RING = 8
FLAG_ADDR = 163832

SRD_O, SRD_W, SRD_C, SRD_D = 's[8:11]', 's[12:15]', 's[16:19]', 's[60:63]'
sW = 's3'
sWOFF, sOOFF, sCNT, sTMP, sW4096, sHAS, sNEED, sSPIN, sINC0 = ['s%d' % i for i in range(28, 37)]
sFL0 = 's66'
sFB, sBAD = 's42', 's[46:47]'
vLANE = 1
vWD = 2
vOD = 6
vPOFF, vPOLL, vST, vPT = 8, 9, 10, 11
vA = 32
gV, nV, rV, cV = 'v48', 'v49', 'v50', 'v51'
T0, T1, T2 = 'v52', 'v53', 'v54'
vSG, vSA = 29, 30
vFA = 136
NF = 8
vACC = 72
CSTRIDE = 16
WINC = 4 * 131072
WJMP = (-59 * 131072) & 0xffffffff


def cond_i(txt):
    x = I(txt)
    x.kind = 'salu'
    return x


def tile_map(OPT):
    L = ['s_bfe_u32 s22, s4, 0x10001', 's_mul_i32 s22, s22, 30']
    if int(OPT['fmap']) == 0:
        L += ['s_add_u32 s22, s22, s5', 's_lshr_b32 s20, s22, 2', 's_and_b32 s21, s22, 3', 's_and_b32 s22, s4, 1', 's_lshl_b32 s22, s22, 2',
              's_add_u32 s21, s21, s22', 's_cmp_lt_u32 s5, 30', f's_cselect_b32 {sHAS}, 1, 0']
    else:
        L += ['s_and_b32 s23, s4, 1', 's_cmp_ge_u32 s5, 30', 's_cselect_b32 s21, 1, 0', 's_or_b32 s23, s23, s21',
              's_lshl_b32 s21, s21, 1', 's_sub_u32 s21, s5, s21',
              's_add_u32 s22, s22, s21', 's_lshr_b32 s20, s22, 2', 's_and_b32 s21, s22, 3', 's_lshl_b32 s23, s23, 2', 's_add_u32 s21, s21, s23',
              's_and_b32 s23, s4, 1', 's_mul_i32 s23, s23, 4', 's_sub_u32 s23, 32, s23',
              's_cmp_lt_u32 s5, s23', f's_cselect_b32 {sHAS}, 1, 0']
    return L


def setup_a(OPT):
    L = tile_map(OPT)
    L += ['s_lshl_b32 s22, s21, 8', 's_add_u32 s12, s56, s22', 's_addc_u32 s13, s57, 0', 's_sub_u32 s14, 8388608, s22',
          f's_cmp_lg_u32 {sHAS}, 0', 's_cselect_b32 s14, s14, 0', 's_cselect_b32 s10, 0x100000, 0', 's_mov_b32 s15, 0x20000',
          f's_cselect_b32 {sNEED}, 0xffff, 0', f's_cmp_eq_u32 {sFL0}, 0', f's_cselect_b32 {sNEED}, {sNEED}, 0',
          f's_cmp_eq_u32 {sW}, 0', f's_cselect_b32 {sNEED}, {sNEED}, 0',
          f's_lshl_b32 {sW4096}, {sW}, 12', f's_mov_b32 {sWOFF}, 0', f's_mov_b32 {sOOFF}, 0',
          's_mul_i32 s22, s6, 120', 's_lshl_b32 s23, s20, 3', 's_add_u32 s22, s22, s23', 's_lshl_b32 s22, s22, 17',
          's_add_u32 s8, s64, s22', 's_addc_u32 s9, s65, 0', 's_mov_b32 s11, 0x20000',
          's_add_u32 s22, s23, 7',
          's_mul_i32 s23, s23, 4370', 's_mul_i32 s22, s22, 4370', 's_lshr_b32 s22, s22, 16', 's_lshr_b32 s23, s23, 16',
          f's_lshl_b32 {sTMP}, s6, 3', f's_add_u32 s22, s22, {sTMP}', f's_add_u32 s23, s23, {sTMP}',
          f's_mul_i32 s22, s22, {CSTRIDE}', f's_mul_i32 s23, s23, {CSTRIDE}',
          f's_cmp_eq_u32 {sW}, 0', 's_cselect_b32 s22, s22, 0x40000000', 's_cselect_b32 s23, s23, 0x40000000']
    V = [f'v_lshrrev_b32 {gV}, 4, v{vLANE}', f'v_and_b32 {nV}, 15, v{vLANE}',
         f'v_lshlrev_b32 {T0}, 1, {gV}', f'v_xor_b32 {T0}, {nV}, {T0}', f'v_xor_b32 {T1}, 8, {T0}',
         f's_lshl_b32 {sTMP}, {sW}, 15', f'v_lshlrev_b32 {T2}, 11, {gV}', f'v_add_u32 {T2}, {sTMP}, {T2}']
    for x in range(4):
        V.append(f'v_lshl_add_u32 v{vWD + x}, {T0 if x % 2 == 0 else T1}, 4, {T2}')
        if x:
            V.append(f'v_add_u32 v{vWD + x}, {8192 * x}, v{vWD + x}')
    V += [f'v_and_b32 {T2}, 1, v{vLANE}', f'v_mov_b32 v{vPOFF}, s22', f'v_mov_b32 {T0}, s23', f'v_cmp_eq_u32 vcc, 1, {T2}',
          f's_lshl_b32 {sTMP}, {sW}, 18', f'v_lshlrev_b32 v{vOD}, 4, v{vLANE}', f'v_cndmask_b32 v{vPOFF}, v{vPOFF}, {T0}, vcc',
          f'v_add_u32 v{vOD}, {sTMP}, v{vOD}', f'v_add_u32 v{vOD + 1}, 131072, v{vOD}']
    return [I(x) for x in L], [I(x) for x in V]


def setup_b(OPT):
    L = ['s_lshl_b32 s22, s21, 8', 's_lshl_b32 s23, s20, 19', f's_lshl_b32 {sTMP}, s6, 11', f's_add_u32 s23, s23, {sTMP}', 's_add_u32 s23, s23, s22',
         's_add_u32 s16, s58, s23', 's_addc_u32 s17, s59, 0', f's_sub_u32 s18, {1920 * 4096}, s23', 's_mov_b32 s19, 0x20000',
         f's_mov_b32 {sINC0}, {WINC}']
    V = [f'v_lshrrev_b32 {rV}, 2, {nV}', f'v_and_b32 {cV}, 3, {nV}',
         f'v_lshl_add_u32 {T0}, {gV}, 2, {rV}', f'v_and_b32 {T1}, 7, {T0}', f'v_lshlrev_b32 {T0}, 8, {T0}',
         f'v_lshl_add_u32 {T0}, {cV}, 3, {T0}', f'v_lshl_add_u32 {T0}, {T1}, 5, {T0}']
    V += [f'v_xor_b32 v{vA + nb}, {32 * nb}, {T0}' for nb in range(8)]
    V += [f'v_add_u32 v{vA + 8 + nb}, {4 * SLOT}, v{vA + nb}' for nb in range(8)]
    V += [f's_lshl_b32 s22, {sW}, 17', f'v_lshlrev_b32 v{vST}, 12, {nV}', f'v_and_b32 {T0}, 1, {gV}', f'v_lshl_add_u32 v{vST}, {T0}, 5, v{vST}',
          f'v_lshrrev_b32 {T0}, 1, {gV}', f'v_lshl_add_u32 v{vST}, {T0}, 4, v{vST}', f'v_add_u32 v{vST}, s22, v{vST}']
    return [I(x) for x in L], [I(x) for x in V]


def sig_ops(head):
    bits = ['s_lshl_b32 s48, 1, s68'] if head == 0 else ['s_lshl_b32 s48, 0x10001, s68']
    return [I(x) for x in bits + ['s_lshl_b32 s49, s6, 3', 's_add_u32 s49, s49, s7', f's_mul_i32 s49, s49, {CSTRIDE}',
                                  f'v_mov_b32 v{vSG}, s48', f'v_mov_b32 v{vSA}, s49']]


def signal(lab):
    return [I(f's_cmp_lg_u32 {sW}, 0'), I(f's_cbranch_scc1 {lab}'), I('s_mov_b64 exec, 1'),
            cond_i(f'buffer_atomic_or v{vSG}, v{vSA}, {SRD_D}, 0 offen'), I('s_mov_b64 exec, -1'), I(f'{lab}:')]


def w_dma(OPT, s):
    return [(I(f's_add_u32 m0, {sW4096}, {(s % RING) * SLOT + x * 1024}'),
             I(f'buffer_load_dwordx4 v{vWD + x}, {SRD_W}, {sWOFF} offen {OPT["k2wflags"]} lds', tag=('D', s))) for x in range(4)]


def w_adv(s):
    return I(f's_add_u32 {sWOFF}, {sWOFF}, {sINC0 if s % 8 == 7 else WINC}')


def oreg(s, ks, mi):
    return 16 * (s % RING) + 8 * ks + 4 * mi


def o_load(OPT, s):
    return [I(f'buffer_load_dwordx4 {R("a", oreg(s, ks, mi), 4)}, v{vOD + mi}, {SRD_O}, {sOOFF} offen offset:{ks * 1024} {OPT["k2oflags"]}', tag=('D', s))
            for ks in range(2) for mi in range(2)]


def o_adv():
    return I(f's_add_u32 {sOOFF}, {sOOFF}, 2048')


def poll():
    return I(f'buffer_load_dword v{vPOLL}, v{vPOFF}, {SRD_D}, 0 offen sc1', tag=('P', 0))


def check():
    return [I(f'v_and_b32 v{vPT}, {sNEED}, v{vPOLL}'), I(f'v_cmp_ne_u32 vcc, {sNEED}, v{vPT}')]


def slow_path(lab, back, OPT):
    return [f'{lab}:', f's_mov_b32 {sSPIN}, 0x4000'] + (['s_add_u32 s67, s67, 1'] if OPT['stamps'] else []) + [f'{lab}_spin:', poll().txt, 's_waitcnt vmcnt(0)'] + [x.txt for x in check()] + \
           ['s_nop 3', f's_cbranch_vccz {back}', f's_sub_u32 {sSPIN}, {sSPIN}, 1', f's_cmp_lg_u32 {sSPIN}, 0', f's_cbranch_scc1 {lab}_spin',
            f's_branch {back}']


def bad_flag_write(OPT, lab):
    return [I(f's_cmp_eq_u32 {sFB}, {0 if OPT["nofb"] else 1}'), I(f's_cbranch_scc1 {lab}'), I(f's_cmp_eq_u64 {sBAD}, 0'), I(f's_cbranch_scc1 {lab}'),
            I('v_mov_b32 v27, 1'), I(f'v_mov_b32 v28, {FLAG_ADDR}'), cond_i('ds_write_b32 v28, v27'), I(f'{lab}:')]


def stamp(A, k):
    A('s_memtime s[96:97]'); A('s_memrealtime s[98:99]'); A('s_waitcnt lgkmcnt(0)')
    A(f's_mov_b32 s{72 + 2 * k}, s96'); A(f's_mov_b32 s{73 + 2 * k}, s98')


def store_stamps(A, both):
    A('s_add_u32 s48, s64, 0x8000000'); A('s_addc_u32 s49, s65, 0'); A('s_mov_b32 s50, 0x200000'); A('s_mov_b32 s51, 0x20000')
    A(f's_lshl_b32 s52, s2, 2'); A(f's_add_u32 s52, s52, {sW}'); A('s_lshl_b32 s52, s52, 6')
    A('v_mov_b32 v28, 0')
    for k in range(6):
        A(f'v_mov_b32 v27, s{72 + 2 * k}')
        A(f'buffer_store_dword v27, v28, s[48:51], s52 offen offset:{4 * k}')
        A(f'v_mov_b32 v27, s{73 + 2 * k}')
        A(f'buffer_store_dword v27, v28, s[48:51], s52 offen offset:{4 * k + 32}')
    A('v_mov_b32 v27, s67')
    A(f'buffer_store_dword v27, v28, s[48:51], s52 offen offset:24')
    if both:
        A('s_add_u32 s52, s52, 0x100000')
        for k in range(4):
            A(f'v_mov_b32 v27, s{72 + 2 * (k + 6)}')
            A(f'buffer_store_dword v27, v28, s[48:51], s52 offen offset:{4 * k}')
            A(f'v_mov_b32 v27, s{73 + 2 * (k + 6)}')
            A(f'buffer_store_dword v27, v28, s[48:51], s52 offen offset:{4 * k + 32}')
    A('s_waitcnt vmcnt(0)')


def restart():
    return [f's_mov_b32 {sFB}, 1', 's_waitcnt vmcnt(0) lgkmcnt(0)', 's_barrier', 's_branch L_restart']


def kernel2f(OPT, vmq0):
    PD = int(OPT['k2pd'])
    assert 'sc1' in OPT['k2oflags'] and 'sc1' in OPT['oflags']
    S = Stream()
    A = S.a
    ST = OPT['stamps']

    def a_read(F, e):
        s, f = divmod(F, 16)
        ks, nb = divmod(f, 8)
        slot = s % RING
        off = (slot % 4) * SLOT + (2 * ks + e) * 4096
        d = vFA + 4 * (F % NF) + 2 * e
        return I(f'ds_read_b64_tr_b16 {R("v", d, 2)}, v{vA + 8 * (slot // 4) + nb} offset:{off}', tag=('r', F))

    def group(s):
        w = w_dma(OPT, s)
        o = [(None, x) for x in o_load(OPT, s)]
        return [w[0], o[0], w[1], o[1], w[2], o[2], w[3], o[3]]

    A('L_fuse:')
    S.ext(bad_flag_write(OPT, 'L_fok'))
    A(f's_cmp_eq_u32 {sHAS}, 0')
    A('s_cbranch_scc1 L_notile')
    A(f'v_mov_b32 v28, {FLAG_ADDR}')
    for s in range(int(OPT['f2w']), RING - 1):
        for m, d in w_dma(OPT, s):
            A(m); A('s_nop 0'); A(d)
        A(w_adv(s))
    for s in range(int(OPT['f2o']), RING - 1):
        S.ext(o_load(OPT, s))
        A(o_adv())
    S.ext(sig_ops(1))
    S.vmwait(lambda t: t == ('D', 0))
    A('s_waitcnt lgkmcnt(0)')
    A('s_barrier')
    if ST:
        stamp(A, 6)
    A(I('ds_read_b32 v27, v28', tag=('FL', 0)))
    for F in range(PD):
        A(a_read(F, 0)); A(a_read(F, 1))
    A('v_readfirstlane_b32 s48, v27')
    A('s_nop 3')
    A('s_cmp_lg_u32 s48, 0')
    A('s_cbranch_scc1 L_redo')
    A(f's_cmp_eq_u32 {sW}, 0')
    A(f's_cselect_b32 {sNEED}, 0xff, 0')
    A(f's_mov_b32 {sCNT}, 7')
    if ST:
        stamp(A, 7)

    NGAP = NSTG * 32
    pre = [[] for _ in range(NGAP)]
    mem = [[] for _ in range(NGAP)]
    post = [[] for _ in range(NGAP)]
    P0 = 32 - 2 * PD
    for F in range(NSTG * 16 - PD):
        mem[2 * F].append(a_read(F + PD, 0))
        mem[2 * F + 1].append(a_read(F + PD, 1))
    for s in range(NSTG - 1):
        gi = 32 * s + P0 - 1
        post[gi] += [P_vmwait(lambda t, s=s: t == ('D', s + 1)), I('s_barrier')]
        G = s + RING - 1
        if G < NSTG:
            for k, (m, d) in enumerate(group(G)):
                gg = 32 * s + P0 + 1 + 4 * k
                if m is not None:
                    pre[gg - 1].append(m)
                mem[gg].append(d)
            last = 32 * s + P0 + 1 + 4 * 7
            pre[last + 1].append(w_adv(G))
            pre[last + 2].append(o_adv())
            if G % 8 == 7:
                pre[last + 3].append(I(f's_xor_b32 {sINC0}, {sINC0}, {WINC ^ WJMP:#x}'))
    SIG = int(OPT['f2sig'])
    assert 6 <= SIG <= 7
    post[32 * SIG + P0] += signal('L_fnosig')
    for s in range(RING, NSTG - RING):
        if s % RING == 1:
            ck = check()
            post[32 * s + P0 - 6].append(ck[0])
            post[32 * s + P0 - 5].append(ck[1])
            post[32 * s + P0 - 3] += [I('s_cbranch_vccnz L_k2slow'), I('L_k2back:')]
            post[32 * s + P0 - 2].insert(0, I(f's_lshl_b32 {sNEED}, {sNEED}, 8'))
    for s in range(NSTG - RING):
        if s % RING == 2:
            post[32 * s + P0 + 2].append(poll())
    for s in range(NSTG):
        if s % RING == 0:
            S.mark('body', s // RING)
        for j in range(32):
            F = 16 * s + j // 2
            mi = j % 2
            ks, nb = divmod(F % 16, 8)
            d = R('v', vACC + 8 * nb + 4 * mi, 4)
            m = I(f'{MF} {d}, {R("v", vFA + 4 * (F % NF), 4)}, {R("a", oreg(s, ks, mi), 4)}, {d if (s, ks) != (0, 0) else 0}')
            if j % 4 == 0:
                m.need = set(('v', vFA + 4 * ((F + q) % NF) + r) for q in range(2) for r in range(4))
            A(m)
            gi = 32 * s + j
            gl = pre[gi] + mem[gi] + post[gi]
            if j == 31 and s % RING == RING - 1:
                gl = gl + [I(f's_sub_u32 {sCNT}, {sCNT}, 1'), I(f's_cmp_lg_u32 {sCNT}, 0')]
            S.ext(gl)
    S.mark('end', 0)
    if ST:
        stamp(A, 8)
    A('s_nop 7')
    k = 0
    for mi in range(2):
        A(f's_mov_b32 {sTMP}, {mi * 65536}')
        for p in range(4):
            st = vFA + 4 * (k % 4); k += 1
            for q in range(2):
                d = vACC + 8 * (2 * p + q) + 4 * mi
                A(f'v_cvt_pk_bf16_f32 v{st + 2 * q}, v{d}, v{d + 1}')
                A(f'v_cvt_pk_bf16_f32 v{st + 2 * q + 1}, v{d + 2}, v{d + 3}')
            A('s_nop 1')
            A(f'v_permlane16_swap_b32 v{st}, v{st + 2}')
            A(f'v_permlane16_swap_b32 v{st + 1}, v{st + 3}')
            A(f'buffer_store_dwordx4 {R("v", st, 4)}, v{vST}, {SRD_C}, {sTMP} offen offset:{64 * p} {OPT["k2cflags"]}')
    if ST:
        A('s_waitcnt vmcnt(0)')
        stamp(A, 9)
        store_stamps(A, True)
    A('s_endpgm')
    items, vmq, lgq = resolve(S.it, vmq=vmq0)
    items, nfix = check_hazards(items, True, 'k2f')
    check_scc(items, 'k2f')
    segs = split_marks(items)
    grp = [s for s in segs if s[0] == 'body']
    texts = [text(g[2]) for g in grp]
    best = (0, 0)
    a = 0
    while a < len(texts):
        b = a
        while b + 1 < len(texts) and texts[b + 1] == texts[a]:
            b += 1
        if b - a > best[1] - best[0]:
            best = (a, b)
        a = b + 1
    print('k2f loop: bodies', best, 'of', len(texts))
    out = []
    slow = []

    def relabel(T, sfx):
        if any(ln == 'L_k2back:' for ln in T):
            slow.append(sfx)
        return [ln.replace('L_k2slow', 'L_k2slow' + sfx).replace('L_k2back', 'L_k2back' + sfx) for ln in T]
    for (name, idx, its) in segs:
        if name == 'body' and best[0] <= idx <= best[1] and best[1] > best[0]:
            if idx == best[0]:
                out += [f's_mov_b32 {sCNT}, {best[1] - best[0] + 1}', 'L_k2:'] + relabel(text(its), '_l') + ['s_cbranch_scc1 L_k2']
        elif name == 'body':
            out += relabel(text(its), f'_b{idx}')
        else:
            out += text(its)
    for sfx in slow:
        out += slow_path(f'L_k2slow{sfx}', f'L_k2back{sfx}', OPT)
    out += ['L_redo:'] + restart()
    T = Stream()
    B = T.a
    B('L_notile:')
    T.ext(sig_ops(1))
    B(f'v_mov_b32 v28, {FLAG_ADDR}')
    B('s_waitcnt vmcnt(0) lgkmcnt(0)')
    B('s_barrier')
    B('ds_read_b32 v27, v28')
    B('s_waitcnt lgkmcnt(0)')
    B('v_readfirstlane_b32 s48, v27')
    B('s_nop 3')
    B('s_cmp_lg_u32 s48, 0')
    B('s_cbranch_scc1 L_redo')
    T.ext(signal('L_fnosig2'))
    if ST:
        stamp(B, 5)
        store_stamps(B, False)
    B('s_endpgm')
    it2, _, _ = resolve(T.it)
    it2, _ = check_hazards(it2, True, 'k2nt')
    out += text(it2)
    return out
```

```python
import sys, os, re
sys.path.insert(0, os.path.dirname(os.path.abspath(__file__)))
from asmlib import *

KN = "concat_heads__mha_block_cached__gqa_block_cached__near_ridge_kernel"
K2 = "outproj_kernel"

OPT = dict(
    dump=None,
    stamps=False,
    kvflags='nt',
    only_k1=False,
    nofb=False, drop='', att_nolds=False, att_nowait=False, att_noexp=False,
    att_nodma=False, att_nobar=False, att_novm=False, qp_nodma=False, qp_nobar=False,
    kvsame=False, wsame=False, wflags='', xflags='', k2wflags='', k2oflags='', k2same=False, pf=0, pfflags='', pfloop=33, pfq=0, kvpf=0, park=False, pfq2=0, tailpf=0, oflags='', rot=0, fst=False, alldma=False, dist=5, pkadd=False, bar2=False, mempos='0,1,2,6,10,14', dmag=5, dbgst=False, w3test=False, pfstart=0, kvpfflags='', kvpfsrc='K', k2ring=8, k2pd=6, k2dep=1, k2map=0, k2cflags='', prolpos=0, k2_nodma=False, k2_nomf=False, k2_wlin=False, k2_now=False, k2_noo=False, k2_nolds=False, k2_nobar=False, k2_novm=False, align='', shift=0, alignreg='qp,at,k2', cpf=0, cpfpos=0, cpf2=0, v2=False, pfn=64, pfmode='loop', st1=-1, qpk=False, kvplan='30.0,30.3,30.6,31.1,31.4,t', vmcap=0, share=True, roff=6, dfill=0, stl=0, stag='', dpos3='', dsplit=4, dpos4='', tidy=0, vmg=13, lgk=6,
    f2w=7, f2o=7, f2sig=6, f2chk=58, stf=0, padset=0, alw3=0, fuse=False, fmap=0, fneed0='0xff', fw0=3, fb1=13,
)

MF = 'v_mfma_f32_16x16x32_bf16'


def FUSE():
    return int(OPT['fuse'])


SNAPS = []


def R(cls, base, n=1):
    return f'{cls}{base}' if n == 1 else f'{cls}[{base}:{base + n - 1}]'


def mfma(d, a, b, c):
    return I(f'{MF} {d}, {a}, {b}, {c}')


SLOT = 17408
XW_PAR = 24576
X3_BASE = 139264
X3_PAR = 6144
WBEG = 3 * SLOT
WEND = 8 * SLOT
FLAG_ADDR = 163832
NRING = 8
DIST = 5

sW = 's3'
SRD_X, SRD_W, SRD_K, SRD_V, SRD_O = 's[8:11]', 's[12:15]', 's[16:19]', 's[20:23]', 's[24:27]'
sWRD, sWDMA, sWSOFF, sXSOFF, sCNT, sW4352, sXD0, sXD1, sNXT, sTMP = ['s%d' % i for i in range(28, 38)]
sDSLOT, sKOFF, sKOFF2, sRBASE, sFB, sOOFF, sT2 = ['s%d' % i for i in range(38, 45)]
sBAD = 's[46:47]'
sPH = 's40'
sST = 72

vLANE = 1
vWD = 2
vXD = 6
vWL, vWA, vXA0, vXA1 = 14, 15, 16, 17
vKL, vVL0, vVL1, vKA, vVA0, vVA1, vKD, vVD, vOST = 18, 19, 20, 21, 22, 23, 24, 25, 26
vT = 27
vKPRE = 32
vS = 64
vP = 80
vL = 88
vNEG = 96
vM2 = 112
vLT = 116
vE = 120
vACC = 128
aQ = 0
aX = 128
aWF = 192
aK = 128
aV = 192

QSCALE = 0x3e0293ee
import struct, math
QSCALE = struct.unpack('<I', struct.pack('<f', math.log2(math.e) / math.sqrt(128.0)))[0]
LTHRESH = struct.unpack('<I', struct.pack('<f', 2.0 ** 30))[0]


def acc(hh, dt, qb):
    return R('v', vACC + 32 * qb + 4 * dt, 4) if hh == 0 else R('a', 32 * qb + 4 * dt, 4)


def stamp(S, k, force=False):
    if int(OPT['stl']) and k in (1, 2, 3, 4) and not force:
        return
    if int(OPT['stf']) and k in (1, 2, 3) and not force:
        return
    if int(OPT['stf']) == 2 and k == 4 and not force:
        return
    if OPT['fuse']:
        if OPT['stamps']:
            import gen2
            L = []
            gen2.f_stamp(L.append, k)
            for t in L:
                x = I(t)
                if force and x.kind == 'smem':
                    x.kind = 'salu'; x.wr = set()
                S.a(x)
        return
    if force and OPT['stamps']:
        for t in (f's_memtime s[{sST + 4 * k}:{sST + 4 * k + 1}]', f's_memrealtime s[{sST + 4 * k + 2}:{sST + 4 * k + 3}]', 's_waitcnt lgkmcnt(0)'):
            x = I(t); x.kind = 'salu'; x.wr = set(); S.a(x)
        return
    if OPT['stamps'] or OPT['dbgst']:
        S.a(f's_memtime s[{sST + 4 * k}:{sST + 4 * k + 1}]')
        S.a(f's_memrealtime s[{sST + 4 * k + 2}:{sST + 4 * k + 3}]')
        S.a('s_waitcnt lgkmcnt(0)')


def k1_setup(S):
    A = S.a
    A('s_cmp_ge_u32 s2, 256')
    A('s_cbranch_scc1 L_end1')
    A(f's_mov_b32 {sFB}, 0')
    if FUSE() == 2 and OPT['stamps']:
        A('s_mov_b32 s67, 0')
    A('L_restart:')
    A('s_load_dwordx8 s[44:51], s[0:1], 0')
    A('s_load_dwordx8 s[56:63], s[0:1], 40')
    A('s_load_dwordx2 s[64:65], s[0:1], 96')
    if OPT['stamps'] and not OPT['fuse']:
        A('s_load_dwordx2 s[66:67], s[0:1], 88')
    if OPT['pf'] or OPT['pfq'] or OPT['pfq2'] or OPT['tailpf'] or OPT['fuse']:
        A('s_load_dwordx2 s[52:53], s[0:1], 32')
        A('s_load_dwordx2 s[54:55], s[0:1], 72')
    A('s_and_b32 s4, s2, 7')
    A('s_lshr_b32 s5, s2, 3')
    A('s_lshr_b32 s6, s4, 2')
    A('s_bfe_u32 s7, s4, 0x10001')
    A('s_lshl_b32 s7, s7, 2')
    A('s_and_b32 s28, s5, 3')
    A('s_add_u32 s7, s7, s28')
    A('s_and_b32 s28, s4, 1')
    A('s_lshl_b32 s28, s28, 3')
    A('s_lshr_b32 s29, s5, 2')
    A('s_add_u32 s68, s28, s29')
    if OPT['rot']:
        m = int(OPT['rot'])
        if m == 1:
            A('s_and_b32 s100, s5, 31')
        elif m == 2:
            A('s_mul_i32 s100, s4, 4'); A('s_add_u32 s100, s100, s5'); A('s_and_b32 s100, s100, 31')
        elif m == 3:
            A('s_mul_i32 s100, s2, 11'); A('s_lshr_b32 s100, s100, 1'); A('s_and_b32 s100, s100, 31')
        elif m == 4:
            A('s_and_b32 s100, s2, 1'); A('s_lshl_b32 s100, s100, 4')
        A('s_lshl_b32 s100, s100, 13')
    for _ in range(int(OPT['padset'])):
        A('s_nop 0')
    A(f'v_and_b32 v{vLANE}, 63, v0')
    A('v_lshrrev_b32 v27, 6, v0')
    A('s_nop 0')
    A(f'v_readfirstlane_b32 {sW}, v27')
    A('s_waitcnt lgkmcnt(0)')
    stamp(S, 0)
    A('s_cmp_eq_u32 s6, 0')
    A('s_cselect_b64 s[44:45], s[44:45], s[56:57]')
    A('s_cselect_b64 s[46:47], s[46:47], s[58:59]')
    A('s_cselect_b64 s[48:49], s[48:49], s[60:61]')
    A('s_cselect_b64 s[50:51], s[50:51], s[62:63]')
    if OPT['pf'] or OPT['pfq'] or OPT['pfq2'] or OPT['tailpf'] or OPT['fuse']:
        A('s_cselect_b64 s[52:53], s[52:53], s[54:55]')
        if OPT['fuse']:
            A('s_mov_b64 s[56:57], s[52:53]')
            A('s_load_dwordx2 s[58:59], s[0:1], 80')
            A('s_load_dwordx2 s[60:61], s[0:1], 88')
            A('s_mov_b32 s62, 256'); A('s_mov_b32 s63, 0x20000')
        A('s_lshl_b32 s28, s7, 4'); A('s_add_u32 s28, s28, s68'); A('s_lshl_b32 s28, s28, 16')
        A('s_add_u32 s52, s52, s28'); A('s_addc_u32 s53, s53, 0')
        A('s_mov_b32 s54, 65536'); A('s_mov_b32 s55, 0x20000')
    A('s_mul_i32 s28, s7, 491520')
    if OPT['wsame']:
        A('s_mov_b32 s28, 0')
    A('s_add_u32 s8, s44, s28'); A('s_addc_u32 s9, s45, 0')
    A('s_mov_b32 s10, 491520'); A('s_mov_b32 s11, 0x20000')
    A('s_lshl_b32 s28, s68, 9')
    if OPT['wsame']:
        A('s_mov_b32 s28, 0')
    A('s_add_u32 s12, s50, s28'); A('s_addc_u32 s13, s51, 0')
    A('s_sub_u32 s14, 8388608, s28'); A('s_mov_b32 s15, 0x20000')
    A('s_lshl_b32 s28, s7, 5'); A('s_lshl_b32 s29, s68, 1'); A('s_add_u32 s28, s28, s29')
    A('s_lshl_b32 s28, s28, 18')
    if OPT['kvsame']:
        A('s_mov_b32 s28, 0')
    A('s_add_u32 s16, s46, s28'); A('s_addc_u32 s17, s47, 0')
    A('s_mov_b32 s18, 524288'); A('s_mov_b32 s19, 0x20000')
    A('s_add_u32 s20, s48, s28'); A('s_addc_u32 s21, s49, 0')
    A('s_mov_b32 s22, 524288'); A('s_mov_b32 s23, 0x20000')
    A('s_mul_i32 s28, s6, 120'); A('s_mul_i32 s29, s7, 15'); A('s_add_u32 s28, s28, s29')
    A('s_lshl_b32 s28, s28, 17')
    A(f's_lshl_b32 s29, s68, {11 if FUSE() == 2 else 13}')
    A('s_add_u32 s28, s28, s29')
    A('s_add_u32 s24, s64, s28'); A('s_addc_u32 s25, s65, 0')
    A(f's_sub_u32 s26, {15 * 131072}, s29'); A('s_mov_b32 s27, 0x20000')
    A(f'v_lshrrev_b32 v27, 4, v{vLANE}')
    A(f'v_and_b32 v28, 15, v{vLANE}')
    A('v_lshrrev_b32 v29, 2, v28')
    A('v_and_b32 v30, 3, v28')
    A(f's_lshl_b32 s28, {sW}, 17')
    A(f'v_lshlrev_b32 v{vWD}, 15, v27')
    A(f'v_lshl_add_u32 v{vWD}, v28, 4, v{vWD}')
    A(f'v_add_u32 v{vWD}, s28, v{vWD}')
    for r in range(1, 4):
        A(f'v_add_u32 v{vWD + r}, {8192 * r}, v{vWD}')
    A(f'v_lshrrev_b32 v31, 3, v{vLANE}')
    A(f's_lshl_b32 s28, {sW}, 6')
    A('v_add_u32 v31, s28, v31')
    A('v_lshlrev_b32 v31, 11, v31')
    A(f'v_and_b32 v{vXD + 2}, 7, v{vLANE}')
    A(f'v_xor_b32 v{vXD + 2}, v{vXD + 2}, v27')
    A(f'v_xor_b32 v{vXD + 3}, 4, v{vXD + 2}')
    A(f'v_lshl_add_u32 v{vXD}, v{vXD + 2}, 4, v31')
    A(f'v_lshl_add_u32 v{vXD + 1}, v{vXD + 3}, 4, v31')
    A(f'v_add_u32 v{vXD + 1}, 16384, v{vXD + 1}')
    for i in range(2, 8):
        A(f'v_add_u32 v{vXD + i}, {16384 * (i - (i & 1))}, v{vXD + (i & 1)}')
    A('v_lshrrev_b32 v31, 1, v27')
    A('v_lshl_add_u32 v31, v31, 2, v29')
    A(f'v_mul_u32_u24 v{vWL}, 1088, v31')
    A('v_and_b32 v31, 1, v27')
    A(f'v_lshl_add_u32 v{vWL}, v31, 9, v{vWL}')
    A(f'v_lshl_add_u32 v{vWL}, v30, 4, v{vWL}')
    A('v_lshrrev_b32 v31, 1, v28')
    A('v_xor_b32 v31, v31, v27')
    A('v_lshlrev_b32 v31, 4, v31')
    A(f'v_lshl_add_u32 v{vXA0}, v28, 7, v31')
    A(f'v_mul_u32_u24 v{vKL}, 1088, v29')
    A(f'v_lshl_add_u32 v{vKL}, v30, 8, v{vKL}')
    A('v_xor_b32 v31, v27, v30')
    A(f'v_lshl_add_u32 v{vKL}, v31, 4, v{vKL}')
    A(f'v_mul_u32_u24 v{vVL0}, 1088, v29')
    A(f'v_lshl_add_u32 v{vVL0}, v27, 8, v{vVL0}')
    A(f'v_lshl_add_u32 v{vVL0}, v30, 3, v{vVL0}')
    A('v_and_b32 v31, 1, v27')
    A('v_lshlrev_b32 v31, 5, v31')
    A(f'v_sub_u32 v{vVL1}, v{vVL0}, v31')
    A(f'v_add_u32 v{vVL0}, v{vVL0}, v31')
    A('v_xor_b32 v31, v28, v27')
    A('v_lshlrev_b32 v31, 4, v31')
    A(f'v_lshl_add_u32 v{vKD}, v27, 8, v31')
    A('v_and_b32 v31, 1, v27')
    A('v_lshlrev_b32 v31, 1, v31')
    A('v_xor_b32 v31, v28, v31')
    A('v_lshlrev_b32 v31, 4, v31')
    A(f'v_lshl_add_u32 v{vVD}, v27, 10, v31')
    if OPT['alldma']:
        A(f's_lshl_b32 s28, {sW}, 11')
        A(f'v_add_u32 v{vKD}, s28, v{vKD}')
        A(f's_lshr_b32 s28, {sW}, 1'); A('s_lshl_b32 s28, s28, 12')
        A(f's_and_b32 s29, {sW}, 1'); A('s_lshl_b32 s29, s29, 9'); A('s_add_u32 s28, s28, s29')
        A(f'v_add_u32 v{vVD}, s28, v{vVD}')
        A(f's_mul_i32 s70, {sW}, 2176')
        A(f's_add_u32 s71, s70, {NRING * SLOT}')
    A(f's_lshl_b32 s28, {sW}, 19')
    A(f'v_lshlrev_b32 v{vOST}, 4, v{vLANE}')
    A(f'v_add_u32 v{vOST}, s28, v{vOST}')
    A('v_lshlrev_b32 v31, 8, v28')
    A('v_lshl_add_u32 v31, v27, 4, v31')
    A(f's_mul_i32 {sW4352}, {sW}, 4352')
    A(f's_mov_b64 {sBAD}, 0')
    A('v_mov_b32 v27, 0')
    A(f'v_mov_b32 v28, {FLAG_ADDR}')
    A('ds_write_b32 v28, v27')
    A(f's_cmp_eq_u32 {sW}, 3')
    A('s_cbranch_scc1 L_w3')


def w_dma(h, rho):
    return (I(f's_add_u32 m0, {sWDMA}, {rho * 1088}'),
            I(f'buffer_load_dwordx4 v{vWD + rho}, {SRD_W}, {sWSOFF} offen {OPT["wflags"]} lds', tag=('W', h)))


def x_dma(s, i):
    xs = sXD0 if s % 2 == 0 else sXD1
    return (I(f's_add_u32 m0, {xs}, {i * 1024}'),
            I(f'buffer_load_dwordx4 v{vXD + i}, {SRD_X}, {sXSOFF} offen {OPT["xflags"]} lds', tag=('X', s)))


def w_read(h, dt, ks, e):
    t, u = dt >> 1, dt & 1
    off = ks * 8704 + e * 256 + 64 * t + 8 * u
    d = aWF + 8 * (dt % 4) + 4 * ks + 2 * e
    return I(f'ds_read_b64_tr_b16 {R("a", d, 2)}, v{vWA} offset:{off}', tag=('Wr', h))


def x_read(nqb, s, qb, ks):
    par = s % 2
    off = par * (XW_PAR if nqb == 4 else X3_PAR) + qb * 2048
    d = aX + 32 * par + 8 * qb + 4 * ks
    return I(f'ds_read_b128 {R("a", d, 4)}, v{vXA0 if ks == 0 else vXA1} offset:{off}', tag=('Xr', s))


def code_pf(v3):
    L = ['s_getpc_b64 s[98:99]',
         f'L_pc0{v3}:',
         f's_sub_u32 s98, s98, L_pc0{v3}-{KN}',
         's_subb_u32 s99, s99, 0',
         's_lshr_b32 s70, s2, 3' if not OPT['alldma'] else 's_lshr_b32 s69, s2, 3',
         ]
    t = 's70' if not OPT['alldma'] else 's69'
    L += [f's_lshl_b32 {t}, {t}, 2', f's_add_u32 {t}, {t}, {sW}', f's_lshl_b32 {t}, {t}, 10',
          f'v_and_b32 v124, 7, v{vLANE}', 'v_lshlrev_b32 v124, 7, v124', f'v_add_u32 v124, {t}, v124',
          f'v_min_u32 v124, L_end1-{KN}, v124', 'v_mov_b32 v123, s99', 'v_add_co_u32 v122, vcc, s98, v124',
          'v_addc_co_u32 v123, vcc, 0, v123, vcc']
    L = [I(x) for x in L]
    pf = I('global_load_dword v127, v[122:123], off', tag=('CPF', 0))
    pf.wr = set()
    return L, pf


def qproj(S, nqb, pre):
    A = S.a
    v3 = '3' if nqb == 3 else ''
    G = 2 * nqb
    nx = 2 * nqb
    if nqb == 4:
        A(f's_lshl_b32 {sXD0}, {sW}, 13')
        A(f's_add_u32 {sXD1}, {sXD0}, {XW_PAR}')
        A(f'v_add_u32 v{vXA0}, {sXD0}, v{vXA0}')
    else:
        A(f's_mov_b32 {sXD0}, {X3_BASE}')
        A(f's_mov_b32 {sXD1}, {X3_BASE + X3_PAR}')
        A(f'v_add_u32 v{vXA0}, {X3_BASE}, v{vXA0}')
    A(f'v_xor_b32 v{vXA1}, 64, v{vXA0}')
    CUR[0] = nqb
    if int(OPT['dsplit']) < 4:
        if nqb == 3:
            A(f'v_add_u32 v{vVD}, {(-4608) & 0xffffffff:#x}, v{vVD}')
            A(f'v_add_u32 v{vVD2}, 4096, v{vVD}')
        elif int(OPT['dsplit']) == 3:
            A(f's_lshr_b32 s28, {sW}, 1'); A('s_lshl_b32 s28, s28, 12')
            A(f's_and_b32 s29, {sW}, 1'); A('s_lshl_b32 s29, s29, 9'); A('s_add_u32 s28, s28, s29')
            A(f's_lshl_b32 s29, {sW}, 8'); A('s_sub_u32 s28, s29, s28')
            A(f'v_add_u32 v{vVD}, s28, v{vVD}')
            A(f's_mul_i32 s28, {sW}, 1088'); A(f's_sub_u32 {sVM}, 8704, s28')
    V2 = OPT['v2']
    def hs(h):
        if not V2:
            return h // 2, h % 2
        i, p = divmod(h, 4)
        return 2 * i + (p & 1), (1 if p < 2 else 0)
    def woff(h):
        s_, hh_ = hs(h)
        return s_ * 524288 + hh_ * 256
    def wslot(h):
        return WBEG + (h % 5) * SLOT
    def pro_w(h):
        A(f's_add_u32 {sWDMA}, {sW4352}, {wslot(h)}')
        A(f's_mov_b32 {sWSOFF}, {woff(h)}')
        for rho in range(4):
            m, d = w_dma(h, rho)
            A(m); A('s_nop 0'); A(d)
    def pro_x(s):
        A(f's_mov_b32 {sXSOFF}, {s * 128}')
        for i in range(nx):
            m, d = x_dma(s, i)
            A(m); A('s_nop 0'); A(d)
    if V2:
        pro_w(0); pro_x(0); pro_x(1); pro_w(1); pro_w(2); pro_w(3)
    else:
        pro_w(0); pro_x(0); pro_w(1); pro_w(2); pro_x(1); pro_w(3)
    for hh in range(2):
        A(f's_mov_b32 {sTMP}, {hh * 262144}')
        for t in range(4):
            A(f'buffer_load_dwordx4 {R("v", vKPRE + 16 * hh + 4 * t, 4)}, v31, {SRD_K}, {sTMP} offen offset:{64 * t}', tag=('KP', hh))
    if int(OPT['cpf']) & 1:
        cl, cp = code_pf(v3)
        S.ext(cl)
        if int(OPT['cpfpos']) == 0:
            A(cp)
    if OPT['pfq']:
        A(f's_lshl_b32 {sTMP}, {sW}, 7')
        A(f'v_add_u32 v126, {sTMP}, v{vLANE}')
        A('v_lshlrev_b32 v126, 7, v126')
        A(f's_mov_b32 {sTMP}, 8192')
        for so in ('0', sTMP):
            pf = I(f'buffer_load_dword v127, v126, s[52:55], {so} offen {OPT["pfflags"]}')
            pf.wr = set()
            A(pf)
    PQ2 = int(OPT['pfq2'])
    if PQ2:
        A(f's_lshl_b32 {sTMP}, {sW}, 3')
        A(f'v_add_u32 v126, {sTMP}, v{vLANE}')
        A('v_lshlrev_b32 v126, 7, v126')
        A(f'v_mov_b32 v124, 0x40000000')
        A(f'v_cmp_gt_u32 vcc, 8, v{vLANE}')
        A('s_nop 1')
        A('v_cndmask_b32 v126, v124, v126, vcc')
        A('s_mov_b32 s69, 0')
    KVL = int(OPT['kvpf'])
    W3T = OPT['w3test']
    if W3T and nqb == 4:
        KVL = 0
    if KVL:
        sh = {8: 3, 16: 4, 32: 5, 64: 6}[KVL]
        A(f'v_lshrrev_b32 v125, {sh}, v{vLANE}')
        A(f'v_lshlrev_b32 v125, 13, v125')
        A(f'v_and_b32 v124, {KVL - 1}, v{vLANE}')
        A(f'v_lshl_add_u32 v125, v124, 7, v125')
        if not W3T:
            A(f's_lshl_b32 {sTMP}, {sW}, {13 + 6 - sh}')
            A(f'v_add_u32 v125, {sTMP}, v125')
        A('s_mov_b32 s69, 0')
    A(f's_add_u32 {sWDMA}, {sW4352}, {wslot(4)}')
    A(f's_mov_b32 {sWSOFF}, {woff(4)}')
    A(f's_mov_b32 {sXSOFF}, 256')
    A(f's_mov_b32 {sWRD}, {wslot(0)}')
    A(f'v_add_u32 v{vWA}, {sWRD}, v{vWL}')
    for qb in range(nqb):
        for r in range(32):
            A(f'v_mov_b32 v{vACC + 32 * qb + r}, 0')
            A(f'v_accvgpr_write_b32 a{32 * qb + r}, 0')
    S.vmwait(lambda t: t in (('W', 0), ('X', 0)))
    A('s_waitcnt lgkmcnt(0)')
    A('s_barrier')
    if int(OPT['st1']) < 0:
        stamp(S, 1)
    for qb in range(nqb):
        for ks in range(2):
            A(x_read(nqb, 0, qb, ks))
    for dt in range(2):
        for ks in range(2):
            for e in range(2):
                A(w_read(0, dt, ks, e))

    NST = 16
    PFS = int(OPT['pf'])
    for hpair in range(NST):
        if hpair % 2 == 0:
            S.mark('qp', hpair // 2)
        for hsub in range(2):
            h = 2 * hpair + hsub
            s, hh = hs(h)
            p4 = h % 4
            gaps = [[[] for _ in range(G)] for _ in range(8)]
            ms = [[None] * G for _ in range(8)]
            for dt in range(8):
                for qb in range(nqb):
                    for ks in range(2):
                        ms[dt][2 * qb + ks] = mfma(acc(hh, dt, qb), R('a', aWF + 8 * (dt % 4) + 4 * ks, 4),
                                                   R('a', aX + 32 * (s % 2) + 8 * qb + 4 * ks, 4), acc(hh, dt, qb))
                ms[dt][0].need = set(('a', aWF + 8 * (dt % 4) + r) for r in range(8))
                if dt == 0 and (hh == 0 if not V2 else p4 < 2):
                    ms[dt][0].need |= set(('a', aX + 32 * (s % 2) + r) for r in range(8 * nqb))
                tdt, th = dt + 2, h
                if tdt >= 8:
                    tdt -= 8; th += 1
                if th < 32:
                    k = 0
                    for ks in range(2):
                        for e in range(2):
                            gaps[dt][k].append(w_read(th, tdt, ks, e)); k += 1
            if nqb == 4:
                slots = [(g, gi) for g in range(6) for gi in (4, 6)]
            else:
                slots = [(g, gi) for g in range(6) for gi in (4, 5)]
            dl = []
            if h + 4 < 32:
                dl += [w_dma(h + 4, rho) for rho in range(4)]
            nW = len(dl)
            xd = None
            if not V2:
                xd = s + 2 if (hh == 0 and s + 2 < NST) else None
            else:
                xd = s + 2 if (p4 < 2 and s + 2 < NST) else None
            if xd is not None:
                dl += [x_dma(xd, i) for i in range(nx)]
            if OPT['qp_nodma']:
                dl = []
            for k, (m, d) in enumerate(dl):
                g, gi = slots[k]
                if nqb == 4:
                    gaps[g][gi - 1].insert(0, m)
                    gaps[g][gi].append(d)
                else:
                    if gi == 4:
                        gaps[g][3].insert(0, m)
                    else:
                        gaps[g][4].append(m)
                    gaps[g][gi].append(d)
            if PQ2 and hh == PQ2 - 1:
                pf = I(f'buffer_load_dword v127, v126, s[52:55], s69 offen {OPT["pfflags"]}', tag=('PF', s))
                pf.wr = set()
                gaps[6][2].append(pf)
                gaps[7][1].insert(0, I('s_add_u32 s69, s69, 4096'))
            if KVL and W3T:
                n = KVL // 32 if KVL >= 32 else (1 if (h % (32 // KVL)) == 0 else 0)
                for q in range(n):
                    srd = SRD_K if OPT['kvpfsrc'] == 'K' else SRD_V
                    pf = I(f'buffer_load_dword v127, v125, {srd}, s69 offen {OPT["kvpfflags"]}', tag=('PF', s))
                    pf.wr = set()
                    gaps[6][2 + 2 * q].append(pf)
                    gaps[6][3 + 2 * q].insert(0, I(f's_add_u32 s69, s69, {8192 * 64 // KVL}'))
            elif KVL and hh == 1:
                per = [0] if (KVL == 64 or s % 2 == 0) else []
                for q in per:
                    srd = SRD_K if OPT['kvpfsrc'] == 'K' else SRD_V
                    pf = I(f'buffer_load_dword v127, v125, {srd}, s69 offen {OPT["kvpfflags"]}', tag=('PF', s))
                    pf.wr = set()
                    gaps[6][2].append(pf)
                    gaps[7][1].insert(0, I(f's_add_u32 s69, s69, {4 * 8192 * 64 // KVL}'))
            if (int(OPT['cpf']) & 1) and int(OPT['cpfpos']) and h == int(OPT['cpfpos']):
                gaps[6][2].append(cp)
            if h + 4 < 32:
                inc = (woff(h + 5) - woff(h + 4)) & 0xffffffff
                gaps[2][1].insert(0, I(f's_add_u32 {sWSOFF}, {sWSOFF}, {inc:#x}' if V2 else f's_add_u32 {sWSOFF}, {sWSOFF}, {inc}'))
            if xd is not None:
                gaps[6][5 if nqb == 4 else 4].insert(0, I(f's_add_u32 {sXSOFF}, {sXSOFF}, 128'))
            xn = None
            if not V2:
                xn = s + 1 if (hh == 1 and s + 1 < NST) else None
            elif p4 == 0:
                xn = s + 1
            elif p4 == 3 and s + 1 < NST:
                xn = s + 1
            if xn is not None:
                xr = [x_read(nqb, xn, qb, ks) for qb in range(nqb) for ks in range(2)]
                xs = [(g, gi) for g in range(2, 6) for gi in (((5, 7) if (V2 and p4 == 0) else (4, 6)) if nqb == 4 else (4, 5))]
                gaps[2][3].insert(0, P_vmwait(lambda t, xn=xn: t == ('X', xn)))
                for k, r in enumerate(xr):
                    g, gi = xs[k]
                    gaps[g][gi].append(r)
            if h + 1 < 32:
                if V2 and h >= 28 and int(OPT['dsplit']) < 4:
                    gaps[4][0][0:0] = [I(f's_add_u32 {sTMP}, {sWRD}, {SLOT}'), I(f's_cmp_eq_u32 {sTMP}, {WEND}'), I(f's_cselect_b32 {sNXT}, {WBEG}, {sTMP}')]
                else:
                    gaps[4][0].insert(0, I(f's_add_u32 {sTMP}, {sWRD}, {SLOT}'))
                    gaps[4][1].insert(0, I(f's_cmp_eq_u32 {sTMP}, {WEND}'))
                    gaps[4][2].insert(0, I(f's_cselect_b32 {sNXT}, {WBEG}, {sTMP}'))
                last = G - 1
                gaps[5][last] += [P_vmwait(lambda t, h=h: t == ('W', h + 1)),
                                  P_lgwait(lambda t, h=h: t == ('Wr', h)),
                                  I('s_barrier' if not OPT['qp_nobar'] else 's_nop 0'),
                                  I(f'v_add_u32 v{vWA}, {sNXT}, v{vWL}')]
                gaps[6][1].insert(0, I(f's_add_u32 {sWDMA}, {sWRD}, {sW4352}'))
                gaps[6][2].insert(0, I(f's_mov_b32 {sWRD}, {sNXT}'))
            if p4 == 3 and h < 28:
                gaps[7][G - 3].insert(0, I(f's_sub_u32 {sCNT}, {sCNT}, 1'))
                gaps[7][G - 2].insert(0, I(f's_cmp_lg_u32 {sCNT}, 0'))
            if V2:
                qtail_fill(gaps, nqb, h, G)
            if int(OPT['st1']) == h:
                stamp(S, 1)
            for dt in range(8):
                for gi in range(G):
                    A(ms[dt][gi])
                    gl = gaps[dt][gi]
                    if W3T and nqb == 3:
                        gl = [x for x in gl if not (x.kind == 'pseudo' and x.meta[0] == 'vmwait')]
                    S.ext(gl)
    S.mark('qpend', 0)


def conv_items(hh, kap):
    L = []
    st = vS + 8 * (kap % 2)
    if hh == 1:
        for r in range(8):
            L.append(I(f'v_accvgpr_read_b32 v{st + r}, a{8 * kap + r}'))
        src = st
    else:
        src = vACC + 8 * kap
    if OPT['qpk']:
        for r in range(0, 8, 2):
            L.append(I(f'v_pk_mul_f32 {R("v", st + r, 2)}, {R("v", src + r, 2)}, s[48:49] op_sel_hi:[1,0]'))
    else:
        for r in range(8):
            L.append(I(f'v_mul_f32 v{st + r}, s48, v{src + r}'))
    for r in range(4):
        L.append(I(f'v_cvt_pk_bf16_f32 v{st + r}, v{st + 2 * r}, v{st + 2 * r + 1}'))
    for r in range(4):
        L.append(I(f'v_accvgpr_write_b32 a{aQ + 64 * hh + 4 * kap + r}, v{st + r}'))
    return L


def spread(items, gl):
    n = len(gl)
    for k in range(n):
        gl[k].extend(items[len(items) * k // n: len(items) * (k + 1) // n])


def kv_plan():
    out = []
    for x in OPT['kvplan'].split(','):
        out.append('t' if x == 't' else tuple(int(y) for y in x.split('.')))
    assert len(out) == int(OPT['dist']) - 1, out
    return out


def qtail_fill(gaps, nqb, h, G):
    flat = lambda g0, g1: [gaps[g][gi] for g in range(g0, g1) for gi in range(G)]
    if h == 28:
        gaps[0][1].insert(0, I(f's_add_u32 {sDSLOT}, s70, {int(OPT["roff"]) * SLOT}'))
        gaps[0][1].insert(0, I(f's_mov_b32 {sKOFF}, 0'))
        gaps[0][1].insert(0, I(f's_mov_b32 s48, {QSCALE:#x}'))
        PFS = int(OPT['pf'])
        if PFS and nqb == 4 and OPT['pfmode'] == 'q':
            gaps[0][4] += [I(f's_lshl_b32 s69, {sW}, 6'), I(f'v_add_u32 v124, s69, v{vLANE}'), I(f'v_mul_u32_u24 v124, {PFS}, v124')]
            for q in range(3):
                pf = I(f'buffer_load_dword v125, v124, s[52:55], s69 offen {OPT["pfflags"]}', tag=('PF', q))
                pf.wr = set()
                gaps[1 + 2 * q][4].append(I(f's_mov_b32 s69, {192 * PFS * q}'))
                gaps[1 + 2 * q][6].append(pf)
    for tau, pos in enumerate(kv_plan()):
        if pos != 't' and pos[0] == h:
            g0 = pos[1]
            pairs = kv_dma(tau)
            step = 4 if G == 8 else 3
            if OPT['alldma'] and int(OPT['dsplit']) < 4:
                step = min(step, max(1, (2 * G - 2) // len(pairs)))
            for k, (m, d) in enumerate(pairs):
                g, gi = divmod(g0 * G + 1 + k * step, G)
                gaps[g][gi - 1].append(m) if gi >= 1 else gaps[g - 1][G - 1].append(m)
                gaps[g][gi].insert(0, d)
            g, gi = divmod(g0 * G + 1 + (len(pairs) - 1) * step + 1, G)
            gaps[g][gi] += kv_advance()
    c1 = sum((conv_items(1, kap) for kap in range(4 * nqb - 1, -1, -1)), [])
    n30 = len(c1) * 63 // 79
    if h == 30:
        spread(c1[:n30], flat(0, 8)[1:])
    if h == 31:
        spread(c1[n30:], flat(0, 2))
        for tt in range(3):
            c0 = sum((conv_items(0, 4 * qb + tt) for qb in range(nqb)), [])
            spread(c0, flat(2 + 2 * tt, 4 + 2 * tt)[1:])


def qtail_end(S, nqb):
    A = S.a
    for tau, pos in enumerate(kv_plan()):
        if pos == 't':
            for m, d in kv_dma(tau):
                A(m); A('s_nop 0'); A(d)
            S.ext(kv_advance())
    S.vmwait(lambda t: t is not None and t[0] == 'KP')
    D1 = [80 + 4 * qb for qb in range(nqb)]
    D0 = [vACC + 4 * qb for qb in range(nqb)]

    def smf(hh, D):
        return [mfma(R('v', D[qb], 4), R('v', vKPRE + 16 * hh + 4 * t, 4), R('a', aQ + 64 * hh + 16 * qb + 4 * t, 4),
                     '0' if t == 0 else R('v', D[qb], 4)) for t in range(4) for qb in range(nqb)]
    c0 = sum((conv_items(0, 4 * qb + 3) for qb in range(nqb)), [])
    m1 = smf(1, D1)
    gl = [[] for _ in m1]
    spread(c0, gl)
    for m, g in zip(m1, gl):
        A(m); S.ext(g)
    red = [I(f'v_max3_f32 v{d}, v{d}, v{d + 1}, v{d + 2}') for d in D1] + [I(f'v_max_f32 v{d}, v{d}, v{d + 3}') for d in D1]
    for sw in ('v_permlane32_swap_b32', 'v_permlane16_swap_b32'):
        red += [I(f'v_mov_b32 v{d + 1}, v{d}') for d in D1] + [I('s_nop 1')]
        red += [I(f'{sw} v{d}, v{d + 1}') for d in D1] + [I('s_nop 1')]
        red += [I(f'v_max_f32 v{d}, v{d}, v{d + 1}') for d in D1]
    red += [I(f'v_sub_f32 v{vM2 + qb}, 0, v{D1[qb]}') for qb in range(nqb)]
    m0 = smf(0, D0)
    gl = [[] for _ in m0]
    spread(red, gl[2:])
    for m, g in zip(m0, gl):
        A(m); S.ext(g)
    A('s_nop 7')
    for d in D0:
        A(f'v_max3_f32 v{d}, v{d}, v{d + 1}, v{d + 2}')
    for d in D0:
        A(f'v_max_f32 v{d}, v{d}, v{d + 3}')
    xlane_max_or_add(S, 'v_max_f32', D0, [d + 1 for d in D0])
    for qb in range(nqb):
        for r in range(4):
            A(f'v_sub_f32 v{vNEG + 4 * qb + r}, 0, v{D0[qb]}')


def q_epilogue(S, nqb):
    A = S.a
    A(f's_mov_b32 s48, {QSCALE:#x}')
    A('s_nop 7')
    t = vS
    for hh in (1, 0):
        for kap in range(4 * nqb - 1, -1, -1):
            qb, tt = kap // 4, kap % 4
            st = t + 8 * (kap % 2)
            if hh == 1:
                for r in range(8):
                    A(f'v_accvgpr_read_b32 v{st + r}, a{8 * kap + r}')
                src = st
            else:
                src = vACC + 8 * kap
            for r in range(0, 8, 2):
                A(f'v_pk_mul_f32 {R("v", st + r, 2)}, {R("v", src + r, 2)}, s[48:49] op_sel_hi:[1,0]')
            for r in range(4):
                A(f'v_cvt_pk_bf16_f32 v{st + r}, v{st + 2 * r}, v{st + 2 * r + 1}')
            for r in range(4):
                A(f'v_accvgpr_write_b32 a{aQ + 64 * hh + 4 * kap + r}, v{st + r}')


def xlane_max_or_add(S, op, regsl, tmpl):
    A = S.a
    for sw in ('v_permlane32_swap_b32', 'v_permlane16_swap_b32'):
        for r, t in zip(regsl, tmpl):
            A(f'v_mov_b32 v{t}, v{r}')
        A('s_nop 1')
        for r, t in zip(regsl, tmpl):
            A(f'{sw} v{r}, v{t}')
        A('s_nop 1')
        for r, t in zip(regsl, tmpl):
            A(f'{op} v{r}, v{r}, v{t}')


def standin(S, nqb):
    A = S.a
    mx = []
    for hh in range(2):
        for qb in range(nqb):
            d = vACC + 4 * (hh * 4 + qb)
            for t in range(4):
                A(mfma(R('v', d, 4), R('v', vKPRE + 16 * hh + 4 * t, 4), R('a', aQ + 64 * hh + 16 * qb + 4 * t, 4),
                       '0' if t == 0 else R('v', d, 4)))
            mx.append(d)
    A('s_nop 7')
    for d in mx:
        A(f'v_max3_f32 v{d}, v{d}, v{d + 1}, v{d + 2}')
    for d in mx:
        A(f'v_max_f32 v{d}, v{d}, v{d + 3}')
    xlane_max_or_add(S, 'v_max_f32', mx, [d + 1 for d in mx])
    set_negm(S, nqb, mx)


def set_negm(S, nqb, mx):
    A = S.a
    for qb in range(nqb):
        for r in range(4):
            A(f'v_sub_f32 v{vNEG + 4 * qb + r}, 0, v{mx[qb]}')
        A(f'v_sub_f32 v{vM2 + qb}, 0, v{mx[nqb + qb]}')


CUR = [4]
vVD2 = 12
sVM = 's45'


def npt():
    return len(kv_dma(0))


def kv_dma(tau):
    out = []
    fl = OPT['kvflags']
    DS = int(OPT['dsplit'])
    if OPT['alldma'] and DS < 4:
        for i in range(2):
            out.append((I(f's_add_u32 m0, {sDSLOT}, {64 * i}'),
                        I(f'buffer_load_dwordx4 v{vKD}, {SRD_K}, {sKOFF} offen offset:{1024 * i} {fl} lds', tag=('KV', tau))))
        if CUR[0] == 4:
            if DS == 3:
                out.insert(1, (I(f's_add_u32 m0, {sDSLOT}, {sVM}'),
                               I(f'buffer_load_dwordx4 v{vVD}, {SRD_V}, {sKOFF} offen {fl} lds', tag=('KV', tau))))
            return out
        for p in range(0 if DS == 2 else 3, 8):
            kb, rho = divmod(p, 4)
            out.append((I(f's_add_u32 m0, {sDSLOT}, {8704 - 3 * 2176 + 4352 * kb + 832 * rho}'),
                        I(f'buffer_load_dwordx4 v{vVD if kb == 0 else vVD2}, {SRD_V}, {sKOFF} offen offset:{256 * rho} {fl} lds', tag=('KV', tau))))
        return out
    if OPT['alldma']:
        for i in range(2):
            out.append((I(f's_add_u32 m0, {sDSLOT}, {64 * i}'),
                        I(f'buffer_load_dwordx4 v{vKD}, {SRD_K}, {sKOFF} offen offset:{1024 * i} {fl} lds', tag=('KV', tau))))
            out.append((I(f's_add_u32 m0, {sDSLOT}, {8704 + 832 * i}'),
                        I(f'buffer_load_dwordx4 v{vVD}, {SRD_V}, {sKOFF} offen offset:{256 * i} {fl} lds', tag=('KV', tau))))
        return out
    for j in range(8):
        so = sKOFF if j < 4 else sKOFF2
        ioff = 1024 * (j % 4)
        m0 = (4352 if j >= 4 else 0) + 64 * (j % 4)
        out.append((I(f's_add_u32 m0, {sDSLOT}, {m0}'),
                    I(f'buffer_load_dwordx4 v{vKD}, {SRD_K}, {so} offen offset:{ioff} {fl} lds', tag=('KV', tau))))
    for kb in range(2):
        for rho in range(4):
            so = sKOFF if kb == 0 else sKOFF2
            m0 = 8704 + kb * 4352 + 832 * rho
            out.append((I(f's_add_u32 m0, {sDSLOT}, {m0}'),
                        I(f'buffer_load_dwordx4 v{vVD}, {SRD_V}, {so} offen offset:{256 * rho} {fl} lds', tag=('KV', tau))))
    return out


def kv_advance():
    if OPT['rot']:
        L = [I('s_add_u32 s99, s99, 8192'), I(f's_xor_b32 {sKOFF}, s99, s100')]
        if not OPT['alldma']:
            L.append(I(f's_or_b32 {sKOFF2}, {sKOFF}, 4096'))
        L += [I(f's_add_u32 {sDSLOT}, {sDSLOT}, {SLOT}'),
              I(f's_cmp_eq_u32 {sDSLOT}, {"s71" if OPT["alldma"] else NRING * SLOT}'),
              I(f's_cselect_b32 {sDSLOT}, {"s70" if OPT["alldma"] else 0}, {sDSLOT}')]
        return L
    if OPT['alldma']:
        return [I(f's_add_u32 {sKOFF}, {sKOFF}, 8192'),
                I(f's_add_u32 {sDSLOT}, {sDSLOT}, {SLOT}'),
                I(f's_cmp_eq_u32 {sDSLOT}, s71'),
                I(f's_cselect_b32 {sDSLOT}, s70, {sDSLOT}')]
    return [I(f's_add_u32 {sKOFF}, {sKOFF}, 8192'),
            I(f's_add_u32 {sKOFF2}, {sKOFF2}, 8192'),
            I(f's_add_u32 {sDSLOT}, {sDSLOT}, {SLOT}'),
            I(f's_cmp_eq_u32 {sDSLOT}, {NRING * SLOT}'),
            I(f's_cselect_b32 {sDSLOT}, 0, {sDSLOT}')]


def kv_prologue(S, nqb):
    A = S.a
    DIST = int(OPT['dist'])
    if OPT['rot']:
        A('s_mov_b32 s99, 0')
    if OPT['alldma']:
        A(f's_mov_b32 {sDSLOT}, s70')
        A(f's_mov_b32 {sKOFF}, {"s100" if OPT["rot"] else 0}')
        for tau in range(DIST - 1):
            for m, d in kv_dma(tau):
                A(m); A('s_nop 0'); A(d)
            S.ext(kv_advance())
    elif nqb == 3:
        A(f's_mov_b32 {sDSLOT}, 0')
        A(f's_mov_b32 {sKOFF}, {"s100" if OPT["rot"] else 0}')
        A(f's_or_b32 {sKOFF2}, {sKOFF}, 4096')
        for tau in range(min(DIST - 1, 4)):
            for m, d in kv_dma(tau):
                A(m); A('s_nop 0'); A(d)
            S.ext(kv_advance())


def kv_prologue2(S, nqb):
    A = S.a
    DIST = int(OPT['dist'])
    if nqb == 3 and not OPT['alldma']:
        for tau in range(4, DIST - 1):
            for m, d in kv_dma(tau):
                A(m); A('s_nop 0'); A(d)
            S.ext(kv_advance())


def k_read(tau, kb, t):
    off = (tau % 2) * SLOT + kb * 4352 + 64 * t
    d = aK + 32 * (tau % 2) + 16 * kb + 4 * t
    return I(f'ds_read_b128 {R("a", d, 4)}, v{vKA} offset:{off}', tag=('Kr', tau))


def v_read(tau, db, e):
    off = (tau % 2) * SLOT + 8704 + e * 4352 + 32 * db
    d = aV + 32 * (tau % 2) + 4 * db + 2 * e
    return I(f'ds_read_b64_tr_b16 {R("a", d, 2)}, v{vVA0 if db % 2 == 0 else vVA1} offset:{off}', tag=('Vr', tau))


def o_epilogue_items(nqb, hh, qb, packed):
    L = []
    inv = vLT + qb
    so = qb * 131072 + hh * 4096
    F2 = FUSE() == 2
    if F2:
        so = qb * 131072 + hh * 65536
    if not (hh == 0 and OPT['park']):
        L.append(I(f's_mov_b32 {sOOFF}, {so}'))
    for t in range(4):
        if F2 and t == 2:
            L.append(I(f's_mov_b32 {sOOFF}, {so + 32768}'))
        st = vE + 4 * (t % 2)
        src = vACC + 32 * qb + 8 * t
        if packed:
            for r in range(0, 8, 2):
                L.append(I(f'v_pk_mul_f32 {R("v", src + r, 2)}, {R("v", src + r, 2)}, {R("v", inv & ~1, 2)} op_sel:[0,{inv & 1}] op_sel_hi:[1,{inv & 1}]'))
        else:
            for r in range(8):
                L.append(I(f'v_mul_f32 v{src + r}, v{src + r}, v{inv}'))
        for r in range(4):
            L.append(I(f'v_cvt_pk_bf16_f32 v{st + r}, v{src + 2 * r}, v{src + 2 * r + 1}'))
        if hh == 0 and OPT['park']:
            for r in range(4):
                L.append(I(f'v_accvgpr_write_b32 a{aQ + 16 * qb + 4 * t + r}, v{st + r}'))
            continue
        L.append(I(f'buffer_store_dwordx4 {R("v", st, 4)}, v{vOST}, {SRD_O}, {sOOFF} offen offset:{1024 * (t % 2 if F2 else t)} {OPT["oflags"]}', tag=('O', hh)))
    return L


def l_finish_items(qb):
    l0, l1, lt, tmp = vL + 2 * qb, vL + 2 * qb + 1, vLT + qb, vT
    L = [I(f'v_add_f32 v{lt}, v{l0}, v{l1}'),
         I(f'v_mov_b32 v{l0}, 0'),
         I(f'v_mov_b32 v{l1}, 0'),
         I(f'v_mov_b32 v{tmp}, v{lt}'),
         I('s_nop 1'),
         I(f'v_permlane32_swap_b32 v{lt}, v{tmp}'),
         I('s_nop 1'),
         I(f'v_add_f32 v{lt}, v{lt}, v{tmp}'),
         I(f'v_mov_b32 v{tmp}, v{lt}'),
         I('s_nop 1'),
         I(f'v_permlane16_swap_b32 v{lt}, v{tmp}'),
         I('s_nop 1'),
         I(f'v_add_f32 v{lt}, v{lt}, v{tmp}'),
         I(f'v_cmp_nge_f32 vcc, {LTHRESH:#x}, v{lt}'),
         I(f'v_rcp_f32 v{lt}, v{lt}'),
         I('s_nop 1'),
         I(f's_or_b64 {sBAD}, {sBAD}, vcc')]
    return L


TAILSLOW = []
_TAIL = {}


def tail_plan(nsl, v3):
    import gen3
    P = {}
    def put(tau, j, kind, g, x):
        P.setdefault((tau, j), []).append((kind, g, x))
    def spread_late(tau, j, items, g0=0, g1=15):
        n = g1 - g0
        at = scc_atoms(items)
        for k in range(n):
            for a_ in at[len(at) * k // n: len(at) * (k + 1) // n]:
                for x in a_:
                    put(tau, j, 'late', g0 + k, x)
    sa, va = gen3.setup_a(OPT)
    sb, vb = gen3.setup_b(OPT)
    spread_late(57, 0, sa + va)
    spread_late(58, 1, sb + vb)
    G0 = 5
    NW, NO = int(OPT['f2w']), int(OPT['f2o'])
    for s in range(NW):
        tau = 57 + s
        if tau == 57:
            pos = [(1, G0), (2, G0), (3, G0), (3, G0 + 6)] if nsl == 4 else [(1, G0), (1, G0 + 6), (2, G0), (2, G0 + 6)]
        else:
            pos = [(j, G0) for j in range(4)] if nsl == 4 else [(0, G0), (1, G0), (2, G0), (2, G0 + 6)]
        for (m, d), (j, g) in zip(gen3.w_dma(OPT, s), pos):
            put(tau, j, 'sal', g - 1, m)
            put(tau, j, 'mem', g, d)
        put(tau, pos[-1][0], 'late', max(pos[-1][1], 9), gen3.w_adv(s))
    CK = int(OPT['f2chk'])
    if nsl == 4:
        c = gen3.cond_i
        for x in [I(f's_cmp_eq_u32 {gen3.sNEED}, 0'), I('s_cbranch_scc1 L_nsp'), c('s_load_dword s48, s[60:61], s22 glc'),
                  c('s_load_dword s49, s[60:61], s23 glc'), I('L_nsp:')]:
            put(57, 1, 'late', 2, x)
        for x in [I(f's_cmp_eq_u32 {gen3.sNEED}, 0'), I('s_cbranch_scc1 L_tback'), c('s_waitcnt lgkmcnt(0)'),
                  I('s_and_b32 s48, s48, s49'), I(f's_and_b32 s48, s48, {gen3.sNEED}'), I(f's_cmp_lg_u32 s48, {gen3.sNEED}'),
                  I('s_cbranch_scc1 L_tslow'), I('L_tback:')]:
            put(CK, nsl - 1, 'late', 15, x)
    early = [(tau, j, g) for tau in range(CK + 1, 63) for j in range(nsl) for g in (8, 12)]
    lastqk = 1 if nsl == 4 else 0
    lateo = [(63, j, g) for j in range(lastqk + 1, nsl) for g in (4, 5, 6, 7, 12, 13, 14, 15)]
    spill = [(63, j, g) for j in range(0, lastqk + 1) for g in (8, 12)]
    e = early + spill
    for s in range(NO):
        for k, x in enumerate(gen3.o_load(OPT, s)):
            if s < 4 and e:
                tau, j, g = e.pop(0)
            else:
                assert not (s < 4 and False)
                tau, j, g = lateo.pop(0)
            put(tau, j, 'mem', g, x)
            if k == 3:
                put(tau, j, 'late', g, gen3.o_adv())
    return P


def tail_fill(tau, j, nsl, mem, sal, late, v3):
    if v3 not in _TAIL:
        _TAIL[v3] = tail_plan(nsl, v3)
    for kind, g, x in _TAIL[v3].get((tau, j), []):
        {'mem': mem, 'sal': sal, 'late': late}[kind].setdefault(g, []).append(x)


def attention(S, nqb, v3):
    A = S.a
    N = 64 * nqb
    dmawave = (nqb == 3) or OPT['alldma']
    DIST = int(OPT['dist'])
    MEMPOS = [int(x) for x in OPT['mempos'].split(',')]
    A(f'L_attn{v3}:')
    for qb in range(nqb):
        A(f'v_mov_b32 v{vL + 2 * qb}, 0')
        A(f'v_mov_b32 v{vL + 2 * qb + 1}, 0')
    V2 = OPT['v2']
    SHARE = V2 and OPT['share']
    ROFF = int(OPT['roff']) * SLOT if V2 else 0
    A(f's_mov_b32 {sRBASE}, {ROFF}')
    if OPT['fst']:
        A('s_mov_b32 s98, 0')
    if V2:
        A(f'v_add_u32 v{vKA}, {ROFF}, v{vKL}')
        A(f'v_add_u32 v{vVA0}, {ROFF}, v{vVL0}')
        A(f'v_add_u32 v{vVA1}, {ROFF}, v{vVL1}')
        A(f's_mov_b32 {sPH}, 0')
    else:
        A(f'v_mov_b32 v{vKA}, v{vKL}')
        A(f'v_mov_b32 v{vVA0}, v{vVL0}')
        A(f'v_mov_b32 v{vVA1}, v{vVL1}')

    PFS = int(OPT['pf']) if (not V2 or OPT['pfmode'] == 'loop') else 0
    PFN = int(OPT['pfn'])
    if OPT['tailpf'] and nqb == 4:
        A(f's_lshl_b32 {sTMP}, {sW}, 6')
        A(f'v_add_u32 v62, {sTMP}, v{vLANE}')
        A(f'v_lshlrev_b32 v62, 7, v62')
        A('s_mov_b32 s69, 0')
    if PFS and nqb == 4:
        A(f's_mul_i32 {sTMP}, {sW}, {PFN}')
        A(f'v_add_u32 v62, {sTMP}, v{vLANE}')
        A(f'v_mul_u32_u24 v62, {PFS}, v62')
        if PFN < 64:
            A('v_mov_b32 v63, 0x40000000')
            A(f'v_cmp_gt_u32 vcc, {PFN}, v{vLANE}')
            A('v_cndmask_b32 v62, v63, v62, vcc')
        A(f's_mov_b32 s69, {(-int(OPT["pfstart"]) * 3 * PFN * PFS) & 0xffffffff:#x}')

    CPF = int(OPT['cpf'])
    if CPF & 2:
        A('s_getpc_b64 s[98:99]')
        A(f'L_pc1{v3}:')
        A(f's_add_u32 s98, s98, L_tr{v3}-L_pc1{v3}')
        A('s_addc_u32 s99, s99, 0')
        A(f'v_lshlrev_b32 v56, 7, v{vLANE}')
        if nqb == 4:
            A(f's_lshl_b32 {sTMP}, {sW}, 13')
            A(f'v_add_u32 v56, {sTMP}, v56')
        A(f'v_min_u32 v56, L_ok{v3}-L_tr{v3}, v56')
        A('v_mov_b32 v57, s99')
        A('v_add_co_u32 v56, vcc, s98, v56')
        A('v_addc_co_u32 v57, vcc, 0, v57, vcc')

    def unit(u):
        return divmod(u, nqb)

    extra = {}

    def add_extra(sig, lst):
        extra.setdefault(sig, []).extend(lst)

    for qb in range(nqb):
        se = 31 * nqb + qb
        add_extra(se, [I(f'v_mov_b32 v{vNEG + 4 * qb + r}, v{vM2 + qb}') for r in range(4)])
        if not (int(OPT['tidy']) and nqb == 4 and qb == 0):
            add_extra(se, l_finish_items(qb))
        items = o_epilogue_items(nqb, 0, qb, False)
        half = 1 + 2 * 13 if not OPT['park'] else 2 * 16
        add_extra(se + 1, items[:half])
        add_extra(se + 2, items[half:])
        if SHARE:
            add_extra(max(se - 1, 31 * nqb), [I(f'v_accvgpr_mov_b32 a{aQ + 16 * qb + r}, a{aQ + 64 + 16 * qb + r}') for r in range(16)])

    if int(OPT['tidy']) and nqb == 4:
        lf = l_finish_items(0)
        n0 = len(extra[31 * nqb])
        if n0 < 3 * ((n0 + len(lf) + 15) // 16):
            extra[31 * nqb] += [I('s_nop 0')] * 0
        add_extra(31 * nqb, lf)
        assert n0 >= 2 * ((n0 + len(lf) + 15) // 16), (n0, len(lf))

    def frame_reads(tau):
        tt = tau + 1
        if tt > 63:
            return []
        return [k_read(tt, kb, t) for kb in range(2) for t in range(4)] + [v_read(tt, db, e) for db in range(8) for e in range(2)]

    TIDY = int(OPT['tidy']) if nqb == 4 else 0
    carry = []

    def emit_slot(sig, mem, salus, late=None, frame_end=False):
        mf = [None] * 16
        u = sig + 2
        if 0 <= u < N:
            tau, qb = unit(u)
            hd = tau // 32
            if SHARE and sig >= 33 * nqb:
                hd = 0
            sp = u % 2
            for kb in range(2):
                d = R('v', vS + 8 * sp + 4 * kb, 4)
                for t in range(4):
                    mf[8 * kb + t] = mfma(d, R('a', aK + 32 * (tau % 2) + 16 * kb + 4 * t, 4),
                                          R('a', aQ + 64 * hd + 16 * qb + 4 * t, 4),
                                          R('v', vNEG + 4 * qb, 4) if t == 0 else d)
                mf[8 * kb].need = set(('a', aK + 32 * (tau % 2) + 16 * kb + r) for r in range(16))
        u = sig
        if 0 <= u < N:
            tau, qb = unit(u)
            pp = u % 2
            for db in range(8):
                d = R('v', vACC + 32 * qb + 4 * db, 4)
                mf[4 + 8 * (db // 4) + db % 4] = mfma(d, R('a', aV + 32 * (tau % 2) + 4 * db, 4), R('v', vP + 4 * pp, 4),
                                                      '0' if tau % 32 == 0 else d)
            for hb in range(2):
                mf[4 + 8 * hb].need = set(('a', aV + 32 * (tau % 2) + 16 * hb + r) for r in range(16))
        gaps = [[] for _ in range(16)]
        u = sig + 1
        if 0 <= u < N:
            tau, qb = unit(u)
            s0 = vS + 8 * (u % 2)
            p0 = vP + 4 * (u % 2)
            l0 = vL + 2 * qb
            E = [0, 1, 3, 5, 7, 9, 11, 13]
            for k, g in enumerate(E):
                gaps[g].append(I(f'v_exp_f32 v{s0 + k}, v{s0 + k}'))
            for k, g in enumerate([2, 6, 10, 14]):
                gaps[g].append(I(f'v_cvt_pk_bf16_f32 v{p0 + k}, v{s0 + 2 * k}, v{s0 + 2 * k + 1}'))
            for k, g in enumerate([4, 8, 12, 15]):
                if OPT['pkadd']:
                    gaps[g].append(I(f'v_pk_add_f32 {R("v", l0, 2)}, {R("v", l0, 2)}, {R("v", s0 + 2 * k, 2)}'))
                    continue
                gaps[g].append(I(f'v_add_f32 v{l0}, v{l0}, v{s0 + 2 * k}'))
                gaps[g].append(I(f'v_add_f32 v{l0 + 1}, v{l0 + 1}, v{s0 + 2 * k + 1}'))
        if carry:
            gaps[2] += carry
            del carry[:]
        if TIDY and frame_end and len(gaps[15]) == 2:
            gaps[14].append(gaps[15][0])
            carry.append(gaps[15][1])
            gaps[15] = []
        for g, l in (late or {}).items():
            gaps[g] += l
        for g in range(16):
            gaps[g] = [x for x in gaps[g] if not any(dd and x.mn.startswith(dd) for dd in OPT['drop'].split(','))]
        nrd = sum(1 for g in range(16) for x in mem.get(g, []) if x.kind == 'ds')
        salus = dict(salus)
        if not (TIDY and frame_end):
            salus[15] = [P_lgkeep(min(nrd, int(OPT['lgk'])))] + salus.get(15, [])
        for g in range(16):
            gaps[g] = salus.get(g, []) + mem.get(g, []) + gaps[g]
        ex = extra.get(sig, [])
        per = (len(ex) + 15) // 16
        k = 0
        for g in range(16):
            if mf[g] is not None:
                A(mf[g])
            S.ext(gaps[g])
            if ex:
                S.ext(ex[k:k + per]); k += per

    mempos4 = MEMPOS
    for tau in range(-1, 64):
        if int(OPT['stl']) and tau in (1, 33):
            stamp(S, 1 if tau == 1 else 3, True)
        if tau % 2 == 1 and tau >= 1:
            S.mark('att', tau)
            if int(OPT['stl']) and tau in (31, 63):
                stamp(S, 2 if tau == 31 else 4, True)
        elif tau in (-1, 0):
            S.mark('attp', tau)
        elif tau in (31, 32, 63):
            pass
        slots = list(range(nqb * tau, nqb * tau + nqb)) if tau >= 0 else [-2, -1]
        reads = frame_reads(tau)
        dm = kv_dma(tau + DIST) if (dmawave and tau + DIST <= 63 + DIST and tau < 63) else []
        if OPT['att_nodma'] and tau >= 0:
            dm = []
        TAIL0 = 57
        if OPT['park'] and tau >= TAIL0 and tau + DIST > 63:
            dm = []
        if FUSE() == 2 and tau + DIST > 63:
            assert DIST == 7 and OPT['alldma'] and not V2
            dm = []
        def mk_head(tau):
            head = []
            if tau + 1 <= 63 or (int(OPT['tidy']) and tau == 63):
                if dmawave and not (OPT['att_novm'] and tau >= 0) and (TIDY or tau < 63):
                    exact = tau in ((31, 32) if not TIDY else (32,))
                    head.append(P_vmwait(lambda t, tt=tau + 1: t == ('KV', tt), cap=((int(OPT['vmcap']) or npt() * (DIST - 2)) if SHARE and tau >= 1 and not exact else None)))
                if not (OPT['att_nobar'] and tau >= 0):
                    head.append(I('s_barrier'))
            return head
        head = mk_head(tau)
        if FUSE() == 2 and tau == 63:
            head = [I('s_barrier')]
        nhead = []
        if TIDY:
            if tau >= 1:
                head = []
            if 0 <= tau < 63:
                nhead = mk_head(tau + 1)
        upd = []
        if tau % 2 == 1 and tau + 1 <= 63 and tau >= 1:
            pass
        if OPT['fst'] and tau >= 1:
            h2 = [I('s_mov_b32 m0, s98'), I('s_nop 1'), I('v_writelane_b32 v59, s92, m0'), I('v_writelane_b32 v60, s94, m0'), I('v_writelane_b32 v61, s96, m0'),
                  I('s_add_u32 s98, s98, 1'), I('s_memtime s[92:93]')]
            for x in head:
                h2.append(x)
                if x.kind == 'pseudo':
                    h2.append(I('s_memtime s[94:95]'))
            h2.append(I('s_memtime s[96:97]'))
            if OPT['fst'] == 'rt':
                h2 = [x for x in h2 if x.txt != 's_memtime s[94:95]'] + [I('s_memrealtime s[94:95]')]
            for x in h2:
                if x.mn in ('s_memtime', 's_memrealtime'):
                    x.kind = 'salu'; x.wr = set()
                if x.mn == 'v_writelane_b32':
                    x.rd = set(); x.wr = set()
            head = h2
        S.ext(head)
        if FUSE() == 2 and int(OPT['stf']) == 2 and tau in (57, 61, 63):
            stamp(S, {57: 1, 61: 2, 63: 3}[tau], True)
        if FUSE() == 2:
            import gen3
            if tau == 33:
                S.ext(gen3.bad_flag_write(OPT, f'L_nbw{v3}'))
            if tau == 36:
                A(f'v_mov_b32 v28, {FLAG_ADDR}')
                A(I('ds_read_b32 v29, v28', tag=('FL', 0)))
            if tau == 37:
                A(f'v_readfirstlane_b32 {gen3.sFL0}, v29')
            if tau == 38 and nqb == 4:
                S.ext(gen3.sig_ops(0))
                A(f's_cmp_lg_u32 {gen3.sFL0}, 0')
                A('s_cbranch_scc1 L_nosig0')
                S.ext(gen3.signal('L_nosig0'))
        if tau == -1:
            for r in reads[:8]:
                A(r)
            reads = reads[8:]
        nsl = len(slots)
        mem = [dict() for _ in slots]
        sal = [dict() for _ in slots]
        if nqb == 4 and tau >= 0:
            pos = [(j, g) for j in range(4) for g in mempos4]
        elif nqb == 4:
            pos = [(j, g) for j in range(2) for g in (0, 1, 2, 4, 6, 8, 10, 14)]
        elif tau >= 0:
            pos = [(j, g) for j in range(3) for g in (0, 1, 2, 4, 6, 8, 10, 14)]
        else:
            pos = [(j, g) for j in range(2) for g in (0, 1, 2, 4, 6, 8, 10, 14)]
        if OPT['att_nolds'] and tau >= 1:
            reads = []
        for r, (j, g) in zip(reads, pos):
            mem[j].setdefault(g, []).append(r)
        if dm and tau == -1:
            for m, d in dm:
                A(m); A('s_nop 0'); A(d)
        elif dm:
            dpos = [(j, g) for j in range(nsl) for g in (3, 5, 7, 9, 11, 13)][:16]
            if OPT['alldma']:
                G0 = int(OPT['dmag'])
                G3 = min(G0, 5)
                dpos = [(j, G0) for j in range(4)] if nsl == 4 else ([(0, G3), (1, G3), (2, G3), (2, G3 + 6)] if nsl == 3 else [(0, G3), (0, G3 + 6), (1, G3), (1, G3 + 6)])
                if nsl == 3 and OPT['dpos3']:
                    dpos = [tuple(int(y) for y in x.split('.')) for x in OPT['dpos3'].split(',')]
                if int(OPT['dsplit']) < 4:
                    nd = len(dm)
                    if nsl == 4:
                        dpos = [(0, G0), (2, G0)] if nd == 2 else [(0, G0), (1, G0), (2, G0)]
                        if OPT['dpos4']:
                            dpos = [tuple(int(y) for y in x.split('.')) for x in OPT['dpos4'].split(',')]
                    elif nsl == 3 and not OPT['dpos3']:
                        dpos = [(0, 1), (0, 5), (0, 9), (0, 13), (1, 1), (1, 5), (1, 9), (1, 13), (2, 1), (2, 11)] if nd == 10 else \
                               [(0, 3), (0, 9), (1, 1), (1, 9), (1, 13), (2, 1), (2, 11)]
                    elif nsl == 2:
                        dpos = [(j, g) for j in range(2) for g in (1, 3, 5, 9, 11, 13)]
                    assert len(dpos) >= nd, (dpos, nd)
            for (m, d), (j, g) in zip(dm, dpos):
                mem[j].setdefault(g, []).append(d)
                sal[j].setdefault(g - 1, []).append(m)
        late = [dict() for _ in slots]
        for j, sig in enumerate(slots):
            if TIDY and tau >= 0:
                if tau % 2 == 0 and j == 1:
                    for g_, x in zip((7, 8, 9), [I(f's_add_u32 {sRBASE}, {sRBASE}, {2 * SLOT}'), I(f's_cmp_eq_u32 {sRBASE}, {NRING * SLOT}'),
                                                 I(f's_cselect_b32 {sRBASE}, 0, {sRBASE}')]):
                        sal[j].setdefault(g_, []).append(x)
                if tau % 2 == 0 and j == 2:
                    late[j].setdefault(2, []).append(I(f'v_add_u32 v{vKA}, {sRBASE}, v{vKL}'))
                if tau % 2 == 1 and j == 0 and tau < 63:
                    late[j].setdefault(6, []).append(I(f'v_add_u32 v{vVA0}, {sRBASE}, v{vVL0}'))
                    late[j].setdefault(10, []).append(I(f'v_add_u32 v{vVA1}, {sRBASE}, v{vVL1}'))
                if j == nsl - 1:
                    lastd = max([g for (jj, g) in dpos[:len(dm)] if jj == j] or [2]) if dm else 2
                    free = [g for g in (3, 4, 5, 7, 8, 9, 11, 12) if g > lastd]
                    todo = kv_advance() if dm else []
                    if tau % 2 == 0 and (2 <= tau <= 30 or 34 <= tau <= 62):
                        todo = todo + [I(f's_sub_u32 {sCNT}, {sCNT}, 1'), I(f's_cmp_lg_u32 {sCNT}, 0')]
                    for k_, x in enumerate(todo):
                        sal[j].setdefault(free[min(k_, len(free) - 1)], []).append(x)
                    for x in nhead:
                        sal[j].setdefault(15 if x.kind == 'bar' else int(OPT['vmg']), []).append(x)
            if j == nsl - 1 and tau % 2 == 0 and not (TIDY and tau >= 0):
                extra.setdefault(sig, [])
                ups = [I(f's_add_u32 {sRBASE}, {sRBASE}, {2 * SLOT}'),
                       I(f's_cmp_eq_u32 {sRBASE}, {NRING * SLOT}'),
                       I(f's_cselect_b32 {sRBASE}, 0, {sRBASE}')]
                if dmawave and not OPT['alldma']:
                    sal[j].setdefault(14, []).extend(ups)
                else:
                    sal[j].setdefault(3, []).append(ups[0])
                    sal[j].setdefault(5, []).append(ups[1])
                    sal[j].setdefault(7, []).append(ups[2])
                mem[j].setdefault(15, []).extend([I(f'v_add_u32 v{vKA}, {sRBASE}, v{vKL}'),
                                                  I(f'v_add_u32 v{vVA0}, {sRBASE}, v{vVL0}'),
                                                  I(f'v_add_u32 v{vVA1}, {sRBASE}, v{vVL1}')])
            if j == nsl - 1 and dm and not (TIDY and tau >= 0):
                adv = kv_advance()
                for k, ins in enumerate(adv):
                    mem[j].setdefault(15, []).append(ins)
            if OPT['park']:
                T0 = 63 - DIST + 1
                k = (tau - T0) * nsl + j
                per = -(-4 * nqb // ((63 - T0) * nsl))
                if tau >= T0:
                    for q in range(k * per, min((k + 1) * per, 4 * nqb)):
                        qb_, t_ = divmod(q, 4)
                        g_ = 4 + 6 * (q - k * per)
                        sal[j].setdefault(g_ - 1, []).append(I(f's_mov_b32 {sOOFF}, {qb_ * 131072}'))
                        mem[j].setdefault(g_, []).append(I(f'buffer_store_dwordx4 {R("a", aQ + 16 * qb_ + 4 * t_, 4)}, v{vOST}, {SRD_O}, {sOOFF} offen offset:{1024 * t_} {OPT["oflags"]}', tag=('O', 0)))
            TP = int(OPT['tailpf'])
            if TP and nqb == 4 and j == 2 and TP <= tau < TP + 3:
                pf = I(f'buffer_load_dword v63, v62, s[52:55], s69 offen {OPT["pfflags"]}')
                pf.wr = set()
                mem[j].setdefault(8, []).append(pf)
                sal[j].setdefault(9, []).append(I(f's_add_u32 s69, s69, {192 * 128}'))
            if PFS and nqb == 4 and j == 1 and tau % 2 == 1 and ((int(OPT['pfloop']) <= tau < int(OPT['pfloop']) + 30) if not SHARE else (1 <= tau <= 61 and tau != 31)):
                pf = I(f'buffer_load_dword v63, v62, s[52:55], s69 offen {OPT["pfflags"]}')
                pf.wr = set()
                mem[j].setdefault(4, []).append(pf)
                sal[j].setdefault(9, []).append(I(f's_add_u32 s69, s69, {3 * PFN * PFS}'))
            if (CPF & 2) and j == 2 and tau % 2 == 1 and 1 <= tau < 31:
                pf = I('global_load_dword v58, v[56:57], off')
                pf.wr = set()
                mem[j].setdefault(6, []).append(pf)
            if j == nsl - 1 and tau % 2 == 0 and (2 <= tau <= 30 or 34 <= tau <= (56 if FUSE() == 2 else 62)) and not TIDY:
                mem[j].setdefault(15, []).extend([I(f's_sub_u32 {sCNT}, {sCNT}, 1'), I(f's_cmp_lg_u32 {sCNT}, 0')])
            if FUSE() == 2 and tau >= 57:
                tail_fill(tau, j, nsl, mem[j], sal[j], late[j], v3)
            if FUSE() == 1 and tau == 63:
                import gen2
                B1 = int(OPT['fb1'])
                if j == 0:
                    fp = gen2.f_pre(OPT)
                    for k_ in range(B1):
                        late[j].setdefault(k_, []).extend(fp[len(fp) * k_ // B1: len(fp) * (k_ + 1) // B1])
                    late[j].setdefault(B1, []).extend([P_lgwait0(), P_vmwait(lambda t: True), I('s_barrier')])
                    if int(OPT['stf']) and OPT['stamps']:
                        T_ = Stream(); stamp(T_, 1, True); late[j][0] = T_.it + late[j].get(0, [])
                        T_ = Stream(); stamp(T_, 2, True); late[j][B1] += T_.it
                    wl = []
                    for s_ in range(int(OPT['fw0'])):
                        wl += [(m, d, x == 3) for x, (m, d) in enumerate(gen2.f_w(OPT, s_))]
                    wpos = [(0, 15)] + [(jj, g) for jj in range(1, nsl) for g in ((1, 4, 7, 10, 13) if nsl == 4 else (1, 3, 5, 7, 9, 11, 13))]
                    assert len(wpos) >= len(wl), (len(wpos), len(wl))
                for (m, d, last), (jj, g) in zip(wl, wpos):
                    if jj == j:
                        sal[j].setdefault(g - 1, []).append(m)
                        mem[j].setdefault(g, []).append(d)
                        if last:
                            late[j].setdefault(g, []).append(gen2.f_wadv())
            emit_slot(sig, mem[j], sal[j], late[j], frame_end=(j == nsl - 1 and 0 <= tau < 63))
    S.mark('attend', 0)
    if FUSE() == 2 and int(OPT['stf']) == 2:
        stamp(S, 4, True)
    A('s_nop 7')
    if FUSE() == 1:
        import gen2
        A(gen2.f_poll())
    for qb in range(nqb):
        S.ext(l_finish_items(qb))
    for qb in range(nqb):
        S.ext(o_epilogue_items(nqb, 1, qb, True))


def true_max_pass(S, nqb, v3):
    A = S.a
    A(f'v_lshrrev_b32 v27, 4, v{vLANE}')
    A(f'v_and_b32 v28, 15, v{vLANE}')
    A('v_lshlrev_b32 v31, 8, v28')
    A('v_lshl_add_u32 v31, v27, 4, v31')
    mx = [vACC + 64 + i for i in range(2 * nqb)]
    for hh in range(2):
        for qb in range(nqb):
            A(f'v_mov_b32 v{mx[hh * nqb + qb]}, 0xff7fffff')
        A(f's_mov_b32 {sTMP}, {hh * 262144}')
        A(f's_mov_b32 {sCNT}, 64')
        A(f'L_tm{v3}_{hh}:')
        for t in range(4):
            A(f'buffer_load_dwordx4 {R("v", vKPRE + 4 * t, 4)}, v31, {SRD_K}, {sTMP} offen offset:{64 * t}')
        A('s_waitcnt vmcnt(0)')
        for qb in range(nqb):
            d = vACC + 4 * qb
            for t in range(4):
                A(mfma(R('v', d, 4), R('v', vKPRE + 4 * t, 4), R('a', aQ + 64 * hh + 16 * qb + 4 * t, 4), '0' if t == 0 else R('v', d, 4)))
        A('s_nop 7')
        for qb in range(nqb):
            d = vACC + 4 * qb
            m = mx[hh * nqb + qb]
            A(f'v_max3_f32 v{m}, v{m}, v{d}, v{d + 1}')
            A(f'v_max3_f32 v{m}, v{m}, v{d + 2}, v{d + 3}')
        A(f's_add_u32 {sTMP}, {sTMP}, 4096')
        A(f's_sub_u32 {sCNT}, {sCNT}, 1')
        A(f's_cmp_lg_u32 {sCNT}, 0')
        A(f's_cbranch_scc1 L_tm{v3}_{hh}')
    xlane_max_or_add(S, 'v_max_f32', mx, [vACC + 80 + i for i in range(2 * nqb)])
    set_negm(S, nqb, mx)


def k1_variant(nqb):
    v3 = '3' if nqb == 3 else ''
    S = Stream()
    A = S.a
    qproj(S, nqb, None)
    stamp(S, 2)
    if OPT['v2']:
        i0 = len(S.it)
        qtail_end(S, nqb)
        if int(OPT['dfill']):
            tail = S.it[i0:]
            del S.it[i0:]
            k = 0; c = 0
            for x in tail:
                S.it.append(x)
                if x.kind in ('valu', 'trans', 'nop'):
                    c += 1
                    if c >= int(OPT['dfill']):
                        c = 0
                        S.it.append(mfma(R('a', 224 + 4 * (k % 8), 4), R('a', 128 + 4 * (k % 16), 4), R('a', 192 + 4 * (k % 8), 4), '0'))
                        k += 1
                elif x.kind == 'mfma':
                    c = 0
            print('dfill: dummy mfmas', k)
        A(f's_cmp_lg_u32 {sFB}, 0')
        A(f's_cbranch_scc1 L_tm{v3}')
        stamp(S, 3)
        attention(S, nqb, v3)
        return k1_finish(S, nqb, v3)
    S.lgwait0()
    A('s_barrier')
    if int(OPT['prolpos']) == 0:
        kv_prologue(S, nqb)
    q_epilogue(S, nqb)
    if int(OPT['prolpos']) == 1:
        kv_prologue(S, nqb)
    if OPT['dump'] == 'q':
        A('s_load_dwordx2 s[64:65], s[0:1], 96')
        A('s_waitcnt lgkmcnt(0)')
        A('s_add_u32 s48, s64, 0x4000000'); A('s_addc_u32 s49, s65, 0'); A('s_mov_b32 s50, 0x4000000'); A('s_mov_b32 s51, 0x20000')
        A(f's_lshl_b32 s52, s2, 2'); A(f's_add_u32 s52, s52, {sW}'); A('s_lshl_b32 s52, s52, 15')
        A(f'v_lshlrev_b32 v27, 2, v{vLANE}')
        for r in range(128):
            A(f'v_accvgpr_read_b32 v28, a{r}')
            A(f'buffer_store_dword v28, v27, s[48:51], s52 offen')
            A('s_add_u32 s52, s52, 256')
            A('s_waitcnt vmcnt(0)')
    kv_prologue2(S, nqb)
    S.vmwait(lambda t: t is not None and t[0] == 'KP')
    A(f's_cmp_lg_u32 {sFB}, 0')
    A(f's_cbranch_scc1 L_tm{v3}')
    standin(S, nqb)
    if int(OPT['prolpos']) == 2:
        kv_prologue(S, nqb)
    stamp(S, 3)
    attention(S, nqb, v3)
    return k1_finish(S, nqb, v3)


def k1_finish(S, nqb, v3):
    A = S.a
    stamp(S, 4)
    if FUSE() == 2:
        import gen3
        assert sFB == gen3.sFB and sBAD == gen3.sBAD and FLAG_ADDR == gen3.FLAG_ADDR and SLOT == gen3.SLOT
        if OPT['stamps']:
            stamp(S, 5)
        S.it.append(I('PSEUDO snap', meta=('snap', SNAPS)))
        A('s_branch L_fuse')
        if nqb == 4:
            TAILSLOW.append((f'L_tslow{v3}', f'L_tback{v3}'))
        return k1_finish2(S, nqb, v3)
    if OPT['fuse']:
        import gen2
        assert sFB == 's42' and sBAD == 's[46:47]' and FLAG_ADDR == 163832
        S.ext(gen2.f_check())
        A('s_branch L_fuse')
        return k1_finish2(S, nqb, v3)
    A(f's_cmp_eq_u32 {sFB}, {0 if OPT["nofb"] else 1}')
    A(f's_cbranch_scc1 L_done{v3}')
    A(f's_cmp_eq_u64 {sBAD}, 0')
    A(f's_cbranch_scc1 L_ok{v3}')
    A('v_mov_b32 v27, 1')
    A(f'v_mov_b32 v28, {FLAG_ADDR}')
    A('ds_write_b32 v28, v27')
    A(f'L_ok{v3}:')
    A('s_waitcnt lgkmcnt(0)')
    A('s_barrier')
    A(f'v_mov_b32 v28, {FLAG_ADDR}')
    A('ds_read_b32 v27, v28')
    A('s_waitcnt lgkmcnt(0)')
    A('v_readfirstlane_b32 s48, v27')
    A('s_nop 3')
    A('s_cmp_eq_u32 s48, 0')
    A(f's_cbranch_scc1 L_done{v3}')
    A(f's_mov_b32 {sFB}, 1')
    A('s_waitcnt vmcnt(0) lgkmcnt(0)')
    A('s_barrier')
    A('s_branch L_restart')
    A(f'L_done{v3}:')
    if OPT['stamps']:
        stamp(S, 5)
        A('s_load_dwordx2 s[64:65], s[0:1], 96')
        A('s_waitcnt lgkmcnt(0)')
        A('s_add_u32 s48, s64, 0x8000000'); A('s_addc_u32 s49, s65, 0'); A('s_mov_b32 s50, 0x100000'); A('s_mov_b32 s51, 0x20000')
        A(f's_lshl_b32 s52, s2, 2'); A(f's_add_u32 s52, s52, {sW}'); A('s_lshl_b32 s52, s52, 6')
        A('v_mov_b32 v28, 0')
        for k in range(6):
            A(f'v_mov_b32 v27, s{sST + 4 * k}')
            A(f'buffer_store_dword v27, v28, s[48:51], s52 offen offset:{4 * k}')
            A(f'v_mov_b32 v27, s{sST + 4 * k + 2}')
            A(f'buffer_store_dword v27, v28, s[48:51], s52 offen offset:{4 * k + 32}')
        if OPT['fst']:
            A('s_add_u32 s48, s64, 0x8200000'); A('s_addc_u32 s49, s65, 0')
            A(f's_lshl_b32 s52, s2, 2'); A(f's_add_u32 s52, s52, {sW}'); A('s_mul_i32 s52, s52, 768')
            A(f'v_lshlrev_b32 v28, 2, v{vLANE}')
            for k in range(3):
                A(f'buffer_store_dword v{59 + k}, v28, s[48:51], s52 offen offset:{256 * k}')
        A('s_waitcnt vmcnt(0)')
    if OPT['dbgst'] and nqb == 4:
        stamp(S, 5)
        A('s_lshl_b32 s52, s2, 2'); A(f's_or_b32 s52, s52, {sW}')
        A('s_cmp_lg_u32 s52, 0')
        A('s_cbranch_scc1 L_nodbg')
        A('s_load_dwordx2 s[48:49], s[0:1], 88')
        A('s_waitcnt lgkmcnt(0)')
        A('s_mov_b32 s50, 256'); A('s_mov_b32 s51, 0x20000')
        A('v_mov_b32 v28, 0')
        for k in range(6):
            A(f'v_mov_b32 v27, s{sST + 4 * k + 2}')
            A(f'buffer_store_dword v27, v28, s[48:51], 0 offen offset:{4 * k}')
        A('s_waitcnt vmcnt(0)')
        A('L_nodbg:')
    A('s_endpgm')
    return k1_finish2(S, nqb, v3)


def k1_finish2(S, nqb, v3):
    A = S.a
    A(f'L_tm{v3}:')
    true_max_pass(S, nqb, v3)
    A('s_nop 7')
    A(f's_branch L_attn{v3}')
    items, vmq, lgq = resolve(S.it)
    items, nfix = check_hazards(items, True, 'k1_%d' % nqb)
    check_scc(items, 'k1_%d' % nqb)
    loops = {'qp': (0, 6, f'L_qp{v3}', sCNT)}
    if LOOP_ONLY[0]:
        return fold2(items, v3, only_loop=True)
    alt = None
    if OPT['stag'] and nqb == 4 and OPT['v2'] and OPT['share']:
        alt = []
        keep = OPT['dmag']
        LOOP_ONLY[0] = True
        for g in OPT['stag'].split(','):
            OPT['dmag'] = int(g)
            alt.append(k1_variant(4))
        LOOP_ONLY[0] = False
        OPT['dmag'] = keep
    txt = fold2(items, v3, alt=alt)
    return txt


LOOP_ONLY = [False]


def fold2(items, v3, only_loop=False, alt=None):
    segs = split_marks(items)
    out = []

    def fold(group, label):
        t0 = text(group[0][2])
        for g in group[1:]:
            t = text(g[2])
            if t != t0:
                for a, b in zip(t0, t):
                    if a != b:
                        print(f'loop {label}: seg {group[0][0]}{group[0][1]} vs {g[1]} differ:\n   {a}\n   {b}')
                        break
                if len(t) != len(t0):
                    print(f'loop {label}: length differs {len(t0)} vs {len(t)} (iter {g[1]})')
                return None
        lastscc = None
        for ln in t0:
            mn = ln.split()[0]
            if re.match(r's_(add|sub|cmp|and|or|xor|lshl|lshr|min|max|bfe|not|andn2)', mn):
                lastscc = ln
        assert lastscc.startswith('s_cmp_lg_u32 ' + sCNT), lastscc
        return [f's_mov_b32 {sCNT}, {len(group)}', f'{label}:'] + t0 + [f's_cbranch_scc1 {label}']

    def fold_auto(group, label):
        for p in range(len(group)):
            r = fold(group[p:], label) if len(group) - p > 1 else None
            if r is not None:
                res = []
                for g in group[:p]:
                    res += [ln for ln in text(g[2])]
                print(f'{label}: peeled {p}, loop x{len(group) - p}, body {len(r)} lines')
                return res + r
        raise SystemExit('cannot fold ' + label)

    i = 0
    while i < len(segs):
        name, idx, its = segs[i]
        if name == 'qp' and idx == 0:
            grp = [s for s in segs if s[0] == 'qp' and s[1] <= 6]
            out += fold_auto(grp, f'L_qp{v3}')
            i += len(grp)
            continue
        if name == 'att' and idx == 1 and OPT['v2'] and OPT['share']:
            grp = [s for s in segs if s[0] == 'att' and (1 <= s[1] <= 29 or 33 <= s[1] <= 61)]
            r = fold(grp, f'L_at{v3}')
            if r is None:
                raise SystemExit('cannot share the key loop ' + v3)
            r[0] = f's_mov_b32 {sCNT}, 15'
            if only_loop:
                return r
            print(f'L_at{v3}: shared loop, body {len(r)} lines')
            if alt:
                assert len(alt) == 3
                out += [r[0], f'L_atx{v3}:', f's_cmp_eq_u32 {sW}, 1', f's_cbranch_scc1 L_at{v3}_w1', f's_cmp_eq_u32 {sW}, 2', f's_cbranch_scc1 L_at{v3}_w2']
                for w in (0, 1, 2):
                    body = alt[w][2:-1]
                    lab = f'L_at{v3}_w{w}'
                    out += ['.p2align 6'] if w else []
                    out += [f'{lab}:'] + body + [f's_cbranch_scc1 {lab}']
                    if w < 2:
                        out += [f's_branch L_ate{v3}']
                out += [f'L_ate{v3}:']
            else:
                out += r
            out += [f's_cmp_lg_u32 {sPH}, 0', f's_cbranch_scc1 L_tail{v3}', f'L_tr{v3}:']
            tr = [s for s in segs if s[0] == 'att' and s[1] == 31][0]
            out += text(tr[2])
            out += [f's_mov_b32 {sPH}, 1', f's_mov_b32 {sCNT}, 15', f's_branch L_at{"x" if alt else ""}{v3}', f'L_tail{v3}:']
            i += 15 + 1 + 15
            continue
        if name == 'att' and idx in (1, 33):
            grp = [s for s in segs if s[0] == 'att' and idx <= s[1] <= (idx + 28 if not (idx == 33 and (OPT['park'] or OPT['tailpf'] or FUSE() == 2)) else 55)]
            out += fold_auto(grp, f'L_at{v3}_{idx}')
            i += len(grp)
            continue
        if name == 'att' and idx == 31:
            out.append(f'L_tr{v3}:')
        out += text(its)
        i += 1
    return out


def descriptor(name, vg=512, acc_off=256):
    return ['.section .rodata,"a"', '.p2align 6', f'.amdhsa_kernel {name}',
            f'  .amdhsa_next_free_vgpr {vg}', '  .amdhsa_next_free_sgpr 102', f'  .amdhsa_accum_offset {acc_off}',
            '  .amdhsa_group_segment_fixed_size 0', '  .amdhsa_kernarg_size 104', '  .amdhsa_user_sgpr_count 2',
            '  .amdhsa_user_sgpr_kernarg_segment_ptr 1', '  .amdhsa_system_sgpr_workgroup_id_x 1', '.end_amdhsa_kernel']


HEADER = open('concat_heads__mha_block_cached__gqa_block_cached__near_ridge.s.ref').read().split('; Override launch')[0] \
    if os.path.exists('concat_heads__mha_block_cached__gqa_block_cached__near_ridge.s.ref') else ''


PROMO = ('v_exp_f32', 'v_add_f32', 'v_mov_b32', 'v_mul_f32', 'v_sub_f32', 'v_max_f32', 'v_add_u32', 'v_rcp_f32', 'v_xor_b32', 'v_and_b32',
         'v_lshlrev_b32', 'v_lshrrev_b32')


def inst_sizes(L):
    import subprocess, tempfile
    with tempfile.NamedTemporaryFile('w', suffix='.s', delete=False) as f:
        f.write('\n'.join(L) + '\n')
    r = subprocess.run(['llvm-mc', '-triple=amdgcn-amd-amdhsa', '-mcpu=gfx950', '--show-encoding', f.name], capture_output=True, text=True)
    os.unlink(f.name)
    assert r.returncode == 0, r.stderr[:2000]
    return [len(m.group(1).split(',')) for m in re.finditer(r'; encoding: \[([^\]]*)\]', r.stdout)]


def is_inst(ln):
    t = ln.strip()
    return bool(t) and not t.startswith(('.', ';')) and not t.endswith(':')


def promotable(ln):
    t = ln.strip()
    if t.split()[0] not in PROMO or 'vcc' in t or 'm0' in t:
        return False
    for o in t.split(None, 1)[1].split(','):
        o = o.strip()
        if re.fullmatch(r'-?(0x[0-9a-f]+|\d+)', o) and not -16 <= int(o, 0) <= 64:
            return False
    return True


def widen(ln):
    w = ln.split(None, 1)
    return ln.replace(w[0], w[0] + '_e64', 1)


def align_pass(L, mode, shift):
    if shift:
        M = []
        for ln in L:
            if re.match(r'L_(qp3?|at3?_\d+|k2):', ln):
                M.append('.p2align 6')
                M += ['s_nop 0'] * (shift % 16)
            M.append(ln)
        L = M
    if not mode:
        return L
    regs = OPT['alignreg'].split(',')
    L = list(L)
    reg = 'qp'
    region = []
    for ln in L:
        if re.match(r'L_attn3?:', ln): reg = 'at'
        elif re.match(r'L_w3:', ln): reg = 'qp'
        elif ln.startswith(K2 + ':'): reg = 'k2'
        region.append(reg)
    wide = mode.startswith('w')
    if wide:
        mode = mode[1:]
        for i, ln in enumerate(L):
            if region[i] in regs and is_inst(ln) and promotable(ln):
                L[i] = widen(ln)
    pad = mode.endswith('n')
    if pad:
        mode = mode[:-1]
    sizes = inst_sizes(L)
    idx = [i for i, ln in enumerate(L) if is_inst(ln)]
    assert len(idx) == len(sizes), (len(idx), len(sizes))
    size = dict(zip(idx, sizes))
    want = 4 if mode == 'anti' else 0
    off = 0
    run = []
    nfix = nbad = ntot = npad = 0
    ins = {}
    for i, ln in enumerate(L):
        t = ln.strip()
        m = re.match(r'\.p2align (\d+)', t)
        if m:
            a = 1 << int(m.group(1))
            off = (off + a - 1) // a * a
            run = []
            continue
        if i not in size:
            continue
        if size[i] == 4:
            run.append((i, off))
            off += 4
            continue
        crit = (mode in ('all', 'anti') or t.startswith('v_mfma')) and region[i] in regs
        if crit:
            ntot += 1
            if off % 8 != want:
                cands = [(j, o) for (j, o) in run if promotable(L[j]) and not L[j].split()[0].endswith('_e64')]
                good = [c for c in cands if c[1] % 8 == want] or cands
                if good:
                    j = good[-1][0]
                    L[j] = widen(L[j])
                    off += 4
                    nfix += 1
                elif pad:
                    ins[run[0][0] if run else i] = 's_nop 0'
                    off += 4
                    npad += 1
                else:
                    nbad += 1
        off += size[i]
        run = []
    M = []
    for i, ln in enumerate(L):
        if i in ins:
            M.append(ins[i])
        M.append(ln)
    print(f'align {mode}: {ntot} critical, {nfix} widened, {npad} padded, {nbad} left')
    return M


def main(path):
    import gen2
    L = [HEADER.rstrip('\n')] if HEADER else []
    if OPT['fuse']:
        OPT['only_k1'] = True
        L.append('; @launch grid=(256,1,1) block=(256,1,1) lds=163840')
    else:
        L.append(f'; @launch kernel={KN} grid=(256,1,1) block=(256,1,1) lds=163840')
    if not OPT['only_k1']:
        L.append(f'; @launch kernel={K2} grid=(240,1,1) block=(256,1,1) lds=163840')
    L += ['.amdgcn_target "amdgcn-amd-amdhsa--gfx950"', '.text', f'.globl {KN}', '.p2align 8', f'.type {KN},@function', f'{KN}:']
    S = Stream()
    k1_setup(S)
    its, _, _ = resolve(S.it)
    its, _ = check_hazards(its, True, 'setup')
    L += text(its)
    L += k1_variant(4)
    if int(OPT['alw3']):
        L.append('.p2align 6')
    L.append('L_w3:')
    L += k1_variant(3)
    L += ['L_end1:', 's_endpgm']
    if FUSE() == 1:
        L += ['.p2align 6'] + gen2.kernel2(OPT, True)
    if FUSE() == 2:
        import gen3
        for lab, back in TAILSLOW:
            L += gen3.slow_path(lab, back, OPT)
        def younger(q):
            d = {}
            for k, e in enumerate(q):
                d[e[0]] = len(q) - 1 - k
            return d
        q4, q3 = SNAPS
        y4, y3 = younger(q4), younger(q3)
        print('queue at L_fuse: 4:', [e[0] for e in q4]); print('queue at L_fuse: 3:', [e[0] for e in q3])
        for t in set(y4) | set(y3):
            if t is not None and t[0] == 'D':
                assert t not in y4 or (t in y3 and y3[t] <= y4[t]), (t, y3.get(t), y4.get(t))
        L += ['.p2align 6'] + gen3.kernel2f(OPT, q3)
    if not OPT['only_k1']:
        L += [f'.globl {K2}', '.p2align 8', f'.type {K2},@function', f'{K2}:']
        L += gen2.kernel2(OPT)
    L += descriptor(KN)
    if not OPT['only_k1']:
        L += descriptor(K2)
    if OPT['align'] or int(OPT['shift']):
        L = align_pass(L, OPT['align'], int(OPT['shift']))
    s = '\n'.join(L) + '\n'
    open(path, 'w').write(s)
    print('wrote', path, len(s), 'bytes', len(L), 'lines')


if __name__ == '__main__':
    for a in sys.argv[2:]:
        k, v = a.split('=')
        OPT[k] = {'True': True, 'False': False, 'None': None}.get(v, v.replace('+', ' ') if isinstance(v, str) else v)
    main(sys.argv[1])
```
